```python
import torch

def _softmax(x, axis=-1):
    return torch.softmax(x, dim=axis)
def _gelu(x):
    return torch.nn.functional.gelu(x, approximate="tanh")
def _silu(x):
    return torch.nn.functional.silu(x)
def _sigmoid(x):
    return torch.sigmoid(x)
def _layernorm(x, axis=-1, eps=1e-5):
    m = x.mean(dim=axis, keepdim=True)
    v = x.var(dim=axis, keepdim=True, unbiased=False)
    return (x - m) / torch.sqrt(v + eps)
def _scatter_add(tgt, idx, src, axis=0):
    return tgt.clone().index_add_(axis, idx, src)
def _segment_sum(src, seg, n):
    out = torch.zeros((n,) + src.shape[1:], dtype=src.dtype)
    return out.index_add_(0, seg, src)
def _pad(x, pw):
    flat = tuple(v for pair in reversed(pw) for v in pair)
    return torch.nn.functional.pad(x, flat)

kernel_name = 'concat_heads__mha_block_cached__gqa_block_cached__near_ridge'

def setup_inputs():

    _w = (lambda a: (lambda t: t.to(torch.bfloat16) if t.is_floating_point() else t)(torch.as_tensor(a)))
    def _A_setup():
        B, Sq, D = 8, 96, 448
        H, Sk, Dh = 16, 512, 256
        return {
            "x": _w((lambda *s: torch.randn(*s, dtype=torch.bfloat16) * 0.8)(B, Sq, D)),
            "k_cache": _w((lambda *s: torch.randn(*s, dtype=torch.bfloat16) * 0.8)(B, H, Sk, Dh)),
            "v_cache": _w((lambda *s: torch.randn(*s, dtype=torch.bfloat16) * 0.05)(B, H, Sk, Dh)),
            "wq": _w((lambda *s: torch.randn(*s, dtype=torch.bfloat16) * 0.8)(D, H * Dh) * (D ** -0.5)),
            "wo": _w((lambda *s: torch.randn(*s, dtype=torch.bfloat16) * 0.05)(H * Dh, D) * ((H * Dh) ** -0.5)),
        }
    _A_in = _A_setup()

    def _B_setup():
        B, Sq, D = 8, 96, 448
        Hq, Hkv, Sk, Dh = 16, 16, 512, 256
        assert Hq % Hkv == 0, (Hq, Hkv)
        return {
            "x": _w((lambda *s: torch.randn(*s, dtype=torch.bfloat16) * 0.8)(B, Sq, D)),
            "k_cache": _w((lambda *s: torch.randn(*s, dtype=torch.bfloat16) * 0.8)(B, Hkv, Sk, Dh)),
            "v_cache": _w((lambda *s: torch.randn(*s, dtype=torch.bfloat16) * 0.05)(B, Hkv, Sk, Dh)),
            "wq": _w((lambda *s: torch.randn(*s, dtype=torch.bfloat16) * 0.8)(D, Hq * Dh) * (D ** -0.5)),
            "wo": _w((lambda *s: torch.randn(*s, dtype=torch.bfloat16) * 0.05)(Hq * Dh, D) * ((Hq * Dh) ** -0.5)),
        }
    _B_in = _B_setup()

    return {
        "A_x": _A_in["x"],
        "A_k_cache": _A_in["k_cache"],
        "A_v_cache": _A_in["v_cache"],
        "A_wq": _A_in["wq"],
        "A_wo": _A_in["wo"],
        "B_x": _B_in["x"],
        "B_k_cache": _B_in["k_cache"],
        "B_v_cache": _B_in["v_cache"],
        "B_wq": _B_in["wq"],
        "B_wo": _B_in["wo"],
    }

def reference(A_x, A_k_cache, A_v_cache, A_wq, A_wo, B_x, B_k_cache, B_v_cache, B_wq, B_wo):
    def _A_ref(x, k_cache, v_cache, wq, wo):
        B, Sq, D = x.shape
        H, Dh = 16, 256
        q = (lambda x, *d: x.permute(*d))((x @ wq).reshape(B, Sq, H, Dh), 0, 2, 1, 3)
        scores = torch.einsum("bhqd,bhkd->bhqk", q, k_cache) * (Dh ** -0.5)
        p = _softmax(scores, axis=-1)
        o = torch.einsum("bhqk,bhkd->bhqd", p, v_cache)
        return (lambda x, *d: x.permute(*d))(o, 0, 2, 1, 3).reshape(B, Sq, H * Dh) @ wo

    def _B_ref(x, k_cache, v_cache, wq, wo):
        B, Sq, D = x.shape
        Hq, Dh = 16, 256
        Hkv = k_cache.shape[1]
        rep = Hq // Hkv
        q = (lambda x, *d: x.permute(*d))((x @ wq).reshape(B, Sq, Hq, Dh), 0, 2, 1, 3)
        k = (lambda x, n, axis: torch.repeat_interleave(x, n, dim=axis))(k_cache, rep, axis=1)
        v = (lambda x, n, axis: torch.repeat_interleave(x, n, dim=axis))(v_cache, rep, axis=1)
        scores = torch.einsum("bhqd,bhkd->bhqk", q, k) * (Dh ** -0.5)
        p = _softmax(scores, axis=-1)
        o = torch.einsum("bhqk,bhkd->bhqd", p, v)
        return (lambda x, *d: x.permute(*d))(o, 0, 2, 1, 3).reshape(B, Sq, Hq * Dh) @ wo

    a = _A_ref(A_x, A_k_cache, A_v_cache, A_wq, A_wo)
    b = _B_ref(B_x, B_k_cache, B_v_cache, B_wq, B_wo)
    return torch.concatenate([a, b], axis=-1)
```

```python
import re

TRANS = ("v_exp_f32", "v_rcp_f32", "v_log_f32", "v_rsq_f32", "v_sqrt_f32")


def regs_of(tok):
    tok = tok.strip()
    neg = tok.startswith("-")
    if neg:
        tok = tok[1:]
    m = re.fullmatch(r"([vas])(\d+)", tok)
    if m:
        return [(m.group(1), int(m.group(2)))]
    m = re.fullmatch(r"([vas])\[(\d+):(\d+)\]", tok)
    if m:
        return [(m.group(1), i) for i in range(int(m.group(2)), int(m.group(3)) + 1)]
    if tok in ("m0", "vcc", "exec"):
        return [(tok, 0)]
    return []


class Ins:
    __slots__ = ("text", "op", "kind", "w", "r", "srcc", "wide")

    def __init__(self, text):
        self.text = text
        t = text.split(";")[0].strip()
        parts = t.split(None, 1)
        self.op = op = parts[0]
        ops = []
        if len(parts) > 1:
            ops = [o.strip() for o in parts[1].split(",")]
            ops = [o.split()[0] if o else o for o in ops]
        R = [regs_of(o) for o in ops]
        self.w, self.r, self.srcc, self.wide = [], [], [], False
        flat = lambda xs: [y for x in xs for y in x]
        if op.endswith(":"):
            self.kind = "label"
        elif op.startswith("v_mfma"):
            self.kind = "mfma"
            self.w = R[0]; self.r = R[1] + R[2]; self.srcc = R[3]
        elif op.startswith("ds_read"):
            self.kind = "ds"; self.w = R[0]; self.r = flat(R[1:])
        elif op.startswith("ds_"):
            self.kind = "ds"; self.r = flat(R)
        elif op.startswith("buffer_load"):
            self.kind = "vmem"
            if " lds" in t:
                self.r = flat(R) + [("m0", 0)]
            else:
                self.w = R[0]; self.r = flat(R[1:])
        elif op.startswith("buffer_store") or op.startswith("buffer_atomic"):
            self.kind = "vmem"; self.r = flat(R)
            self.wide = len(R[0]) >= 3
            self.srcc = R[0]
        elif op.startswith("v_permlane"):
            self.kind = "valu"; self.w = flat(R); self.r = flat(R)
        elif op.startswith("v_"):
            self.kind = "trans" if op.split("_e")[0] in TRANS else "valu"
            self.w = R[0]; self.r = flat(R[1:])
            if op.startswith("v_writelane") or op.startswith("v_fmac"):
                self.r += R[0]
        elif op.startswith("s_"):
            self.kind = "salu"
            if op.startswith(("s_cmp", "s_waitcnt", "s_barrier", "s_nop", "s_cbranch", "s_branch", "s_endpgm", "s_setprio", "s_sleep")):
                self.r = flat(R)
            else:
                self.w = R[0] if R else []; self.r = flat(R[1:])
        else:
            self.kind = "other"


class Stream:
    def __init__(self, auto_lgkm=True):
        self.ins = []
        self.auto = auto_lgkm

    def __call__(self, text):
        for t in text.split("\n"):
            t = t.strip()
            if t:
                self.ins.append(Ins(t))

    def finish(self):
        out = []
        t = 0
        last_mfma = -100
        wv = {}
        cread = {}
        sdata = {}
        dsq = []
        nops = 0
        for I in self.ins:
            if I.kind in ("label", "other"):
                out.append(I.text)
                continue
            if I.op == "s_waitcnt" and "lgkmcnt" in I.text:
                n = int(re.search(r"lgkmcnt\((\d+)\)", I.text).group(1))
                if len(dsq) > n:
                    dsq = dsq[len(dsq) - n:] if n else []
            elif self.auto and dsq:
                touch = set(I.r) | set(I.w) | set(I.srcc)
                hit = -1
                for k, s in enumerate(dsq):
                    if s & touch:
                        hit = k
                if hit >= 0:
                    n = len(dsq) - 1 - hit
                    n = min(n, 15)
                    out.append(f"s_waitcnt lgkmcnt({n})")
                    t += 1
                    dsq = dsq[len(dsq) - n:] if n else []
            if I.kind == "ds" and len(dsq) >= 15:
                out.append("s_waitcnt lgkmcnt(13)")
                t += 1
                dsq = dsq[len(dsq) - 13:]
            tt = t + 1
            if I.kind == "mfma":
                tt = max(tt, last_mfma + 7)
            need = 0

            def req(tp, n):
                nonlocal need
                need = max(need, n - (tt - tp - 1))
            isvalu = I.kind in ("valu", "trans")
            for x in I.r + (I.srcc if I.kind != "mfma" else []):
                if x not in wv:
                    continue
                tp, k = wv[x]
                if k == "mfma":
                    req(tp, 12)
                elif k in ("valu", "trans"):
                    if I.kind == "mfma":
                        req(tp, 2)
                    elif I.op.startswith("v_permlane"):
                        req(tp, 2)
                    elif I.op.startswith(("v_readfirstlane", "v_readlane")) and x[0] == "v":
                        req(tp, 1)
                    elif x[0] in ("s", "vcc"):
                        if I.kind == "vmem":
                            req(tp, 5)
                        elif isvalu:
                            req(tp, 4 if I.op.startswith(("v_readlane", "v_writelane")) else 2)
                    if k == "trans" and isvalu:
                        req(tp, 1)
                elif k == "salu" and x[0] == "m0" and I.kind == "vmem":
                    req(tp, 1)
            if I.kind == "mfma":
                for x in I.srcc:
                    if x in wv:
                        tp, k = wv[x]
                        if k in ("valu", "trans"):
                            req(tp, 2)
                        elif k == "mfma" and I.srcc != I.w:
                            req(tp, 10)
                if I.srcc == []:
                    for x in I.w:
                        if x in wv and wv[x][1] == "mfma":
                            req(wv[x][0], 10)
            else:
                for x in I.w:
                    if x in wv and wv[x][1] == "mfma":
                        req(wv[x][0], 12)
                    if isvalu and x in cread:
                        req(cread[x], 7)
                    if x in sdata:
                        req(sdata[x], 2)
            while need > 0:
                n = min(need, 16)
                out.append(f"s_nop {n - 1}")
                nops += n
                t += n
                need -= n
            tt = t + 1
            if I.kind == "mfma":
                tt = max(tt, last_mfma + 7)
                last_mfma = tt
                for x in I.srcc:
                    cread[x] = tt
            if I.op == "s_nop":
                tt += int(I.text.split()[1])
            t = tt
            if I.kind == "vmem" and I.wide:
                for x in I.srcc:
                    sdata[x] = t
            if I.kind == "ds":
                dsq.append(set(I.w))
                for x in I.w:
                    wv.pop(x, None)
            elif I.kind == "vmem":
                for x in I.w:
                    wv.pop(x, None)
            else:
                for x in I.w:
                    wv[x] = (t, I.kind)
            out.append(I.text)
        self.nops = nops
        return out
```

```python
import sys, math, struct
sys.path.insert(0, "dev")
from asmlib import Stream

NAME = "concat_heads__mha_block_cached__gqa_block_cached__near_ridge"
MF = "v_mfma_f32_32x32x16_bf16"
NSLOT = 10
PROF_OFF = 0x4000000


def f32bits(x):
    return struct.unpack("<I", struct.pack("<f", x))[0]


def merge(a, b):
    out = []
    ia = ib = 0
    while ia < len(a) or ib < len(b):
        if ib >= len(b) or (ia < len(a) and ia * len(b) <= ib * len(a)):
            out.append(a[ia]); ia += 1
        else:
            out.append(b[ib]); ib += 1
    return out


def quarters(tiles):
    return [(t, q) for t in tiles for q in range(4)]


CONS = ([("wq", i) for i in range(14)] + [("k", i) for i in range(16)] + [("v0", i) for i in range(8)] +
        [("wo0", i) for i in range(7)] + [("v1", i) for i in range(8)] + [("wo1", i) for i in range(7)])
HARD = {("wq", 0), ("v0", 0), ("wo0", 0), ("wo1", 0)}


def load_order(kp=6):
    wq = [("wq", i) for i in range(14)]
    k = [("k", i) for i in range(16)]
    v0 = [("v0", i) for i in range(8)]
    v1 = [("v1", i) for i in range(8)]
    o0 = [("wo0", i) for i in range(7)]
    o1 = [("wo1", i) for i in range(7)]
    L = quarters(wq[:4]) + merge(quarters(wq[4:]), quarters(k[:kp])) + quarters(k[kp:])
    L += quarters(v0[:4]) + merge(quarters(v0[4:]), quarters(o0[:4]))
    L += merge(quarters(o0[4:]), quarters(v1[:3])) + quarters(v1[3:5])
    L += merge(quarters(o1[:5]), quarters(v1[5:])) + quarters(o1[5:])
    return L


def plan_loader(order, cap=60, stepmax=28):
    cidx = {t: i for i, t in enumerate(CONS)}
    slot = {}
    holder = {s: None for s in range(NSLOT)}
    for s in range(4, 10):
        holder[s] = "x"
    steps = []
    pos = 0
    issued = 0
    landed = 0
    endidx = {}
    cnt = {}
    for b in range(-1, len(CONS) - 1):
        if b >= 0:
            upto = b - 1 if CONS[b] in HARD else b - 2
            for s in holder:
                h = holder[s]
                if h == "x" or (h is not None and cidx[h] <= upto):
                    holder[s] = None
        nxt = CONS[b + 1]
        lst = []
        n = 0
        while pos < len(order):
            t, q = order[pos]
            forced = cnt.get(nxt, 0) < 4
            if not forced and (issued + 4 - landed > cap or (n + 4 > stepmax and b >= 0)):
                break
            if t not in slot:
                free = [s for s in holder if holder[s] is None]
                if not free:
                    assert not forced, ("deadlock", b, t, nxt)
                    break
                slot[t] = free[0]
                holder[free[0]] = t
            lst.append((t, q))
            issued += 4; n += 4
            cnt[t] = cnt.get(t, 0) + 1
            if cnt[t] == 4:
                endidx[t] = issued
            pos += 1
        w = issued - endidx[nxt]
        wait = None
        if endidx[nxt] > landed:
            wait = min(w, 63)
            landed = endidx[nxt]
        steps.append((lst, wait))
    assert pos == len(order)
    return slot, steps


def gen(kvpol="nt", wpol="nt", xpol="nt", stpol="sc1", rdpol="sc1", PD=4, prof=False, kp=6, cap=60, stepmax=28,
        order=None, verbose=False):
    order = order or load_order(kp)
    slot, steps = plan_loader(order, cap, stepmax)
    if verbose:
        for b, (lst, w) in enumerate(steps):
            print(b - 1, CONS[b], "slot", slot[CONS[b]], "wait", w, " ".join(f"{t[0]}{t[1]}.{q}" for t, q in lst))
    K1 = NAME + "_kernel"
    K2 = "reduce_kernel"
    H = []
    H.append(f"; @launch kernel={K1} grid=(256,1,1) block=(256,1,1) lds=163840")
    H.append(f"; @launch kernel={K2} grid=(336,1,1) block=(256,1,1) lds=0")
    H.append('.amdgcn_target "amdgcn-amd-amdhsa--gfx950"')
    H += [".text", f".globl {K1}", ".p2align 8", f".type {K1},@function", f"{K1}:"]

    P = Stream()
    P("""
    s_cmp_ge_u32 s2, 256
    s_cbranch_scc1 L_done
    s_and_b32 s3, s2, 7
    s_lshr_b32 s4, s3, 2
    s_mul_i32 s5, s4, 40
    s_add_u32 s6, s0, s5
    s_addc_u32 s7, s1, 0
    s_load_dwordx8 s[8:15], s[6:7], 0
    s_load_dwordx2 s[16:17], s[6:7], 32
    s_load_dwordx2 s[24:25], s[0:1], 96
    s_lshr_b32 s26, s2, 3
    s_and_b32 s27, s3, 3
    s_lshl_b32 s27, s27, 2
    s_and_b32 s28, s26, 3
    s_add_u32 s27, s27, s28
    s_lshr_b32 s28, s26, 2
    v_lshrrev_b32 v1, 6, v0
    v_and_b32 v0, 63, v0
    v_readfirstlane_b32 s30, v1
    s_cmp_eq_u32 s30, 3
    s_cbranch_scc1 L_loader
    """)

    C = Stream()
    C("""
    v_lshrrev_b32 v1, 3, v0
    v_mul_u32_u24 v1, 896, v1
    v_and_b32 v2, 7, v0
    v_lshrrev_b32 v3, 4, v0
    v_xor_b32 v2, v2, v3
    v_lshl_add_u32 v32, v2, 4, v1
    v_xor_b32 v33, 64, v32
    v_add_u32 v33, 6144, v33
    v_add_u32 v34, 12288, v32
    v_add_u32 v35, 12288, v33
    s_lshl_b32 s31, s30, 15
    s_add_u32 s31, s31, 65536
    s_mul_i32 s57, s30, 28672
    s_waitcnt lgkmcnt(0)
    s_mul_i32 s29, s28, 86016
    s_add_u32 s32, s8, s29
    s_addc_u32 s33, s9, 0
    s_mov_b32 s34, 86016
    s_mov_b32 s35, 0x20000
    """)
    for cb in range(7):
        C(f"s_add_u32 m0, s31, {cb * 4096}")
        if cb:
            C(f"s_add_u32 s57, s57, 128")
        for rg in range(4):
            C(f"buffer_load_dwordx4 v{32 + rg}, s[32:35], s57 offen offset:{rg * 1024} {xpol} lds")
    C("""
    v_and_b32 v1, 31, v0
    v_lshrrev_b32 v2, 5, v0
    v_bfe_u32 v3, v0, 1, 3
    v_xor_b32 v3, v3, v2
    v_lshlrev_b32 v3, 4, v3
    v_lshl_add_u32 v3, v1, 7, v3
    v_add_u32 v36, s31, v3
    v_xor_b32 v37, 32, v36
    v_xor_b32 v38, 64, v36
    v_xor_b32 v39, 96, v36
    """)
    C("""
    v_and_b32 v3, 15, v0
    v_xor_b32 v3, v3, v2
    v_lshlrev_b32 v3, 4, v3
    v_lshl_add_u32 v12, v1, 9, v3
    """)
    for j in range(1, 8):
        C(f"v_xor_b32 v{12 + j}, {32 * j}, v12")
    C("""
    v_bfe_u32 v4, v0, 2, 2
    v_and_b32 v5, 3, v0
    v_bfe_u32 v6, v0, 4, 1
    v_lshlrev_b32 v6, 5, v6
    v_lshl_add_u32 v7, v5, 3, v6
    v_and_b32 v3, 1, v0
    v_lshlrev_b32 v3, 4, v3
    v_bfe_u32 v5, v0, 1, 1
    v_lshl_add_u32 v3, v5, 3, v3
    v_add_u32 v6, v6, v3
    """)
    C("""
    v_lshl_add_u32 v3, v2, 3, v4
    v_lshlrev_b32 v3, 9, v3
    v_lshl_add_u32 v3, v4, 6, v3
    v_add_u32 v8, v3, v6
    v_xor_b32 v9, 64, v8
    v_xor_b32 v10, 128, v8
    v_xor_b32 v11, 192, v8
    v_lshl_add_u32 v5, v2, 2, v4
    v_lshlrev_b32 v3, 8, v5
    v_lshl_add_u32 v3, v4, 6, v3
    v_add_u32 v20, v3, v7
    v_xor_b32 v21, 64, v20
    v_xor_b32 v22, 128, v20
    v_xor_b32 v23, 192, v20
    v_lshlrev_b32 v3, 7, v5
    v_lshrrev_b32 v4, 1, v4
    v_lshl_add_u32 v3, v4, 6, v3
    v_add_u32 v24, v3, v6
    v_xor_b32 v25, 64, v24
    v_lshlrev_b32 v30, 4, v0
    """)
    C(f"""
    s_lshl_b32 s29, s4, 3
    s_add_u32 s29, s29, s28
    s_lshl_b32 s29, s29, 4
    s_add_u32 s29, s29, s27
    s_mul_i32 s29, s29, 3
    s_add_u32 s29, s29, s30
    s_mul_i32 s29, s29, 28672
    s_add_u32 s52, s24, s29
    s_addc_u32 s53, s25, 0
    s_mov_b32 s54, 28672
    s_mov_b32 s55, 0x20000
    s_mov_b32 s56, {f32bits(math.log2(math.e) / 16.0):#x}
    """)
    XF = 112
    for cb in range(7):
        C(f"s_waitcnt vmcnt({24 - 4 * cb})")
        for i in range(4):
            s = 4 * cb + i
            C(f"ds_read_b128 a[{XF + 4 * s}:{XF + 4 * s + 3}], v{36 + i} offset:{cb * 4096}")
    C("s_waitcnt lgkmcnt(0)")

    M = []
    win = {"q": 0, "k": 0, "v": 0, "o": 0}
    aregs = {"q": range(8, 12), "k": range(12, 20), "v": range(20, 24), "o": range(24, 26)}

    def rng(p, a, n):
        return f"{p}[{a}:{a + n - 1}]"

    def add(tile, aset, rd, d, dk, b, first):
        M.append(dict(tile=tile, aset=aset, rd=rd, d=rng(dk, d, 16), b=b, first=first))

    def sreg(t):
        return ("v", 32 + 16 * t) if t < 14 else ("a", 64 + 16 * (t - 14))

    marks = {}
    for i in range(14):
        seq = [(ks, dt) for ks in range(2) for dt in range(8)] if i < 13 else [(ks, dt) for dt in range(8) for ks in range(2)]
        for ks, dt in seq:
            o = (dt >> 2) * 256 + ks * 8192
            add(("wq", i), "q", [("tr", 8 + (dt & 3), o), ("tr", 8 + (dt & 3), o + 2048)], 128 + 16 * dt, "v",
                rng("a", XF + 4 * (2 * i + ks), 4), i == 0 and ks == 0)
            marks[("q", dt)] = len(M) - 1
    for t in range(16):
        dk, d = sreg(t)
        for s in range(16):
            add(("k", t), "k", [("b128", 12 + (s & 7), (s >> 3) * 256)], d, dk, rng("a", 4 * s, 4), s == 0)
            marks[("s", t, s)] = len(M) - 1
    for h in range(2):
        for i in range(8):
            seq = [(ka, dt) for ka in range(4) for dt in range(4)] if i < 7 else [(ka, dt) for dt in range(4) for ka in range(4)]
            for ka, dt in seq:
                t = 2 * i + (ka >> 1)
                o = ka * 4096
                dk, d = ("a", 16 * dt) if h == 0 else ("v", 160 + 16 * dt)
                add((f"v{h}", i), "v", [("tr", 20 + dt, o), ("tr", 20 + dt, o + 2048)], d, dk,
                    rng("v", 32 + 8 * t + 4 * (ka & 1), 4), i == 0 and ka == 0)
                marks[("pv", h, i, ka)] = min(marks.get(("pv", h, i, ka), 1 << 30), len(M) - 1)
                marks[("o", h, dt)] = len(M) - 1
        for i in range(7):
            for nt in range(2):
                T = 2 * i + nt
                acc = 16 * ((T + 4) % 14)
                for ka in range(8):
                    o = ka * 2048
                    add((f"wo{h}", i), "o", [("tr", 24 + nt, o), ("tr", 24 + nt, o + 1024)], acc, "a",
                        rng("v", 224 + 4 * ka, 4), h == 0 and ka == 0)
                    marks[("op", h, T, ka)] = len(M) - 1
    N = len(M)
    assert N == 960

    F = []

    def fill(ready, dead, text, cost=4):
        F.append((ready, dead, cost, text))

    for dt in range(8):
        r = marks[("q", dt)] + 2
        for g in range(2):
            dl = marks[("s", 0, 2 * dt + g)]
            for j in range(4):
                a = 128 + 16 * dt + 8 * g + 2 * j
                fill(r, dl, f"v_cvt_pk_bf16_f32 v{a}, v{a}, v{a + 1}")
            for j in range(4):
                a = 128 + 16 * dt + 8 * g + 2 * j
                fill(r, dl, f"v_accvgpr_write_b32 a{4 * (2 * dt + g) + j}, v{a}")
    pv0 = marks[("pv", 0, 0, 0)]
    for t in range(16):
        r = marks[("s", t, 15)] + 2
        dk, d = sreg(t)
        for j in range(8):
            if dk == "v":
                x, y = f"v{d + 2 * j}", f"v{d + 2 * j + 1}"
            else:
                x, y = f"v{1 + (j & 1) * 2}", f"v{2 + (j & 1) * 2}"
                fill(r, pv0, f"v_accvgpr_read_b32 {x}, a{d + 2 * j}")
                fill(r, pv0, f"v_accvgpr_read_b32 {y}, a{d + 2 * j + 1}")
            if t == 0 and j == 0:
                fill(r, pv0, f"v_max_f32 v26, {x}, {y}")
            else:
                fill(r, pv0, f"v_max3_f32 v26, v26, {x}, {y}")
    r = marks[("s", 15, 15)] + 2
    for txt in ["v_mov_b32 v27, v26", "v_permlane32_swap_b32 v26, v27", "v_max_f32 v26, v26, v27",
                "v_mul_f32 v26, s56, v26"]:
        fill(r, pv0, txt)
    for t in range(16):
        dk, d = sreg(t)
        for g in range(2):
            i, ka = t >> 1, (t & 1) * 2 + g
            dl = pv0 if i == 0 else marks[("pv", 0, i - 1, 0)] + 3 * (ka + 1)
            tmp = [1, 2, 3, 4, 5, 6, 7, 31]
            src = []
            for j in range(8):
                if dk == "v":
                    src.append(d + 8 * g + j)
                else:
                    src.append(tmp[j])
                    fill(r, dl, f"v_accvgpr_read_b32 v{tmp[j]}, a{d + 8 * g + j}")
            for j in range(8):
                fill(r, dl, f"v_fma_f32 v{src[j]}, v{src[j]}, s56, -v26")
                if j:
                    fill(r, dl, f"v_exp_f32 v{src[j - 1]}, v{src[j - 1]}", 8)
            fill(r, dl, f"v_exp_f32 v{src[7]}, v{src[7]}", 8)
            for j in range(8):
                acc = 27 + (j & 1)
                if t == 0 and g == 0 and j < 2:
                    fill(r, dl, f"v_mov_b32 v{acc}, v{src[j]}")
                else:
                    fill(r, dl, f"v_add_f32 v{acc}, v{acc}, v{src[j]}")
            for j in range(4):
                fill(r, dl, f"v_cvt_pk_bf16_f32 v{32 + 8 * t + 4 * g + j}, v{src[2 * j]}, v{src[2 * j + 1]}")
    op0 = marks[("op", 0, 0, 0)]
    for txt, c in [("v_add_f32 v27, v27, v28", 4), ("v_mov_b32 v28, v27", 4), ("v_permlane32_swap_b32 v27, v28", 4),
                   ("v_add_f32 v27, v27, v28", 4), ("v_rcp_f32 v29, v27", 8)]:
        fill(r, op0, txt, c)
    for h in range(2):
        for dt in range(4):
            r = marks[("o", h, dt)] + 2
            for g in range(2):
                dl = marks[("op", h, 0, 2 * dt + g)]
                for j in range(8):
                    e = 16 * dt + 8 * g + j
                    if h == 0:
                        fill(r, dl, f"v_accvgpr_read_b32 v{160 + e}, a{e}")
                for j in range(8):
                    e = 160 + 16 * dt + 8 * g + j
                    fill(r, dl, f"v_mul_f32 v{e}, v29, v{e}")
                for j in range(4):
                    e = 160 + 16 * dt + 8 * g + 2 * j
                    fill(r, dl, f"v_cvt_pk_bf16_f32 v{224 + 4 * (2 * dt + g) + j}, v{e}, v{e + 1}")
    for T in range(14):
        r = marks[("op", 1, T, 7)] + 2
        acc = 16 * ((T + 4) % 14)
        tb = 32 + 32 * (T % 4)
        for g in range(2):
            for j in range(8):
                fill(r, N, f"v_accvgpr_read_b32 v{tb + 8 * g + j}, a{acc + 8 * g + j}")
            for j in range(4):
                fill(r, N, f"v_cvt_pk_bf16_f32 v{tb + 16 + 4 * g + j}, v{tb + 8 * g + 2 * j}, v{tb + 8 * g + 2 * j + 1}")
            tg = 2 * T + g
            if tg % 4 == 0:
                fill(r, N, f"s_mov_b32 s58, {tg * 1024}")
            fill(r, N, f"buffer_store_dwordx4 v[{tb + 16 + 4 * g}:{tb + 19 + 4 * g}], v30, s[52:55], s58 offen offset:{(tg % 4) * 1024} {stpol}", 8)

    nbar = [0]
    rd_ptr = 0
    fp = 0

    def emit_reads(j):
        m = M[j]
        cost = 0
        if j == 0 or M[j - 1]["tile"] != m["tile"]:
            assert CONS[nbar[0]] == m["tile"]
            C("s_barrier")
            nbar[0] += 1
            w = (slot[m["tile"]] // 4) * 65536
            a = m["aset"]
            if w != win[a]:
                for rg in aregs[a]:
                    if w > win[a]:
                        C(f"v_add_u32 v{rg}, {w - win[a]:#x}, v{rg}")
                    else:
                        C(f"v_subrev_u32 v{rg}, {win[a] - w:#x}, v{rg}")
                    cost += 4
                win[a] = w
        base = (slot[m["tile"]] % 4) * 16384
        ring = 224 + 4 * (j % 8)
        for n, (kind, ar, o) in enumerate(m["rd"]):
            if kind == "tr":
                C(f"ds_read_b64_tr_b16 a[{ring + 2 * n}:{ring + 2 * n + 1}], v{ar} offset:{base + o}")
            else:
                C(f"ds_read_b128 a[{ring}:{ring + 3}], v{ar} offset:{base + o}")
            cost += 4
        return cost

    def seg_start(j):
        return (j == 0 or M[j - 1]["tile"] != M[j]["tile"]) and M[j]["tile"] in HARD

    for i in range(N):
        m = M[i]
        if seg_start(i):
            while fp < len(F) and any(f[1] <= i for f in F[fp:fp + 400]):
                assert F[fp][0] - 2 < i
                C(F[fp][3]); fp += 1
            assert rd_ptr == i
            while rd_ptr < min(N, i + PD):
                emit_reads(rd_ptr); rd_ptr += 1
        while fp < len(F) and any(f[1] <= i for f in F[fp:fp + 400]):
            assert F[fp][0] - 2 < i
            C(F[fp][3]); fp += 1
        ring = 224 + 4 * (i % 8)
        c = "0" if m["first"] else m["d"]
        C(f"{MF} {m['d']}, a[{ring}:{ring + 3}], {m['b']}, {c}")
        budget = 24
        if rd_ptr < N and rd_ptr <= i + PD and not seg_start(rd_ptr):
            budget -= emit_reads(rd_ptr); rd_ptr += 1
        budget -= 4
        while fp < len(F) and F[fp][0] <= i and budget >= F[fp][2]:
            budget -= F[fp][2]
            C(F[fp][3]); fp += 1
    while fp < len(F):
        C(F[fp][3]); fp += 1
    assert nbar[0] == len(CONS)
    if prof:
        C(f"""
        s_waitcnt vmcnt(0)
        s_memtime s[60:61]
        s_waitcnt lgkmcnt(0)
        s_lshl_b32 s29, s2, 10
        s_lshl_b32 s31, s30, 2
        s_add_u32 s29, s29, s31
        s_add_u32 s29, s29, {PROF_OFF + 512}
        s_add_u32 s52, s24, s29
        s_addc_u32 s53, s25, 0
        s_mov_b32 s54, 4
        v_mov_b32 v1, s60
        v_lshlrev_b32 v2, 2, v0
        buffer_store_dword v1, v2, s[52:55], 0 offen
        """)
    C("s_endpgm")

    Ld = Stream()
    Ld("L_loader:")
    if prof:
        Ld("s_memtime s[62:63]")
    Ld("""
    v_lshrrev_b32 v1, 5, v0
    v_and_b32 v2, 31, v0
    v_lshrrev_b32 v3, 2, v2
    v_xor_b32 v3, v3, v1
    v_and_b32 v4, 3, v0
    v_lshlrev_b32 v4, 4, v4
    v_lshl_add_u32 v3, v3, 6, v4
    v_lshl_add_u32 v8, v1, 13, v3
    v_xor_b32 v9, 128, v8
    v_add_u32 v9, 15360, v9
    v_add_u32 v10, 30720, v8
    v_add_u32 v11, 30720, v9
    s_waitcnt lgkmcnt(0)
    s_lshl_b32 s29, s27, 9
    s_add_u32 s44, s14, s29
    s_addc_u32 s45, s15, 0
    s_sub_u32 s46, 3670016, s29
    s_mov_b32 s47, 0x20000
    """)
    setup2 = """
    v_xor_b32 v3, v2, v1
    v_lshlrev_b32 v3, 4, v3
    v_lshl_add_u32 v12, v1, 9, v3
    """ + "\n".join(f"v_xor_b32 v{12 + j}, {32 * j}, v12" for j in range(1, 8)) + """
    v_lshrrev_b32 v1, 4, v0
    v_bfe_u32 v3, v0, 2, 2
    v_xor_b32 v3, v3, v1
    v_lshl_add_u32 v3, v3, 6, v4
    v_lshl_add_u32 v20, v1, 9, v3
    v_add_u32 v21, 1024, v20
    v_add_u32 v22, 2048, v20
    v_add_u32 v23, 3072, v20
    v_lshrrev_b32 v2, 3, v0
    v_mul_u32_u24 v2, 896, v2
    v_bfe_u32 v3, v0, 2, 1
    v_and_b32 v1, 1, v1
    v_xor_b32 v3, v3, v1
    v_lshl_add_u32 v3, v3, 6, v4
    v_add_u32 v24, v2, v3
    v_add_u32 v25, 6144, v24
    v_add_u32 v26, 12288, v24
    v_add_u32 v27, 18432, v24
    s_lshl_b32 s29, s28, 4
    s_add_u32 s29, s29, s27
    s_lshl_b32 s29, s29, 18
    s_add_u32 s36, s10, s29
    s_addc_u32 s37, s11, 0
    s_mov_b32 s38, 262144
    s_mov_b32 s39, 0x20000
    s_add_u32 s40, s12, s29
    s_addc_u32 s41, s13, 0
    s_mov_b32 s42, 262144
    s_mov_b32 s43, 0x20000
    s_mul_i32 s29, s27, 229376
    s_add_u32 s48, s16, s29
    s_addc_u32 s49, s17, 0
    s_mov_b32 s50, 229376
    s_mov_b32 s51, 0x20000
    """

    def issue(t, q):
        kind, i = t
        Ld(f"s_mov_b32 m0, {slot[t] * 16384 + q * 4096}")
        if kind == "wq":
            so, srd, vb, pol = i * 262144 + q * 65536, 44, 8, wpol
        elif kind == "k":
            so, srd, vb, pol = i * 16384 + q * 4096, 36, 12 + 4 * (q & 1), kvpol
        elif kind[0] == "v":
            so, srd, vb, pol = int(kind[1]) * 256 + i * 32768 + q * 8192, 40, 20, kvpol
        else:
            so, srd, vb, pol = (int(kind[2]) * 128 + q * 32) * 896 + i * 128, 48, 24, wpol
        Ld(f"s_mov_b32 s31, {so}")
        for p in range(4):
            Ld(f"buffer_load_dwordx4 v{vb + p}, s[{srd}:{srd + 3}], s31 offen offset:{p * 1024} {pol} lds")

    def stamp(idx):
        if prof:
            Ld(f"s_memtime s[60:61]\ns_waitcnt lgkmcnt(0)\nv_writelane_b32 v{40 + idx // 64}, s60, {idx % 64}")

    for b, (lst, wait) in enumerate(steps):
        for t, q in lst:
            if b == 0:
                assert t[0] == "wq"
            issue(t, q)
        if b == 0:
            Ld(setup2)
        if wait is not None:
            Ld(f"s_waitcnt vmcnt({wait})")
        stamp(2 * b)
        Ld("s_barrier")
        stamp(2 * b + 1)
    if prof:
        Ld(f"""
        v_writelane_b32 v41, s62, 63
        s_lshl_b32 s29, s2, 10
        s_add_u32 s29, s29, {PROF_OFF}
        s_add_u32 s52, s24, s29
        s_addc_u32 s53, s25, 0
        s_mov_b32 s54, 512
        s_mov_b32 s55, 0x20000
        v_lshlrev_b32 v2, 2, v0
        buffer_store_dword v40, v2, s[52:55], 0 offen
        buffer_store_dword v41, v2, s[52:55], 0 offen offset:256
        """)
    Ld("L_done:")
    Ld("s_endpgm")

    R = Stream()
    R(f"""
    s_cmp_ge_u32 s2, 336
    s_cbranch_scc1 L_rdone
    s_load_dwordx2 s[8:9], s[0:1], 80
    s_load_dwordx2 s[10:11], s[0:1], 96
    v_lshrrev_b32 v1, 6, v0
    v_and_b32 v0, 63, v0
    v_readfirstlane_b32 s30, v1
    s_mul_i32 s3, s2, 3121
    s_lshr_b32 s3, s3, 16
    s_mul_i32 s4, s3, 21
    s_sub_u32 s4, s2, s4
    s_lshl_b32 s4, s4, 2
    s_add_u32 s4, s4, s30
    v_lshlrev_b32 v2, 4, v0
    s_mul_i32 s5, s3, 1376256
    s_lshl_b32 s6, s4, 10
    s_waitcnt lgkmcnt(0)
    s_add_u32 s12, s10, s5
    s_addc_u32 s13, s11, 0
    s_mov_b32 s14, 1376256
    s_mov_b32 s15, 0x20000
    """)
    for h in range(16):
        R(f"buffer_load_dwordx4 v[{16 + 4 * h}:{19 + 4 * h}], v2, s[12:15], s6 offen {rdpol}")
        if h < 15:
            R("s_add_u32 s6, s6, 86016")
    R("""
    s_mov_b32 s16, s8
    s_mov_b32 s17, s9
    s_mov_b32 s18, 1376256
    s_mov_b32 s19, 0x20000
    s_cmp_ge_u32 s4, 28
    s_cselect_b32 s20, 1, 0
    s_cmp_ge_u32 s4, 56
    s_cselect_b32 s20, 2, s20
    s_mul_i32 s21, s20, 28
    s_sub_u32 s21, s4, s21
    s_and_b32 s22, s3, 7
    s_mul_i32 s22, s22, 3
    s_add_u32 s22, s22, s20
    s_mul_i32 s22, s22, 57344
    s_lshr_b32 s23, s3, 3
    s_mul_i32 s23, s23, 896
    s_add_u32 s22, s22, s23
    s_lshl_b32 s21, s21, 5
    s_add_u32 s22, s22, s21
    v_and_b32 v3, 31, v0
    v_mul_u32_u24 v3, 1792, v3
    v_lshrrev_b32 v4, 5, v0
    v_lshl_add_u32 v3, v4, 4, v3
    """)
    for h in range(16):
        R(f"s_waitcnt vmcnt({15 - h})")
        for j in range(4):
            x = 16 + 4 * h + j
            if h == 0:
                R(f"v_lshlrev_b32 v{8 + 2 * j}, 16, v{x}")
                R(f"v_and_b32 v{9 + 2 * j}, 0xffff0000, v{x}")
            else:
                R(f"v_lshlrev_b32 v5, 16, v{x}")
                R(f"v_and_b32 v6, 0xffff0000, v{x}")
                R(f"v_add_f32 v{8 + 2 * j}, v{8 + 2 * j}, v5")
                R(f"v_add_f32 v{9 + 2 * j}, v{9 + 2 * j}, v6")
    for j in range(4):
        R(f"v_cvt_pk_bf16_f32 v{4 + j}, v{8 + 2 * j}, v{9 + 2 * j}")
    R("buffer_store_dwordx4 v[4:7], v3, s[16:19], s22 offen")
    R("L_rdone:")
    R("s_endpgm")

    body = P.finish() + C.finish() + Ld.finish()
    if verbose:
        print("consumer nops", C.nops, "instructions", len(C.ins))
    T = H + ["    " + l if not l.endswith(":") else l for l in body]
    T += [f".globl {K2}", ".p2align 8", f".type {K2},@function", f"{K2}:"]
    T += ["    " + l if not l.endswith(":") else l for l in R.finish()]
    T += ['.section .rodata,"a"']
    for k, nv, ao in ((K1, 512, 256), (K2, 80, 80)):
        T += [".p2align 6", f".amdhsa_kernel {k}", f"  .amdhsa_next_free_vgpr {nv}", "  .amdhsa_next_free_sgpr 102",
              f"  .amdhsa_accum_offset {ao}", "  .amdhsa_group_segment_fixed_size 0", "  .amdhsa_kernarg_size 104",
              "  .amdhsa_user_sgpr_count 2", "  .amdhsa_user_sgpr_kernarg_segment_ptr 1",
              "  .amdhsa_system_sgpr_workgroup_id_x 1", ".end_amdhsa_kernel"]
    return "\n".join(T) + "\n"


if __name__ == "__main__":
    out = sys.argv[1] if len(sys.argv) > 1 else f"cdna_kernels/{NAME}.s"
    kw = {}
    for a in sys.argv[2:]:
        k, v = a.split("=")
        kw[k] = eval(v) if v and (v[0].isdigit() or v in ("True", "False")) else v
    open(out, "w").write(gen(verbose=True, **kw))
```

```python
import sys, math, struct
sys.path.insert(0, "dev")
from asmlib import Stream

NAME = "concat_heads__mha_block_cached__gqa_block_cached__near_ridge"
MF = "v_mfma_f32_32x32x16_bf16"
NSLOT = 10
PROF_OFF = 0x4000000


def f32bits(x):
    return struct.unpack("<I", struct.pack("<f", x))[0]


def merge(a, b):
    out = []
    ia = ib = 0
    while ia < len(a) or ib < len(b):
        if ib >= len(b) or (ia < len(a) and ia * len(b) <= ib * len(a)):
            out.append(a[ia]); ia += 1
        else:
            out.append(b[ib]); ib += 1
    return out


def quarters(tiles):
    return [(t, q) for t in tiles for q in range(4)]


CONS = ([("wq", i) for i in range(14)] + [("k", i) for i in range(16)] + [("v0", i) for i in range(8)] +
        [("wo0", i) for i in range(7)] + [("v1", i) for i in range(8)] + [("wo1", i) for i in range(7)])
HARD = {("wq", 0), ("v0", 0), ("wo0", 0), ("wo1", 0)}


def load_order(kp=6):
    wq = [("wq", i) for i in range(14)]
    k = [("k", i) for i in range(16)]
    v0 = [("v0", i) for i in range(8)]
    v1 = [("v1", i) for i in range(8)]
    o0 = [("wo0", i) for i in range(7)]
    o1 = [("wo1", i) for i in range(7)]
    L = quarters(wq[:4]) + merge(quarters(wq[4:]), quarters(k[:kp])) + quarters(k[kp:])
    L += quarters(v0[:4]) + merge(quarters(v0[4:]), quarters(o0[:4]))
    L += merge(quarters(o0[4:]), quarters(v1[:3])) + quarters(v1[3:5])
    L += merge(quarters(o1[:5]), quarters(v1[5:])) + quarters(o1[5:])
    return L


def plan_loader(order, cap=60, stepmax=28):
    cidx = {t: i for i, t in enumerate(CONS)}
    slot = {}
    holder = {s: None for s in range(NSLOT)}
    for s in range(4, 10):
        holder[s] = "x"
    steps = []
    pos = 0
    issued = 0
    landed = 0
    endidx = {}
    cnt = {}
    for b in range(-1, len(CONS) - 1):
        if b >= 0:
            upto = b - 1 if CONS[b] in HARD else b - 2
            for s in holder:
                h = holder[s]
                if h == "x" or (h is not None and cidx[h] <= upto):
                    holder[s] = None
        nxt = CONS[b + 1]
        lst = []
        n = 0
        while pos < len(order):
            t, q = order[pos]
            forced = cnt.get(nxt, 0) < 4
            if not forced and (issued + 4 - landed > cap or (n + 4 > stepmax and b >= 0)):
                break
            if t not in slot:
                free = [s for s in holder if holder[s] is None]
                if not free:
                    assert not forced, ("deadlock", b, t, nxt)
                    break
                slot[t] = free[0]
                holder[free[0]] = t
            lst.append((t, q))
            issued += 4; n += 4
            cnt[t] = cnt.get(t, 0) + 1
            if cnt[t] == 4:
                endidx[t] = issued
            pos += 1
        w = issued - endidx[nxt]
        wait = None
        if endidx[nxt] > landed:
            wait = min(w, 63)
            landed = endidx[nxt]
        steps.append((lst, wait))
    assert pos == len(order)
    return slot, steps


def gen(kvpol="nt", wpol="nt", xpol="nt", stpol="sc1", rdpol="sc1", PD=4, prof=False, kp=6, cap=60, stepmax=28,
        order=None, verbose=False, noop=0, cpf=0, span=False):
    order = order or load_order(kp)
    slot, steps = plan_loader(order, cap, stepmax)
    if verbose:
        for b, (lst, w) in enumerate(steps):
            print(b - 1, CONS[b], "slot", slot[CONS[b]], "wait", w, " ".join(f"{t[0]}{t[1]}.{q}" for t, q in lst))
    K1 = NAME + "_kernel"
    K2 = "reduce_kernel"
    H = []
    H.append(f"; @launch kernel={K1} grid=(256,1,1) block=(256,1,1) lds=163840")
    H.append(f"; @launch kernel={K2} grid=(336,1,1) block=(256,1,1) lds=0")
    for _ in range(noop):
        H.append(f"; @launch kernel=noop_kernel grid=(1,1,1) block=(64,1,1) lds=0")
    H.append('.amdgcn_target "amdgcn-amd-amdhsa--gfx950"')
    H += [".text", f".globl {K1}", ".p2align 8", f".type {K1},@function", f"{K1}:"]

    P = Stream()
    P("""
    s_cmp_ge_u32 s2, 256
    s_cbranch_scc1 L_done
    s_and_b32 s3, s2, 7
    s_lshr_b32 s4, s3, 2
    s_mul_i32 s5, s4, 40
    s_add_u32 s6, s0, s5
    s_addc_u32 s7, s1, 0
    s_load_dwordx8 s[8:15], s[6:7], 0
    s_load_dwordx2 s[16:17], s[6:7], 32
    s_load_dwordx2 s[24:25], s[0:1], 96
    s_lshr_b32 s26, s2, 3
    s_and_b32 s27, s3, 3
    s_lshl_b32 s27, s27, 2
    s_and_b32 s28, s26, 3
    s_add_u32 s27, s27, s28
    s_lshr_b32 s28, s26, 2
    v_lshrrev_b32 v1, 6, v0
    v_and_b32 v0, 63, v0
    v_readfirstlane_b32 s30, v1
    """)
    if cpf:
        P(f"""
        s_getpc_b64 s[20:21]
        v_lshlrev_b32 v2, 7, v0
        v_lshl_add_u32 v2, v1, 13, v2
        """)
        for j in range(cpf):
            P(f"global_load_dword v{44 + j}, v2, s[20:21]")
            if j + 1 < cpf:
                P("v_add_u32 v2, 0x8000, v2")
    P("""
    s_cmp_eq_u32 s30, 3
    s_cbranch_scc1 L_loader
    """)

    C = Stream()
    C("""
    v_lshrrev_b32 v1, 3, v0
    v_mul_u32_u24 v1, 896, v1
    v_and_b32 v2, 7, v0
    v_lshrrev_b32 v3, 4, v0
    v_xor_b32 v2, v2, v3
    v_lshl_add_u32 v32, v2, 4, v1
    v_xor_b32 v33, 64, v32
    v_add_u32 v33, 6144, v33
    v_add_u32 v34, 12288, v32
    v_add_u32 v35, 12288, v33
    s_lshl_b32 s31, s30, 15
    s_add_u32 s31, s31, 65536
    s_mul_i32 s57, s30, 28672
    s_waitcnt lgkmcnt(0)
    s_mul_i32 s29, s28, 86016
    s_add_u32 s32, s8, s29
    s_addc_u32 s33, s9, 0
    s_mov_b32 s34, 86016
    s_mov_b32 s35, 0x20000
    """)
    for cb in range(7):
        C(f"s_add_u32 m0, s31, {cb * 4096}")
        if cb:
            C(f"s_add_u32 s57, s57, 128")
        for rg in range(4):
            C(f"buffer_load_dwordx4 v{32 + rg}, s[32:35], s57 offen offset:{rg * 1024} {xpol} lds")
    C("""
    v_and_b32 v1, 31, v0
    v_lshrrev_b32 v2, 5, v0
    v_bfe_u32 v3, v0, 1, 3
    v_xor_b32 v3, v3, v2
    v_lshlrev_b32 v3, 4, v3
    v_lshl_add_u32 v3, v1, 7, v3
    v_add_u32 v36, s31, v3
    v_xor_b32 v37, 32, v36
    v_xor_b32 v38, 64, v36
    v_xor_b32 v39, 96, v36
    """)
    C("""
    v_and_b32 v3, 15, v0
    v_xor_b32 v3, v3, v2
    v_lshlrev_b32 v3, 4, v3
    v_lshl_add_u32 v12, v1, 9, v3
    """)
    for j in range(1, 8):
        C(f"v_xor_b32 v{12 + j}, {32 * j}, v12")
    C("""
    v_bfe_u32 v4, v0, 2, 2
    v_and_b32 v5, 3, v0
    v_bfe_u32 v6, v0, 4, 1
    v_lshlrev_b32 v6, 5, v6
    v_lshl_add_u32 v7, v5, 3, v6
    v_and_b32 v3, 1, v0
    v_lshlrev_b32 v3, 4, v3
    v_bfe_u32 v5, v0, 1, 1
    v_lshl_add_u32 v3, v5, 3, v3
    v_add_u32 v6, v6, v3
    """)
    C("""
    v_lshl_add_u32 v3, v2, 3, v4
    v_lshlrev_b32 v3, 9, v3
    v_lshl_add_u32 v3, v4, 6, v3
    v_add_u32 v8, v3, v6
    v_xor_b32 v9, 64, v8
    v_xor_b32 v10, 128, v8
    v_xor_b32 v11, 192, v8
    v_lshl_add_u32 v5, v2, 2, v4
    v_lshlrev_b32 v3, 8, v5
    v_lshl_add_u32 v3, v4, 6, v3
    v_add_u32 v20, v3, v7
    v_xor_b32 v21, 64, v20
    v_xor_b32 v22, 128, v20
    v_xor_b32 v23, 192, v20
    v_lshlrev_b32 v3, 7, v5
    v_lshrrev_b32 v4, 1, v4
    v_lshl_add_u32 v3, v4, 6, v3
    v_add_u32 v24, v3, v6
    v_xor_b32 v25, 64, v24
    v_lshlrev_b32 v30, 4, v0
    """)
    C(f"""
    s_lshl_b32 s29, s4, 3
    s_add_u32 s29, s29, s28
    s_lshl_b32 s29, s29, 4
    s_add_u32 s29, s29, s27
    s_mul_i32 s29, s29, 3
    s_add_u32 s29, s29, s30
    s_mul_i32 s29, s29, 28672
    s_add_u32 s52, s24, s29
    s_addc_u32 s53, s25, 0
    s_mov_b32 s54, 28672
    s_mov_b32 s55, 0x20000
    s_mov_b32 s56, {f32bits(math.log2(math.e) / 16.0):#x}
    """)
    XF = 112
    for cb in range(7):
        C(f"s_waitcnt vmcnt({24 - 4 * cb})")
        for i in range(4):
            s = 4 * cb + i
            C(f"ds_read_b128 a[{XF + 4 * s}:{XF + 4 * s + 3}], v{36 + i} offset:{cb * 4096}")
    C("s_waitcnt lgkmcnt(0)")

    M = []
    win = {"q": 0, "k": 0, "v": 0, "o": 0}
    aregs = {"q": range(8, 12), "k": range(12, 20), "v": range(20, 24), "o": range(24, 26)}

    def rng(p, a, n):
        return f"{p}[{a}:{a + n - 1}]"

    def add(tile, aset, rd, d, dk, b, first):
        M.append(dict(tile=tile, aset=aset, rd=rd, d=rng(dk, d, 16), b=b, first=first))

    def sreg(t):
        return ("v", 32 + 16 * t) if t < 14 else ("a", 64 + 16 * (t - 14))

    marks = {}
    for i in range(14):
        seq = [(ks, dt) for ks in range(2) for dt in range(8)] if i < 13 else [(ks, dt) for dt in range(8) for ks in range(2)]
        for ks, dt in seq:
            o = (dt >> 2) * 256 + ks * 8192
            add(("wq", i), "q", [("tr", 8 + (dt & 3), o), ("tr", 8 + (dt & 3), o + 2048)], 128 + 16 * dt, "v",
                rng("a", XF + 4 * (2 * i + ks), 4), i == 0 and ks == 0)
            marks[("q", dt)] = len(M) - 1
    for t in range(16):
        dk, d = sreg(t)
        for s in range(16):
            add(("k", t), "k", [("b128", 12 + (s & 7), (s >> 3) * 256)], d, dk, rng("a", 4 * s, 4), s == 0)
            marks[("s", t, s)] = len(M) - 1
    for h in range(2):
        for i in range(8):
            seq = [(ka, dt) for ka in range(4) for dt in range(4)] if i < 7 else [(ka, dt) for dt in range(4) for ka in range(4)]
            for ka, dt in seq:
                t = 2 * i + (ka >> 1)
                o = ka * 4096
                dk, d = ("a", 16 * dt) if h == 0 else ("v", 160 + 16 * dt)
                add((f"v{h}", i), "v", [("tr", 20 + dt, o), ("tr", 20 + dt, o + 2048)], d, dk,
                    rng("v", 32 + 8 * t + 4 * (ka & 1), 4), i == 0 and ka == 0)
                marks[("pv", h, i, ka)] = min(marks.get(("pv", h, i, ka), 1 << 30), len(M) - 1)
                marks[("o", h, dt)] = len(M) - 1
        for i in range(7):
            for nt in range(2):
                T = 2 * i + nt
                acc = 16 * ((T + 4) % 14)
                for ka in range(8):
                    o = ka * 2048
                    add((f"wo{h}", i), "o", [("tr", 24 + nt, o), ("tr", 24 + nt, o + 1024)], acc, "a",
                        rng("v", 224 + 4 * ka, 4), h == 0 and ka == 0)
                    marks[("op", h, T, ka)] = len(M) - 1
    N = len(M)
    assert N == 960

    F = []

    def fill(ready, dead, text, cost=4):
        F.append((ready, dead, cost, text))

    for dt in range(8):
        r = marks[("q", dt)] + 2
        for g in range(2):
            dl = marks[("s", 0, 2 * dt + g)]
            for j in range(4):
                a = 128 + 16 * dt + 8 * g + 2 * j
                fill(r, dl, f"v_cvt_pk_bf16_f32 v{a}, v{a}, v{a + 1}")
            for j in range(4):
                a = 128 + 16 * dt + 8 * g + 2 * j
                fill(r, dl, f"v_accvgpr_write_b32 a{4 * (2 * dt + g) + j}, v{a}")
    pv0 = marks[("pv", 0, 0, 0)]
    for t in range(16):
        r = marks[("s", t, 15)] + 2
        dk, d = sreg(t)
        for j in range(8):
            if dk == "v":
                x, y = f"v{d + 2 * j}", f"v{d + 2 * j + 1}"
            else:
                x, y = f"v{1 + (j & 1) * 2}", f"v{2 + (j & 1) * 2}"
                fill(r, pv0, f"v_accvgpr_read_b32 {x}, a{d + 2 * j}")
                fill(r, pv0, f"v_accvgpr_read_b32 {y}, a{d + 2 * j + 1}")
            if t == 0 and j == 0:
                fill(r, pv0, f"v_max_f32 v26, {x}, {y}")
            else:
                fill(r, pv0, f"v_max3_f32 v26, v26, {x}, {y}")
    r = marks[("s", 15, 15)] + 2
    for txt in ["v_mov_b32 v27, v26", "v_permlane32_swap_b32 v26, v27", "v_max_f32 v26, v26, v27",
                "v_mul_f32 v26, s56, v26"]:
        fill(r, pv0, txt)
    for t in range(16):
        dk, d = sreg(t)
        for g in range(2):
            i, ka = t >> 1, (t & 1) * 2 + g
            dl = pv0 if i == 0 else marks[("pv", 0, i - 1, 0)] + 3 * (ka + 1)
            tmp = [1, 2, 3, 4, 5, 6, 7, 31]
            src = []
            for j in range(8):
                if dk == "v":
                    src.append(d + 8 * g + j)
                else:
                    src.append(tmp[j])
                    fill(r, dl, f"v_accvgpr_read_b32 v{tmp[j]}, a{d + 8 * g + j}")
            for j in range(8):
                fill(r, dl, f"v_fma_f32 v{src[j]}, v{src[j]}, s56, -v26")
                if j:
                    fill(r, dl, f"v_exp_f32 v{src[j - 1]}, v{src[j - 1]}", 8)
            fill(r, dl, f"v_exp_f32 v{src[7]}, v{src[7]}", 8)
            for j in range(8):
                acc = 27 + (j & 1)
                if t == 0 and g == 0 and j < 2:
                    fill(r, dl, f"v_mov_b32 v{acc}, v{src[j]}")
                else:
                    fill(r, dl, f"v_add_f32 v{acc}, v{acc}, v{src[j]}")
            for j in range(4):
                fill(r, dl, f"v_cvt_pk_bf16_f32 v{32 + 8 * t + 4 * g + j}, v{src[2 * j]}, v{src[2 * j + 1]}")
    op0 = marks[("op", 0, 0, 0)]
    for txt, c in [("v_add_f32 v27, v27, v28", 4), ("v_mov_b32 v28, v27", 4), ("v_permlane32_swap_b32 v27, v28", 4),
                   ("v_add_f32 v27, v27, v28", 4), ("v_rcp_f32 v29, v27", 8)]:
        fill(r, op0, txt, c)
    for h in range(2):
        for dt in range(4):
            r = marks[("o", h, dt)] + 2
            for g in range(2):
                dl = marks[("op", h, 0, 2 * dt + g)]
                for j in range(8):
                    e = 16 * dt + 8 * g + j
                    if h == 0:
                        fill(r, dl, f"v_accvgpr_read_b32 v{160 + e}, a{e}")
                for j in range(8):
                    e = 160 + 16 * dt + 8 * g + j
                    fill(r, dl, f"v_mul_f32 v{e}, v29, v{e}")
                for j in range(4):
                    e = 160 + 16 * dt + 8 * g + 2 * j
                    fill(r, dl, f"v_cvt_pk_bf16_f32 v{224 + 4 * (2 * dt + g) + j}, v{e}, v{e + 1}")
    for T in range(14):
        r = marks[("op", 1, T, 7)] + 2
        acc = 16 * ((T + 4) % 14)
        tb = 32 + 32 * (T % 4)
        for g in range(2):
            for j in range(8):
                fill(r, N, f"v_accvgpr_read_b32 v{tb + 8 * g + j}, a{acc + 8 * g + j}")
            for j in range(4):
                fill(r, N, f"v_cvt_pk_bf16_f32 v{tb + 16 + 4 * g + j}, v{tb + 8 * g + 2 * j}, v{tb + 8 * g + 2 * j + 1}")
            tg = 2 * T + g
            if tg % 4 == 0:
                fill(r, N, f"s_mov_b32 s58, {tg * 1024}")
            fill(r, N, f"buffer_store_dwordx4 v[{tb + 16 + 4 * g}:{tb + 19 + 4 * g}], v30, s[52:55], s58 offen offset:{(tg % 4) * 1024} {stpol}", 8)

    nbar = [0]
    rd_ptr = 0
    fp = 0

    def emit_reads(j):
        m = M[j]
        cost = 0
        if j == 0 or M[j - 1]["tile"] != m["tile"]:
            assert CONS[nbar[0]] == m["tile"]
            C("s_barrier")
            nbar[0] += 1
            w = (slot[m["tile"]] // 4) * 65536
            a = m["aset"]
            if w != win[a]:
                for rg in aregs[a]:
                    if w > win[a]:
                        C(f"v_add_u32 v{rg}, {w - win[a]:#x}, v{rg}")
                    else:
                        C(f"v_subrev_u32 v{rg}, {win[a] - w:#x}, v{rg}")
                    cost += 4
                win[a] = w
        base = (slot[m["tile"]] % 4) * 16384
        ring = 224 + 4 * (j % 8)
        for n, (kind, ar, o) in enumerate(m["rd"]):
            if kind == "tr":
                C(f"ds_read_b64_tr_b16 a[{ring + 2 * n}:{ring + 2 * n + 1}], v{ar} offset:{base + o}")
            else:
                C(f"ds_read_b128 a[{ring}:{ring + 3}], v{ar} offset:{base + o}")
            cost += 4
        return cost

    def seg_start(j):
        return (j == 0 or M[j - 1]["tile"] != M[j]["tile"]) and M[j]["tile"] in HARD

    for i in range(N):
        m = M[i]
        if seg_start(i):
            while fp < len(F) and any(f[1] <= i for f in F[fp:fp + 400]):
                assert F[fp][0] - 2 < i
                C(F[fp][3]); fp += 1
            assert rd_ptr == i
            while rd_ptr < min(N, i + PD):
                emit_reads(rd_ptr); rd_ptr += 1
        while fp < len(F) and any(f[1] <= i for f in F[fp:fp + 400]):
            assert F[fp][0] - 2 < i
            C(F[fp][3]); fp += 1
        ring = 224 + 4 * (i % 8)
        c = "0" if m["first"] else m["d"]
        C(f"{MF} {m['d']}, a[{ring}:{ring + 3}], {m['b']}, {c}")
        budget = 24
        if rd_ptr < N and rd_ptr <= i + PD and not seg_start(rd_ptr):
            budget -= emit_reads(rd_ptr); rd_ptr += 1
        budget -= 4
        while fp < len(F) and F[fp][0] <= i and budget >= F[fp][2]:
            budget -= F[fp][2]
            C(F[fp][3]); fp += 1
    while fp < len(F):
        C(F[fp][3]); fp += 1
    assert nbar[0] == len(CONS)
    if prof:
        C(f"""
        s_waitcnt vmcnt(0)
        s_memtime s[60:61]
        s_waitcnt lgkmcnt(0)
        s_lshl_b32 s29, s2, 10
        s_lshl_b32 s31, s30, 2
        s_add_u32 s29, s29, s31
        s_add_u32 s29, s29, {PROF_OFF + 512}
        s_add_u32 s52, s24, s29
        s_addc_u32 s53, s25, 0
        s_mov_b32 s54, 4
        v_mov_b32 v1, s60
        v_lshlrev_b32 v2, 2, v0
        buffer_store_dword v1, v2, s[52:55], 0 offen
        """)
    C("s_endpgm")

    Ld = Stream()
    Ld("L_loader:")
    if prof:
        Ld("s_memtime s[62:63]")
    Ld("""
    v_lshrrev_b32 v1, 5, v0
    v_and_b32 v2, 31, v0
    v_lshrrev_b32 v3, 2, v2
    v_xor_b32 v3, v3, v1
    v_and_b32 v4, 3, v0
    v_lshlrev_b32 v4, 4, v4
    v_lshl_add_u32 v3, v3, 6, v4
    v_lshl_add_u32 v8, v1, 13, v3
    v_xor_b32 v9, 128, v8
    v_add_u32 v9, 15360, v9
    v_add_u32 v10, 30720, v8
    v_add_u32 v11, 30720, v9
    s_waitcnt lgkmcnt(0)
    s_lshl_b32 s29, s27, 9
    s_add_u32 s44, s14, s29
    s_addc_u32 s45, s15, 0
    s_sub_u32 s46, 3670016, s29
    s_mov_b32 s47, 0x20000
    """)
    setup2 = """
    v_xor_b32 v3, v2, v1
    v_lshlrev_b32 v3, 4, v3
    v_lshl_add_u32 v12, v1, 9, v3
    """ + "\n".join(f"v_xor_b32 v{12 + j}, {32 * j}, v12" for j in range(1, 8)) + """
    v_lshrrev_b32 v1, 4, v0
    v_bfe_u32 v3, v0, 2, 2
    v_xor_b32 v3, v3, v1
    v_lshl_add_u32 v3, v3, 6, v4
    v_lshl_add_u32 v20, v1, 9, v3
    v_add_u32 v21, 1024, v20
    v_add_u32 v22, 2048, v20
    v_add_u32 v23, 3072, v20
    v_lshrrev_b32 v2, 3, v0
    v_mul_u32_u24 v2, 896, v2
    v_bfe_u32 v3, v0, 2, 1
    v_and_b32 v1, 1, v1
    v_xor_b32 v3, v3, v1
    v_lshl_add_u32 v3, v3, 6, v4
    v_add_u32 v24, v2, v3
    v_add_u32 v25, 6144, v24
    v_add_u32 v26, 12288, v24
    v_add_u32 v27, 18432, v24
    s_lshl_b32 s29, s28, 4
    s_add_u32 s29, s29, s27
    s_lshl_b32 s29, s29, 18
    s_add_u32 s36, s10, s29
    s_addc_u32 s37, s11, 0
    s_mov_b32 s38, 262144
    s_mov_b32 s39, 0x20000
    s_add_u32 s40, s12, s29
    s_addc_u32 s41, s13, 0
    s_mov_b32 s42, 262144
    s_mov_b32 s43, 0x20000
    s_mul_i32 s29, s27, 229376
    s_add_u32 s48, s16, s29
    s_addc_u32 s49, s17, 0
    s_mov_b32 s50, 229376
    s_mov_b32 s51, 0x20000
    """

    def issue(t, q):
        kind, i = t
        Ld(f"s_mov_b32 m0, {slot[t] * 16384 + q * 4096}")
        if kind == "wq":
            so, srd, vb, pol = i * 262144 + q * 65536, 44, 8, wpol
        elif kind == "k":
            so, srd, vb, pol = i * 16384 + q * 4096, 36, 12 + 4 * (q & 1), kvpol
        elif kind[0] == "v":
            so, srd, vb, pol = int(kind[1]) * 256 + i * 32768 + q * 8192, 40, 20, kvpol
        else:
            so, srd, vb, pol = (int(kind[2]) * 128 + q * 32) * 896 + i * 128, 48, 24, wpol
        Ld(f"s_mov_b32 s31, {so}")
        for p in range(4):
            Ld(f"buffer_load_dwordx4 v{vb + p}, s[{srd}:{srd + 3}], s31 offen offset:{p * 1024} {pol} lds")

    def stamp(idx):
        if prof:
            Ld(f"s_memtime s[60:61]\ns_waitcnt lgkmcnt(0)\nv_writelane_b32 v{40 + idx // 64}, s60, {idx % 64}")

    for b, (lst, wait) in enumerate(steps):
        for t, q in lst:
            if b == 0:
                assert t[0] == "wq"
            issue(t, q)
        if b == 0:
            Ld(setup2)
        if wait is not None:
            Ld(f"s_waitcnt vmcnt({wait})")
        stamp(2 * b)
        Ld("s_barrier")
        stamp(2 * b + 1)
    if prof:
        Ld(f"""
        v_writelane_b32 v41, s62, 63
        s_lshl_b32 s29, s2, 10
        s_add_u32 s29, s29, {PROF_OFF}
        s_add_u32 s52, s24, s29
        s_addc_u32 s53, s25, 0
        s_mov_b32 s54, 512
        s_mov_b32 s55, 0x20000
        v_lshlrev_b32 v2, 2, v0
        buffer_store_dword v40, v2, s[52:55], 0 offen
        buffer_store_dword v41, v2, s[52:55], 0 offen offset:256
        """)
    Ld("L_done:")
    Ld("s_endpgm")

    R = Stream()
    R(f"""
    s_cmp_ge_u32 s2, 336
    s_cbranch_scc1 L_rdone
    s_load_dwordx2 s[8:9], s[0:1], 80
    s_load_dwordx2 s[10:11], s[0:1], 96
    v_lshrrev_b32 v1, 6, v0
    v_and_b32 v0, 63, v0
    v_readfirstlane_b32 s30, v1
    s_mul_i32 s3, s2, 3121
    s_lshr_b32 s3, s3, 16
    s_mul_i32 s4, s3, 21
    s_sub_u32 s4, s2, s4
    s_lshl_b32 s4, s4, 2
    s_add_u32 s4, s4, s30
    v_lshlrev_b32 v2, 4, v0
    s_mul_i32 s5, s3, 1376256
    s_lshl_b32 s6, s4, 10
    s_waitcnt lgkmcnt(0)
    s_add_u32 s12, s10, s5
    s_addc_u32 s13, s11, 0
    s_mov_b32 s14, 1376256
    s_mov_b32 s15, 0x20000
    """)
    for h in range(16):
        R(f"buffer_load_dwordx4 v[{16 + 4 * h}:{19 + 4 * h}], v2, s[12:15], s6 offen {rdpol}")
        if h < 15:
            R("s_add_u32 s6, s6, 86016")
    R("""
    s_mov_b32 s16, s8
    s_mov_b32 s17, s9
    s_mov_b32 s18, 1376256
    s_mov_b32 s19, 0x20000
    s_cmp_ge_u32 s4, 28
    s_cselect_b32 s20, 1, 0
    s_cmp_ge_u32 s4, 56
    s_cselect_b32 s20, 2, s20
    s_mul_i32 s21, s20, 28
    s_sub_u32 s21, s4, s21
    s_and_b32 s22, s3, 7
    s_mul_i32 s22, s22, 3
    s_add_u32 s22, s22, s20
    s_mul_i32 s22, s22, 57344
    s_lshr_b32 s23, s3, 3
    s_mul_i32 s23, s23, 896
    s_add_u32 s22, s22, s23
    s_lshl_b32 s21, s21, 5
    s_add_u32 s22, s22, s21
    v_and_b32 v3, 31, v0
    v_mul_u32_u24 v3, 1792, v3
    v_lshrrev_b32 v4, 5, v0
    v_lshl_add_u32 v3, v4, 4, v3
    """)
    for h in range(16):
        R(f"s_waitcnt vmcnt({15 - h})")
        for j in range(4):
            x = 16 + 4 * h + j
            if h == 0:
                R(f"v_lshlrev_b32 v{8 + 2 * j}, 16, v{x}")
                R(f"v_and_b32 v{9 + 2 * j}, 0xffff0000, v{x}")
            else:
                R(f"v_lshlrev_b32 v5, 16, v{x}")
                R(f"v_and_b32 v6, 0xffff0000, v{x}")
                R(f"v_add_f32 v{8 + 2 * j}, v{8 + 2 * j}, v5")
                R(f"v_add_f32 v{9 + 2 * j}, v{9 + 2 * j}, v6")
    for j in range(4):
        R(f"v_cvt_pk_bf16_f32 v{4 + j}, v{8 + 2 * j}, v{9 + 2 * j}")
    R("buffer_store_dwordx4 v[4:7], v3, s[16:19], s22 offen")
    R("L_rdone:")
    R("s_endpgm")

    body = P.finish() + C.finish() + Ld.finish()
    if verbose:
        print("consumer nops", C.nops, "instructions", len(C.ins))
    T = H + ["    " + l if not l.endswith(":") else l for l in body]
    T += [f".globl {K2}", ".p2align 8", f".type {K2},@function", f"{K2}:"]
    T += ["    " + l if not l.endswith(":") else l for l in R.finish()]
    ks = [(K1, 512, 256), (K2, 80, 80)]
    if noop:
        T += [".globl noop_kernel", ".p2align 8", ".type noop_kernel,@function", "noop_kernel:", "    s_endpgm"]
        ks.append(("noop_kernel", 8, 8))
    if cpf:
        T += [".fill 3200, 4, 0xbf800000"]
    T += ['.section .rodata,"a"']
    for k, nv, ao in ks:
        T += [".p2align 6", f".amdhsa_kernel {k}", f"  .amdhsa_next_free_vgpr {nv}", "  .amdhsa_next_free_sgpr 102",
              f"  .amdhsa_accum_offset {ao}", "  .amdhsa_group_segment_fixed_size 0", "  .amdhsa_kernarg_size 104",
              "  .amdhsa_user_sgpr_count 2", "  .amdhsa_user_sgpr_kernarg_segment_ptr 1",
              "  .amdhsa_system_sgpr_workgroup_id_x 1", ".end_amdhsa_kernel"]
    return "\n".join(T) + "\n"


if __name__ == "__main__":
    out = sys.argv[1] if len(sys.argv) > 1 else f"cdna_kernels/{NAME}.s"
    kw = {}
    for a in sys.argv[2:]:
        k, v = a.split("=")
        kw[k] = eval(v) if v and (v[0].isdigit() or v in ("True", "False")) else v
    open(out, "w").write(gen(verbose=True, **kw))
```

```python
import sys, math, struct
sys.path.insert(0, "dev")
from asmlib import Stream

NAME = "concat_heads__mha_block_cached__gqa_block_cached__near_ridge"
MF = "v_mfma_f32_32x32x16_bf16"
NSLOT = 10
PROF_OFF = 0x4000000


def f32bits(x):
    return struct.unpack("<I", struct.pack("<f", x))[0]


def merge(a, b):
    out = []
    ia = ib = 0
    while ia < len(a) or ib < len(b):
        if ib >= len(b) or (ia < len(a) and ia * len(b) <= ib * len(a)):
            out.append(a[ia]); ia += 1
        else:
            out.append(b[ib]); ib += 1
    return out


def quarters(tiles):
    return [(t, q) for t in tiles for q in range(4)]


CONS = ([("wq", i) for i in range(14)] + [("k", i) for i in range(16)] + [("v0", i) for i in range(8)] +
        [("wo0", i) for i in range(7)] + [("v1", i) for i in range(8)] + [("wo1", i) for i in range(7)])
HARD = {("wq", 0), ("v0", 0), ("wo0", 0), ("wo1", 0)}


def load_order(kp=6):
    wq = [("wq", i) for i in range(14)]
    k = [("k", i) for i in range(16)]
    v0 = [("v0", i) for i in range(8)]
    v1 = [("v1", i) for i in range(8)]
    o0 = [("wo0", i) for i in range(7)]
    o1 = [("wo1", i) for i in range(7)]
    L = quarters(wq[:4]) + merge(quarters(wq[4:]), quarters(k[:kp])) + quarters(k[kp:])
    L += quarters(v0[:4]) + merge(quarters(v0[4:]), quarters(o0[:4]))
    L += merge(quarters(o0[4:]), quarters(v1[:3])) + quarters(v1[3:5])
    L += merge(quarters(o1[:5]), quarters(v1[5:])) + quarters(o1[5:])
    return L


def plan_loader(order, cap=60, stepmax=28):
    cidx = {t: i for i, t in enumerate(CONS)}
    slot = {}
    holder = {s: None for s in range(NSLOT)}
    for s in range(4, 10):
        holder[s] = "x"
    steps = []
    pos = 0
    issued = 0
    landed = 0
    endidx = {}
    cnt = {}
    for b in range(-1, len(CONS) - 1):
        if b >= 0:
            upto = b - 1 if CONS[b] in HARD else b - 2
            for s in holder:
                h = holder[s]
                if h == "x" or (h is not None and cidx[h] <= upto):
                    holder[s] = None
        nxt = CONS[b + 1]
        lst = []
        n = 0
        while pos < len(order):
            t, q = order[pos]
            forced = cnt.get(nxt, 0) < 4
            if not forced and (issued + 4 - landed > cap or (n + 4 > stepmax and b >= 0)):
                break
            if t not in slot:
                free = [s for s in holder if holder[s] is None]
                if not free:
                    assert not forced, ("deadlock", b, t, nxt)
                    break
                slot[t] = free[0]
                holder[free[0]] = t
            lst.append((t, q))
            issued += 4; n += 4
            cnt[t] = cnt.get(t, 0) + 1
            if cnt[t] == 4:
                endidx[t] = issued
            pos += 1
        w = issued - endidx[nxt]
        wait = None
        if endidx[nxt] > landed:
            wait = min(w, 63)
            landed = endidx[nxt]
        steps.append((lst, wait))
    assert pos == len(order)
    return slot, steps


def gen(kvpol="nt", wpol="nt", xpol="nt", stpol="sc1", rdpol="sc1", PD=4, prof=False, kp=6, cap=60, stepmax=28,
        order=None, verbose=False, noop=0, cpf=0, span=False):
    order = order or load_order(kp)
    slot, steps = plan_loader(order, cap, stepmax)
    if verbose:
        for b, (lst, w) in enumerate(steps):
            print(b - 1, CONS[b], "slot", slot[CONS[b]], "wait", w, " ".join(f"{t[0]}{t[1]}.{q}" for t, q in lst))
    K1 = NAME + "_kernel"
    K2 = "reduce_kernel"
    H = []
    H.append(f"; @launch kernel={K1} grid=(256,1,1) block=(256,1,1) lds=163840")
    H.append(f"; @launch kernel={K2} grid=(336,1,1) block=(256,1,1) lds=0")
    for _ in range(noop):
        H.append(f"; @launch kernel=noop_kernel grid=(1,1,1) block=(64,1,1) lds=0")
    H.append('.amdgcn_target "amdgcn-amd-amdhsa--gfx950"')
    H += [".text", f".globl {K1}", ".p2align 8", f".type {K1},@function", f"{K1}:"]

    P = Stream()
    P("""
    s_cmp_ge_u32 s2, 256
    s_cbranch_scc1 L_done
    s_and_b32 s3, s2, 7
    s_lshr_b32 s4, s3, 2
    s_mul_i32 s5, s4, 40
    s_add_u32 s6, s0, s5
    s_addc_u32 s7, s1, 0
    s_load_dwordx8 s[8:15], s[6:7], 0
    s_load_dwordx2 s[16:17], s[6:7], 32
    s_load_dwordx2 s[24:25], s[0:1], 96
    """)
    if span:
        P("s_memrealtime s[64:65]\ns_memtime s[66:67]\ns_load_dwordx2 s[68:69], s[0:1], 88")
    P("""
    s_lshr_b32 s26, s2, 3
    s_and_b32 s27, s3, 3
    s_lshl_b32 s27, s27, 2
    s_and_b32 s28, s26, 3
    s_add_u32 s27, s27, s28
    s_lshr_b32 s28, s26, 2
    v_lshrrev_b32 v1, 6, v0
    v_and_b32 v0, 63, v0
    v_readfirstlane_b32 s30, v1
    """)
    if cpf:
        P(f"""
        s_getpc_b64 s[20:21]
        v_lshlrev_b32 v2, 7, v0
        v_lshl_add_u32 v2, v1, 13, v2
        """)
        for j in range(cpf):
            P(f"global_load_dword v{44 + j}, v2, s[20:21]")
            if j + 1 < cpf:
                P("v_add_u32 v2, 0x8000, v2")
    P("""
    s_cmp_eq_u32 s30, 3
    s_cbranch_scc1 L_loader
    """)

    C = Stream()
    C("""
    v_lshrrev_b32 v1, 3, v0
    v_mul_u32_u24 v1, 896, v1
    v_and_b32 v2, 7, v0
    v_lshrrev_b32 v3, 4, v0
    v_xor_b32 v2, v2, v3
    v_lshl_add_u32 v32, v2, 4, v1
    v_xor_b32 v33, 64, v32
    v_add_u32 v33, 6144, v33
    v_add_u32 v34, 12288, v32
    v_add_u32 v35, 12288, v33
    s_lshl_b32 s31, s30, 15
    s_add_u32 s31, s31, 65536
    s_mul_i32 s57, s30, 28672
    s_waitcnt lgkmcnt(0)
    s_mul_i32 s29, s28, 86016
    s_add_u32 s32, s8, s29
    s_addc_u32 s33, s9, 0
    s_mov_b32 s34, 86016
    s_mov_b32 s35, 0x20000
    """)
    for cb in range(7):
        C(f"s_add_u32 m0, s31, {cb * 4096}")
        if cb:
            C(f"s_add_u32 s57, s57, 128")
        for rg in range(4):
            C(f"buffer_load_dwordx4 v{32 + rg}, s[32:35], s57 offen offset:{rg * 1024} {xpol} lds")
    C("""
    v_and_b32 v1, 31, v0
    v_lshrrev_b32 v2, 5, v0
    v_bfe_u32 v3, v0, 1, 3
    v_xor_b32 v3, v3, v2
    v_lshlrev_b32 v3, 4, v3
    v_lshl_add_u32 v3, v1, 7, v3
    v_add_u32 v36, s31, v3
    v_xor_b32 v37, 32, v36
    v_xor_b32 v38, 64, v36
    v_xor_b32 v39, 96, v36
    """)
    C("""
    v_and_b32 v3, 15, v0
    v_xor_b32 v3, v3, v2
    v_lshlrev_b32 v3, 4, v3
    v_lshl_add_u32 v12, v1, 9, v3
    """)
    for j in range(1, 8):
        C(f"v_xor_b32 v{12 + j}, {32 * j}, v12")
    C("""
    v_bfe_u32 v4, v0, 2, 2
    v_and_b32 v5, 3, v0
    v_bfe_u32 v6, v0, 4, 1
    v_lshlrev_b32 v6, 5, v6
    v_lshl_add_u32 v7, v5, 3, v6
    v_and_b32 v3, 1, v0
    v_lshlrev_b32 v3, 4, v3
    v_bfe_u32 v5, v0, 1, 1
    v_lshl_add_u32 v3, v5, 3, v3
    v_add_u32 v6, v6, v3
    """)
    C("""
    v_lshl_add_u32 v3, v2, 3, v4
    v_lshlrev_b32 v3, 9, v3
    v_lshl_add_u32 v3, v4, 6, v3
    v_add_u32 v8, v3, v6
    v_xor_b32 v9, 64, v8
    v_xor_b32 v10, 128, v8
    v_xor_b32 v11, 192, v8
    v_lshl_add_u32 v5, v2, 2, v4
    v_lshlrev_b32 v3, 8, v5
    v_lshl_add_u32 v3, v4, 6, v3
    v_add_u32 v20, v3, v7
    v_xor_b32 v21, 64, v20
    v_xor_b32 v22, 128, v20
    v_xor_b32 v23, 192, v20
    v_lshlrev_b32 v3, 7, v5
    v_lshrrev_b32 v4, 1, v4
    v_lshl_add_u32 v3, v4, 6, v3
    v_add_u32 v24, v3, v6
    v_xor_b32 v25, 64, v24
    v_lshlrev_b32 v30, 4, v0
    """)
    C(f"""
    s_lshl_b32 s29, s4, 3
    s_add_u32 s29, s29, s28
    s_lshl_b32 s29, s29, 4
    s_add_u32 s29, s29, s27
    s_mul_i32 s29, s29, 3
    s_add_u32 s29, s29, s30
    s_mul_i32 s29, s29, 28672
    s_add_u32 s52, s24, s29
    s_addc_u32 s53, s25, 0
    s_mov_b32 s54, 28672
    s_mov_b32 s55, 0x20000
    s_mov_b32 s56, {f32bits(math.log2(math.e) / 16.0):#x}
    """)
    XF = 112
    for cb in range(7):
        C(f"s_waitcnt vmcnt({24 - 4 * cb})")
        for i in range(4):
            s = 4 * cb + i
            C(f"ds_read_b128 a[{XF + 4 * s}:{XF + 4 * s + 3}], v{36 + i} offset:{cb * 4096}")
    C("s_waitcnt lgkmcnt(0)")

    M = []
    win = {"q": 0, "k": 0, "v": 0, "o": 0}
    aregs = {"q": range(8, 12), "k": range(12, 20), "v": range(20, 24), "o": range(24, 26)}

    def rng(p, a, n):
        return f"{p}[{a}:{a + n - 1}]"

    def add(tile, aset, rd, d, dk, b, first):
        M.append(dict(tile=tile, aset=aset, rd=rd, d=rng(dk, d, 16), b=b, first=first))

    def sreg(t):
        return ("v", 32 + 16 * t) if t < 14 else ("a", 64 + 16 * (t - 14))

    marks = {}
    for i in range(14):
        seq = [(ks, dt) for ks in range(2) for dt in range(8)] if i < 13 else [(ks, dt) for dt in range(8) for ks in range(2)]
        for ks, dt in seq:
            o = (dt >> 2) * 256 + ks * 8192
            add(("wq", i), "q", [("tr", 8 + (dt & 3), o), ("tr", 8 + (dt & 3), o + 2048)], 128 + 16 * dt, "v",
                rng("a", XF + 4 * (2 * i + ks), 4), i == 0 and ks == 0)
            marks[("q", dt)] = len(M) - 1
    for t in range(16):
        dk, d = sreg(t)
        for s in range(16):
            add(("k", t), "k", [("b128", 12 + (s & 7), (s >> 3) * 256)], d, dk, rng("a", 4 * s, 4), s == 0)
            marks[("s", t, s)] = len(M) - 1
    for h in range(2):
        for i in range(8):
            seq = [(ka, dt) for ka in range(4) for dt in range(4)] if i < 7 else [(ka, dt) for dt in range(4) for ka in range(4)]
            for ka, dt in seq:
                t = 2 * i + (ka >> 1)
                o = ka * 4096
                dk, d = ("a", 16 * dt) if h == 0 else ("v", 160 + 16 * dt)
                add((f"v{h}", i), "v", [("tr", 20 + dt, o), ("tr", 20 + dt, o + 2048)], d, dk,
                    rng("v", 32 + 8 * t + 4 * (ka & 1), 4), i == 0 and ka == 0)
                marks[("pv", h, i, ka)] = min(marks.get(("pv", h, i, ka), 1 << 30), len(M) - 1)
                marks[("o", h, dt)] = len(M) - 1
        for i in range(7):
            for nt in range(2):
                T = 2 * i + nt
                acc = 16 * ((T + 4) % 14)
                for ka in range(8):
                    o = ka * 2048
                    add((f"wo{h}", i), "o", [("tr", 24 + nt, o), ("tr", 24 + nt, o + 1024)], acc, "a",
                        rng("v", 224 + 4 * ka, 4), h == 0 and ka == 0)
                    marks[("op", h, T, ka)] = len(M) - 1
    N = len(M)
    assert N == 960

    F = []

    def fill(ready, dead, text, cost=4):
        F.append((ready, dead, cost, text))

    for dt in range(8):
        r = marks[("q", dt)] + 2
        for g in range(2):
            dl = marks[("s", 0, 2 * dt + g)]
            for j in range(4):
                a = 128 + 16 * dt + 8 * g + 2 * j
                fill(r, dl, f"v_cvt_pk_bf16_f32 v{a}, v{a}, v{a + 1}")
            for j in range(4):
                a = 128 + 16 * dt + 8 * g + 2 * j
                fill(r, dl, f"v_accvgpr_write_b32 a{4 * (2 * dt + g) + j}, v{a}")
    pv0 = marks[("pv", 0, 0, 0)]
    for t in range(16):
        r = marks[("s", t, 15)] + 2
        dk, d = sreg(t)
        for j in range(8):
            if dk == "v":
                x, y = f"v{d + 2 * j}", f"v{d + 2 * j + 1}"
            else:
                x, y = f"v{1 + (j & 1) * 2}", f"v{2 + (j & 1) * 2}"
                fill(r, pv0, f"v_accvgpr_read_b32 {x}, a{d + 2 * j}")
                fill(r, pv0, f"v_accvgpr_read_b32 {y}, a{d + 2 * j + 1}")
            if t == 0 and j == 0:
                fill(r, pv0, f"v_max_f32 v26, {x}, {y}")
            else:
                fill(r, pv0, f"v_max3_f32 v26, v26, {x}, {y}")
    r = marks[("s", 15, 15)] + 2
    for txt in ["v_mov_b32 v27, v26", "v_permlane32_swap_b32 v26, v27", "v_max_f32 v26, v26, v27",
                "v_mul_f32 v26, s56, v26"]:
        fill(r, pv0, txt)
    for t in range(16):
        dk, d = sreg(t)
        for g in range(2):
            i, ka = t >> 1, (t & 1) * 2 + g
            dl = pv0 if i == 0 else marks[("pv", 0, i - 1, 0)] + 3 * (ka + 1)
            tmp = [1, 2, 3, 4, 5, 6, 7, 31]
            src = []
            for j in range(8):
                if dk == "v":
                    src.append(d + 8 * g + j)
                else:
                    src.append(tmp[j])
                    fill(r, dl, f"v_accvgpr_read_b32 v{tmp[j]}, a{d + 8 * g + j}")
            for j in range(8):
                fill(r, dl, f"v_fma_f32 v{src[j]}, v{src[j]}, s56, -v26")
                if j:
                    fill(r, dl, f"v_exp_f32 v{src[j - 1]}, v{src[j - 1]}", 8)
            fill(r, dl, f"v_exp_f32 v{src[7]}, v{src[7]}", 8)
            for j in range(8):
                acc = 27 + (j & 1)
                if t == 0 and g == 0 and j < 2:
                    fill(r, dl, f"v_mov_b32 v{acc}, v{src[j]}")
                else:
                    fill(r, dl, f"v_add_f32 v{acc}, v{acc}, v{src[j]}")
            for j in range(4):
                fill(r, dl, f"v_cvt_pk_bf16_f32 v{32 + 8 * t + 4 * g + j}, v{src[2 * j]}, v{src[2 * j + 1]}")
    op0 = marks[("op", 0, 0, 0)]
    for txt, c in [("v_add_f32 v27, v27, v28", 4), ("v_mov_b32 v28, v27", 4), ("v_permlane32_swap_b32 v27, v28", 4),
                   ("v_add_f32 v27, v27, v28", 4), ("v_rcp_f32 v29, v27", 8)]:
        fill(r, op0, txt, c)
    for h in range(2):
        for dt in range(4):
            r = marks[("o", h, dt)] + 2
            for g in range(2):
                dl = marks[("op", h, 0, 2 * dt + g)]
                for j in range(8):
                    e = 16 * dt + 8 * g + j
                    if h == 0:
                        fill(r, dl, f"v_accvgpr_read_b32 v{160 + e}, a{e}")
                for j in range(8):
                    e = 160 + 16 * dt + 8 * g + j
                    fill(r, dl, f"v_mul_f32 v{e}, v29, v{e}")
                for j in range(4):
                    e = 160 + 16 * dt + 8 * g + 2 * j
                    fill(r, dl, f"v_cvt_pk_bf16_f32 v{224 + 4 * (2 * dt + g) + j}, v{e}, v{e + 1}")
    for T in range(14):
        r = marks[("op", 1, T, 7)] + 2
        acc = 16 * ((T + 4) % 14)
        tb = 32 + 32 * (T % 4)
        for g in range(2):
            for j in range(8):
                fill(r, N, f"v_accvgpr_read_b32 v{tb + 8 * g + j}, a{acc + 8 * g + j}")
            for j in range(4):
                fill(r, N, f"v_cvt_pk_bf16_f32 v{tb + 16 + 4 * g + j}, v{tb + 8 * g + 2 * j}, v{tb + 8 * g + 2 * j + 1}")
            tg = 2 * T + g
            if tg % 4 == 0:
                fill(r, N, f"s_mov_b32 s58, {tg * 1024}")
            fill(r, N, f"buffer_store_dwordx4 v[{tb + 16 + 4 * g}:{tb + 19 + 4 * g}], v30, s[52:55], s58 offen offset:{(tg % 4) * 1024} {stpol}", 8)

    nbar = [0]
    rd_ptr = 0
    fp = 0

    def emit_reads(j):
        m = M[j]
        cost = 0
        if j == 0 or M[j - 1]["tile"] != m["tile"]:
            assert CONS[nbar[0]] == m["tile"]
            C("s_barrier")
            nbar[0] += 1
            w = (slot[m["tile"]] // 4) * 65536
            a = m["aset"]
            if w != win[a]:
                for rg in aregs[a]:
                    if w > win[a]:
                        C(f"v_add_u32 v{rg}, {w - win[a]:#x}, v{rg}")
                    else:
                        C(f"v_subrev_u32 v{rg}, {win[a] - w:#x}, v{rg}")
                    cost += 4
                win[a] = w
        base = (slot[m["tile"]] % 4) * 16384
        ring = 224 + 4 * (j % 8)
        for n, (kind, ar, o) in enumerate(m["rd"]):
            if kind == "tr":
                C(f"ds_read_b64_tr_b16 a[{ring + 2 * n}:{ring + 2 * n + 1}], v{ar} offset:{base + o}")
            else:
                C(f"ds_read_b128 a[{ring}:{ring + 3}], v{ar} offset:{base + o}")
            cost += 4
        return cost

    def seg_start(j):
        return (j == 0 or M[j - 1]["tile"] != M[j]["tile"]) and M[j]["tile"] in HARD

    for i in range(N):
        m = M[i]
        if seg_start(i):
            while fp < len(F) and any(f[1] <= i for f in F[fp:fp + 400]):
                assert F[fp][0] - 2 < i
                C(F[fp][3]); fp += 1
            assert rd_ptr == i
            while rd_ptr < min(N, i + PD):
                emit_reads(rd_ptr); rd_ptr += 1
        while fp < len(F) and any(f[1] <= i for f in F[fp:fp + 400]):
            assert F[fp][0] - 2 < i
            C(F[fp][3]); fp += 1
        ring = 224 + 4 * (i % 8)
        c = "0" if m["first"] else m["d"]
        C(f"{MF} {m['d']}, a[{ring}:{ring + 3}], {m['b']}, {c}")
        budget = 24
        if rd_ptr < N and rd_ptr <= i + PD and not seg_start(rd_ptr):
            budget -= emit_reads(rd_ptr); rd_ptr += 1
        budget -= 4
        while fp < len(F) and F[fp][0] <= i and budget >= F[fp][2]:
            budget -= F[fp][2]
            C(F[fp][3]); fp += 1
    while fp < len(F):
        C(F[fp][3]); fp += 1
    assert nbar[0] == len(CONS)
    if prof:
        C(f"""
        s_waitcnt vmcnt(0)
        s_memtime s[60:61]
        s_waitcnt lgkmcnt(0)
        s_lshl_b32 s29, s2, 10
        s_lshl_b32 s31, s30, 2
        s_add_u32 s29, s29, s31
        s_add_u32 s29, s29, {PROF_OFF + 512}
        s_add_u32 s52, s24, s29
        s_addc_u32 s53, s25, 0
        s_mov_b32 s54, 4
        v_mov_b32 v1, s60
        v_lshlrev_b32 v2, 2, v0
        buffer_store_dword v1, v2, s[52:55], 0 offen
        """)
    if span:
        C("""
        s_waitcnt vmcnt(0)
        s_memrealtime s[72:73]
        s_memtime s[74:75]
        s_mov_b32 s70, 64
        s_mov_b32 s71, 0x20000
        s_waitcnt lgkmcnt(0)
        s_not_b32 s76, s64
        s_sub_u32 s77, s72, s64
        s_sub_u32 s78, s74, s66
        s_not_b32 s79, s72
        v_mov_b32 v1, s72
        v_mov_b32 v2, s76
        v_mov_b32 v3, s77
        v_mov_b32 v4, s78
        v_mov_b32 v5, s64
        v_mov_b32 v6, s79
        v_lshlrev_b32 v7, 8, v0
        buffer_atomic_umax v1, v7, s[68:71], 0 offen
        buffer_atomic_umax v2, v7, s[68:71], 0 offen offset:4
        buffer_atomic_umax v3, v7, s[68:71], 0 offen offset:8
        buffer_atomic_umax v4, v7, s[68:71], 0 offen offset:12
        buffer_atomic_umax v5, v7, s[68:71], 0 offen offset:16
        buffer_atomic_umax v6, v7, s[68:71], 0 offen offset:20
        """)
    C("s_endpgm")

    Ld = Stream()
    Ld("L_loader:")
    if prof:
        Ld("s_memtime s[62:63]")
    Ld("""
    v_lshrrev_b32 v1, 5, v0
    v_and_b32 v2, 31, v0
    v_lshrrev_b32 v3, 2, v2
    v_xor_b32 v3, v3, v1
    v_and_b32 v4, 3, v0
    v_lshlrev_b32 v4, 4, v4
    v_lshl_add_u32 v3, v3, 6, v4
    v_lshl_add_u32 v8, v1, 13, v3
    v_xor_b32 v9, 128, v8
    v_add_u32 v9, 15360, v9
    v_add_u32 v10, 30720, v8
    v_add_u32 v11, 30720, v9
    s_waitcnt lgkmcnt(0)
    s_lshl_b32 s29, s27, 9
    s_add_u32 s44, s14, s29
    s_addc_u32 s45, s15, 0
    s_sub_u32 s46, 3670016, s29
    s_mov_b32 s47, 0x20000
    """)
    setup2 = """
    v_xor_b32 v3, v2, v1
    v_lshlrev_b32 v3, 4, v3
    v_lshl_add_u32 v12, v1, 9, v3
    """ + "\n".join(f"v_xor_b32 v{12 + j}, {32 * j}, v12" for j in range(1, 8)) + """
    v_lshrrev_b32 v1, 4, v0
    v_bfe_u32 v3, v0, 2, 2
    v_xor_b32 v3, v3, v1
    v_lshl_add_u32 v3, v3, 6, v4
    v_lshl_add_u32 v20, v1, 9, v3
    v_add_u32 v21, 1024, v20
    v_add_u32 v22, 2048, v20
    v_add_u32 v23, 3072, v20
    v_lshrrev_b32 v2, 3, v0
    v_mul_u32_u24 v2, 896, v2
    v_bfe_u32 v3, v0, 2, 1
    v_and_b32 v1, 1, v1
    v_xor_b32 v3, v3, v1
    v_lshl_add_u32 v3, v3, 6, v4
    v_add_u32 v24, v2, v3
    v_add_u32 v25, 6144, v24
    v_add_u32 v26, 12288, v24
    v_add_u32 v27, 18432, v24
    s_lshl_b32 s29, s28, 4
    s_add_u32 s29, s29, s27
    s_lshl_b32 s29, s29, 18
    s_add_u32 s36, s10, s29
    s_addc_u32 s37, s11, 0
    s_mov_b32 s38, 262144
    s_mov_b32 s39, 0x20000
    s_add_u32 s40, s12, s29
    s_addc_u32 s41, s13, 0
    s_mov_b32 s42, 262144
    s_mov_b32 s43, 0x20000
    s_mul_i32 s29, s27, 229376
    s_add_u32 s48, s16, s29
    s_addc_u32 s49, s17, 0
    s_mov_b32 s50, 229376
    s_mov_b32 s51, 0x20000
    """

    def issue(t, q):
        kind, i = t
        Ld(f"s_mov_b32 m0, {slot[t] * 16384 + q * 4096}")
        if kind == "wq":
            so, srd, vb, pol = i * 262144 + q * 65536, 44, 8, wpol
        elif kind == "k":
            so, srd, vb, pol = i * 16384 + q * 4096, 36, 12 + 4 * (q & 1), kvpol
        elif kind[0] == "v":
            so, srd, vb, pol = int(kind[1]) * 256 + i * 32768 + q * 8192, 40, 20, kvpol
        else:
            so, srd, vb, pol = (int(kind[2]) * 128 + q * 32) * 896 + i * 128, 48, 24, wpol
        Ld(f"s_mov_b32 s31, {so}")
        for p in range(4):
            Ld(f"buffer_load_dwordx4 v{vb + p}, s[{srd}:{srd + 3}], s31 offen offset:{p * 1024} {pol} lds")

    def stamp(idx):
        if prof:
            Ld(f"s_memtime s[60:61]\ns_waitcnt lgkmcnt(0)\nv_writelane_b32 v{40 + idx // 64}, s60, {idx % 64}")

    for b, (lst, wait) in enumerate(steps):
        for t, q in lst:
            if b == 0:
                assert t[0] == "wq"
            issue(t, q)
        if b == 0:
            Ld(setup2)
        if wait is not None:
            Ld(f"s_waitcnt vmcnt({wait})")
        stamp(2 * b)
        Ld("s_barrier")
        stamp(2 * b + 1)
    if prof:
        Ld(f"""
        v_writelane_b32 v41, s62, 63
        s_lshl_b32 s29, s2, 10
        s_add_u32 s29, s29, {PROF_OFF}
        s_add_u32 s52, s24, s29
        s_addc_u32 s53, s25, 0
        s_mov_b32 s54, 512
        s_mov_b32 s55, 0x20000
        v_lshlrev_b32 v2, 2, v0
        buffer_store_dword v40, v2, s[52:55], 0 offen
        buffer_store_dword v41, v2, s[52:55], 0 offen offset:256
        """)
    Ld("L_done:")
    Ld("s_endpgm")

    R = Stream()
    R(f"""
    s_cmp_ge_u32 s2, 336
    s_cbranch_scc1 L_rdone
    s_load_dwordx2 s[8:9], s[0:1], 80
    s_load_dwordx2 s[10:11], s[0:1], 96
    v_lshrrev_b32 v1, 6, v0
    v_and_b32 v0, 63, v0
    v_readfirstlane_b32 s30, v1
    s_mul_i32 s3, s2, 3121
    s_lshr_b32 s3, s3, 16
    s_mul_i32 s4, s3, 21
    s_sub_u32 s4, s2, s4
    s_lshl_b32 s4, s4, 2
    s_add_u32 s4, s4, s30
    v_lshlrev_b32 v2, 4, v0
    s_mul_i32 s5, s3, 1376256
    s_lshl_b32 s6, s4, 10
    s_waitcnt lgkmcnt(0)
    s_add_u32 s12, s10, s5
    s_addc_u32 s13, s11, 0
    s_mov_b32 s14, 1376256
    s_mov_b32 s15, 0x20000
    """)
    for h in range(16):
        R(f"buffer_load_dwordx4 v[{16 + 4 * h}:{19 + 4 * h}], v2, s[12:15], s6 offen {rdpol}")
        if h < 15:
            R("s_add_u32 s6, s6, 86016")
    R("""
    s_mov_b32 s16, s8
    s_mov_b32 s17, s9
    s_mov_b32 s18, 1376256
    s_mov_b32 s19, 0x20000
    s_cmp_ge_u32 s4, 28
    s_cselect_b32 s20, 1, 0
    s_cmp_ge_u32 s4, 56
    s_cselect_b32 s20, 2, s20
    s_mul_i32 s21, s20, 28
    s_sub_u32 s21, s4, s21
    s_and_b32 s22, s3, 7
    s_mul_i32 s22, s22, 3
    s_add_u32 s22, s22, s20
    s_mul_i32 s22, s22, 57344
    s_lshr_b32 s23, s3, 3
    s_mul_i32 s23, s23, 896
    s_add_u32 s22, s22, s23
    s_lshl_b32 s21, s21, 5
    s_add_u32 s22, s22, s21
    v_and_b32 v3, 31, v0
    v_mul_u32_u24 v3, 1792, v3
    v_lshrrev_b32 v4, 5, v0
    v_lshl_add_u32 v3, v4, 4, v3
    """)
    for h in range(16):
        R(f"s_waitcnt vmcnt({15 - h})")
        for j in range(4):
            x = 16 + 4 * h + j
            if h == 0:
                R(f"v_lshlrev_b32 v{8 + 2 * j}, 16, v{x}")
                R(f"v_and_b32 v{9 + 2 * j}, 0xffff0000, v{x}")
            else:
                R(f"v_lshlrev_b32 v5, 16, v{x}")
                R(f"v_and_b32 v6, 0xffff0000, v{x}")
                R(f"v_add_f32 v{8 + 2 * j}, v{8 + 2 * j}, v5")
                R(f"v_add_f32 v{9 + 2 * j}, v{9 + 2 * j}, v6")
    for j in range(4):
        R(f"v_cvt_pk_bf16_f32 v{4 + j}, v{8 + 2 * j}, v{9 + 2 * j}")
    R("buffer_store_dwordx4 v[4:7], v3, s[16:19], s22 offen")
    R("L_rdone:")
    R("s_endpgm")

    body = P.finish() + C.finish() + Ld.finish()
    if verbose:
        print("consumer nops", C.nops, "instructions", len(C.ins))
    T = H + ["    " + l if not l.endswith(":") else l for l in body]
    T += [f".globl {K2}", ".p2align 8", f".type {K2},@function", f"{K2}:"]
    T += ["    " + l if not l.endswith(":") else l for l in R.finish()]
    ks = [(K1, 512, 256), (K2, 80, 80)]
    if noop:
        T += [".globl noop_kernel", ".p2align 8", ".type noop_kernel,@function", "noop_kernel:", "    s_endpgm"]
        ks.append(("noop_kernel", 8, 8))
    if cpf:
        T += [".fill 3200, 4, 0xbf800000"]
    T += ['.section .rodata,"a"']
    for k, nv, ao in ks:
        T += [".p2align 6", f".amdhsa_kernel {k}", f"  .amdhsa_next_free_vgpr {nv}", "  .amdhsa_next_free_sgpr 102",
              f"  .amdhsa_accum_offset {ao}", "  .amdhsa_group_segment_fixed_size 0", "  .amdhsa_kernarg_size 104",
              "  .amdhsa_user_sgpr_count 2", "  .amdhsa_user_sgpr_kernarg_segment_ptr 1",
              "  .amdhsa_system_sgpr_workgroup_id_x 1", ".end_amdhsa_kernel"]
    return "\n".join(T) + "\n"


if __name__ == "__main__":
    out = sys.argv[1] if len(sys.argv) > 1 else f"cdna_kernels/{NAME}.s"
    kw = {}
    for a in sys.argv[2:]:
        k, v = a.split("=")
        kw[k] = eval(v) if v and (v[0].isdigit() or v in ("True", "False")) else v
    open(out, "w").write(gen(verbose=True, **kw))
```

```python
import sys, math, struct
sys.path.insert(0, "dev")
from asmlib import Stream

NAME = "concat_heads__mha_block_cached__gqa_block_cached__near_ridge"
MF = "v_mfma_f32_32x32x16_bf16"
NSLOT = 10
PROF_OFF = 0x4000000


def f32bits(x):
    return struct.unpack("<I", struct.pack("<f", x))[0]


def merge(a, b):
    out = []
    ia = ib = 0
    while ia < len(a) or ib < len(b):
        if ib >= len(b) or (ia < len(a) and ia * len(b) <= ib * len(a)):
            out.append(a[ia]); ia += 1
        else:
            out.append(b[ib]); ib += 1
    return out


def quarters(tiles):
    return [(t, q) for t in tiles for q in range(4)]


CONS = ([("wq", i) for i in range(14)] + [("k", i) for i in range(16)] + [("v0", i) for i in range(8)] +
        [("wo0", i) for i in range(7)] + [("v1", i) for i in range(8)] + [("wo1", i) for i in range(7)])
HARD = {("wq", 0), ("v0", 0), ("wo0", 0), ("wo1", 0)}


def load_order(kp=6):
    wq = [("wq", i) for i in range(14)]
    k = [("k", i) for i in range(16)]
    v0 = [("v0", i) for i in range(8)]
    v1 = [("v1", i) for i in range(8)]
    o0 = [("wo0", i) for i in range(7)]
    o1 = [("wo1", i) for i in range(7)]
    L = quarters(wq[:4]) + merge(quarters(wq[4:]), quarters(k[:kp])) + quarters(k[kp:])
    L += quarters(v0[:4]) + merge(quarters(v0[4:]), quarters(o0[:4]))
    L += merge(quarters(o0[4:]), quarters(v1[:3])) + quarters(v1[3:5])
    L += merge(quarters(o1[:5]), quarters(v1[5:])) + quarters(o1[5:])
    return L


def plan_loader(order, cap=60, stepmax=28):
    cidx = {t: i for i, t in enumerate(CONS)}
    slot = {}
    holder = {s: None for s in range(NSLOT)}
    for s in range(4, 10):
        holder[s] = "x"
    steps = []
    pos = 0
    issued = 0
    landed = 0
    endidx = {}
    cnt = {}
    for b in range(-1, len(CONS) - 1):
        if b >= 0:
            upto = b - 1 if CONS[b] in HARD else b - 2
            for s in holder:
                h = holder[s]
                if h == "x" or (h is not None and cidx[h] <= upto):
                    holder[s] = None
        nxt = CONS[b + 1]
        lst = []
        n = 0
        while pos < len(order):
            t, q = order[pos]
            forced = cnt.get(nxt, 0) < 4
            if not forced and (issued + 4 - landed > cap or (n + 4 > stepmax and b >= 0)):
                break
            if t not in slot:
                free = [s for s in holder if holder[s] is None]
                if not free:
                    assert not forced, ("deadlock", b, t, nxt)
                    break
                slot[t] = free[0]
                holder[free[0]] = t
            lst.append((t, q))
            issued += 4; n += 4
            cnt[t] = cnt.get(t, 0) + 1
            if cnt[t] == 4:
                endidx[t] = issued
            pos += 1
        w = issued - endidx[nxt]
        wait = None
        if endidx[nxt] > landed:
            wait = min(w, 63)
            landed = endidx[nxt]
        steps.append((lst, wait))
    assert pos == len(order)
    return slot, steps


def gen(kvpol="nt", wpol="nt", xpol="nt", stpol="sc1", rdpol="sc1", PD=4, prof=False, kp=6, cap=60, stepmax=28,
        order=None, verbose=False, noop=0, cpf=0, span=False):
    order = order or load_order(kp)
    slot, steps = plan_loader(order, cap, stepmax)
    if verbose:
        for b, (lst, w) in enumerate(steps):
            print(b - 1, CONS[b], "slot", slot[CONS[b]], "wait", w, " ".join(f"{t[0]}{t[1]}.{q}" for t, q in lst))
    K1 = NAME + "_kernel"
    K2 = "reduce_kernel"
    H = []
    H.append(f"; @launch kernel={K1} grid=(256,1,1) block=(256,1,1) lds=163840")
    H.append(f"; @launch kernel={K2} grid=(336,1,1) block=(256,1,1) lds=0")
    for _ in range(noop):
        H.append(f"; @launch kernel=noop_kernel grid=(1,1,1) block=(64,1,1) lds=0")
    H.append('.amdgcn_target "amdgcn-amd-amdhsa--gfx950"')
    H += [".text", f".globl {K1}", ".p2align 8", f".type {K1},@function", f"{K1}:"]

    P = Stream()
    P("""
    s_cmp_ge_u32 s2, 256
    s_cbranch_scc1 L_done
    s_and_b32 s3, s2, 7
    s_lshr_b32 s4, s3, 2
    s_mul_i32 s5, s4, 40
    s_add_u32 s6, s0, s5
    s_addc_u32 s7, s1, 0
    s_load_dwordx8 s[8:15], s[6:7], 0
    s_load_dwordx2 s[16:17], s[6:7], 32
    s_load_dwordx2 s[24:25], s[0:1], 96
    """)
    if span:
        P("s_memrealtime s[64:65]\ns_memtime s[66:67]\ns_load_dwordx2 s[68:69], s[0:1], 88")
    P("""
    s_lshr_b32 s26, s2, 3
    s_and_b32 s27, s3, 3
    s_lshl_b32 s27, s27, 2
    s_and_b32 s28, s26, 3
    s_add_u32 s27, s27, s28
    s_lshr_b32 s28, s26, 2
    v_lshrrev_b32 v1, 6, v0
    v_and_b32 v0, 63, v0
    v_readfirstlane_b32 s30, v1
    """)
    if cpf:
        P(f"""
        s_getpc_b64 s[20:21]
        v_lshlrev_b32 v2, 7, v0
        v_lshl_add_u32 v2, v1, 13, v2
        """)
        for j in range(cpf):
            P(f"global_load_dword v{44 + j}, v2, s[20:21]")
            if j + 1 < cpf:
                P("v_add_u32 v2, 0x8000, v2")
    P("""
    s_cmp_eq_u32 s30, 3
    s_cbranch_scc1 L_loader
    """)

    C = Stream()
    C("""
    v_lshrrev_b32 v1, 3, v0
    v_mul_u32_u24 v1, 896, v1
    v_and_b32 v2, 7, v0
    v_lshrrev_b32 v3, 4, v0
    v_xor_b32 v2, v2, v3
    v_lshl_add_u32 v32, v2, 4, v1
    v_xor_b32 v33, 64, v32
    v_add_u32 v33, 6144, v33
    v_add_u32 v34, 12288, v32
    v_add_u32 v35, 12288, v33
    s_lshl_b32 s31, s30, 15
    s_add_u32 s31, s31, 65536
    s_mul_i32 s57, s30, 28672
    s_waitcnt lgkmcnt(0)
    s_mul_i32 s29, s28, 86016
    s_add_u32 s32, s8, s29
    s_addc_u32 s33, s9, 0
    s_mov_b32 s34, 86016
    s_mov_b32 s35, 0x20000
    """)
    for cb in range(7):
        C(f"s_add_u32 m0, s31, {cb * 4096}")
        if cb:
            C(f"s_add_u32 s57, s57, 128")
        for rg in range(4):
            C(f"buffer_load_dwordx4 v{32 + rg}, s[32:35], s57 offen offset:{rg * 1024} {xpol} lds")
    C("""
    v_and_b32 v1, 31, v0
    v_lshrrev_b32 v2, 5, v0
    v_bfe_u32 v3, v0, 1, 3
    v_xor_b32 v3, v3, v2
    v_lshlrev_b32 v3, 4, v3
    v_lshl_add_u32 v3, v1, 7, v3
    v_add_u32 v36, s31, v3
    v_xor_b32 v37, 32, v36
    v_xor_b32 v38, 64, v36
    v_xor_b32 v39, 96, v36
    """)
    C("""
    v_and_b32 v3, 15, v0
    v_xor_b32 v3, v3, v2
    v_lshlrev_b32 v3, 4, v3
    v_lshl_add_u32 v12, v1, 9, v3
    """)
    for j in range(1, 8):
        C(f"v_xor_b32 v{12 + j}, {32 * j}, v12")
    C("""
    v_bfe_u32 v4, v0, 2, 2
    v_and_b32 v5, 3, v0
    v_bfe_u32 v6, v0, 4, 1
    v_lshlrev_b32 v6, 5, v6
    v_lshl_add_u32 v7, v5, 3, v6
    v_and_b32 v3, 1, v0
    v_lshlrev_b32 v3, 4, v3
    v_bfe_u32 v5, v0, 1, 1
    v_lshl_add_u32 v3, v5, 3, v3
    v_add_u32 v6, v6, v3
    """)
    C("""
    v_lshl_add_u32 v3, v2, 3, v4
    v_lshlrev_b32 v3, 9, v3
    v_lshl_add_u32 v3, v4, 6, v3
    v_add_u32 v8, v3, v6
    v_xor_b32 v9, 64, v8
    v_xor_b32 v10, 128, v8
    v_xor_b32 v11, 192, v8
    v_lshl_add_u32 v5, v2, 2, v4
    v_lshlrev_b32 v3, 8, v5
    v_lshl_add_u32 v3, v4, 6, v3
    v_add_u32 v20, v3, v7
    v_xor_b32 v21, 64, v20
    v_xor_b32 v22, 128, v20
    v_xor_b32 v23, 192, v20
    v_lshlrev_b32 v3, 7, v5
    v_lshrrev_b32 v4, 1, v4
    v_lshl_add_u32 v3, v4, 6, v3
    v_add_u32 v24, v3, v6
    v_xor_b32 v25, 64, v24
    v_lshlrev_b32 v30, 4, v0
    """)
    C(f"""
    s_lshl_b32 s29, s4, 3
    s_add_u32 s29, s29, s28
    s_lshl_b32 s29, s29, 4
    s_add_u32 s29, s29, s27
    s_mul_i32 s29, s29, 3
    s_add_u32 s29, s29, s30
    s_mul_i32 s29, s29, 28672
    s_add_u32 s52, s24, s29
    s_addc_u32 s53, s25, 0
    s_mov_b32 s54, 28672
    s_mov_b32 s55, 0x20000
    s_mov_b32 s56, {f32bits(math.log2(math.e) / 16.0):#x}
    """)
    XF = 112
    for cb in range(7):
        C(f"s_waitcnt vmcnt({24 - 4 * cb})")
        for i in range(4):
            s = 4 * cb + i
            C(f"ds_read_b128 a[{XF + 4 * s}:{XF + 4 * s + 3}], v{36 + i} offset:{cb * 4096}")
    C("s_waitcnt lgkmcnt(0)")

    M = []
    win = {"q": 0, "k": 0, "v": 0, "o": 0}
    aregs = {"q": range(8, 12), "k": range(12, 20), "v": range(20, 24), "o": range(24, 26)}

    def rng(p, a, n):
        return f"{p}[{a}:{a + n - 1}]"

    def add(tile, aset, rd, d, dk, b, first):
        M.append(dict(tile=tile, aset=aset, rd=rd, d=rng(dk, d, 16), b=b, first=first))

    def sreg(t):
        return ("v", 32 + 16 * t) if t < 14 else ("a", 64 + 16 * (t - 14))

    marks = {}
    for i in range(14):
        seq = [(ks, dt) for ks in range(2) for dt in range(8)] if i < 13 else [(ks, dt) for dt in range(8) for ks in range(2)]
        for ks, dt in seq:
            o = (dt >> 2) * 256 + ks * 8192
            add(("wq", i), "q", [("tr", 8 + (dt & 3), o), ("tr", 8 + (dt & 3), o + 2048)], 128 + 16 * dt, "v",
                rng("a", XF + 4 * (2 * i + ks), 4), i == 0 and ks == 0)
            marks[("q", dt)] = len(M) - 1
    for t in range(16):
        dk, d = sreg(t)
        for s in range(16):
            add(("k", t), "k", [("b128", 12 + (s & 7), (s >> 3) * 256)], d, dk, rng("a", 4 * s, 4), s == 0)
            marks[("s", t, s)] = len(M) - 1
    for h in range(2):
        for i in range(8):
            seq = [(ka, dt) for ka in range(4) for dt in range(4)] if i < 7 else [(ka, dt) for dt in range(4) for ka in range(4)]
            for ka, dt in seq:
                t = 2 * i + (ka >> 1)
                o = ka * 4096
                dk, d = ("a", 16 * dt) if h == 0 else ("v", 160 + 16 * dt)
                add((f"v{h}", i), "v", [("tr", 20 + dt, o), ("tr", 20 + dt, o + 2048)], d, dk,
                    rng("v", 32 + 8 * t + 4 * (ka & 1), 4), i == 0 and ka == 0)
                marks[("pv", h, i, ka)] = min(marks.get(("pv", h, i, ka), 1 << 30), len(M) - 1)
                marks[("o", h, dt)] = len(M) - 1
        for i in range(7):
            for nt in range(2):
                T = 2 * i + nt
                acc = 16 * ((T + 4) % 14)
                for ka in range(8):
                    o = ka * 2048
                    add((f"wo{h}", i), "o", [("tr", 24 + nt, o), ("tr", 24 + nt, o + 1024)], acc, "a",
                        rng("v", 224 + 4 * ka, 4), h == 0 and ka == 0)
                    marks[("op", h, T, ka)] = len(M) - 1
    N = len(M)
    assert N == 960

    F = []

    def fill(ready, dead, text, cost=4):
        F.append((ready, dead, cost, text))

    for dt in range(8):
        r = marks[("q", dt)] + 2
        for g in range(2):
            dl = marks[("s", 0, 2 * dt + g)]
            for j in range(4):
                a = 128 + 16 * dt + 8 * g + 2 * j
                fill(r, dl, f"v_cvt_pk_bf16_f32 v{a}, v{a}, v{a + 1}")
            for j in range(4):
                a = 128 + 16 * dt + 8 * g + 2 * j
                fill(r, dl, f"v_accvgpr_write_b32 a{4 * (2 * dt + g) + j}, v{a}")
    pv0 = marks[("pv", 0, 0, 0)]
    for t in range(16):
        r = marks[("s", t, 15)] + 2
        dk, d = sreg(t)
        for j in range(8):
            if dk == "v":
                x, y = f"v{d + 2 * j}", f"v{d + 2 * j + 1}"
            else:
                x, y = f"v{1 + (j & 1) * 2}", f"v{2 + (j & 1) * 2}"
                fill(r, pv0, f"v_accvgpr_read_b32 {x}, a{d + 2 * j}")
                fill(r, pv0, f"v_accvgpr_read_b32 {y}, a{d + 2 * j + 1}")
            if t == 0 and j == 0:
                fill(r, pv0, f"v_max_f32 v26, {x}, {y}")
            else:
                fill(r, pv0, f"v_max3_f32 v26, v26, {x}, {y}")
    r = marks[("s", 15, 15)] + 2
    for txt in ["v_mov_b32 v27, v26", "v_permlane32_swap_b32 v26, v27", "v_max_f32 v26, v26, v27",
                "v_mul_f32 v26, s56, v26"]:
        fill(r, pv0, txt)
    for t in range(16):
        dk, d = sreg(t)
        for g in range(2):
            i, ka = t >> 1, (t & 1) * 2 + g
            dl = pv0 if i == 0 else marks[("pv", 0, i - 1, 0)] + 3 * (ka + 1)
            tmp = [1, 2, 3, 4, 5, 6, 7, 31]
            src = []
            for j in range(8):
                if dk == "v":
                    src.append(d + 8 * g + j)
                else:
                    src.append(tmp[j])
                    fill(r, dl, f"v_accvgpr_read_b32 v{tmp[j]}, a{d + 8 * g + j}")
            for j in range(8):
                fill(r, dl, f"v_fma_f32 v{src[j]}, v{src[j]}, s56, -v26")
                if j:
                    fill(r, dl, f"v_exp_f32 v{src[j - 1]}, v{src[j - 1]}", 8)
            fill(r, dl, f"v_exp_f32 v{src[7]}, v{src[7]}", 8)
            for j in range(8):
                acc = 27 + (j & 1)
                if t == 0 and g == 0 and j < 2:
                    fill(r, dl, f"v_mov_b32 v{acc}, v{src[j]}")
                else:
                    fill(r, dl, f"v_add_f32 v{acc}, v{acc}, v{src[j]}")
            for j in range(4):
                fill(r, dl, f"v_cvt_pk_bf16_f32 v{32 + 8 * t + 4 * g + j}, v{src[2 * j]}, v{src[2 * j + 1]}")
    op0 = marks[("op", 0, 0, 0)]
    for txt, c in [("v_add_f32 v27, v27, v28", 4), ("v_mov_b32 v28, v27", 4), ("v_permlane32_swap_b32 v27, v28", 4),
                   ("v_add_f32 v27, v27, v28", 4), ("v_rcp_f32 v29, v27", 8)]:
        fill(r, op0, txt, c)
    for h in range(2):
        for dt in range(4):
            r = marks[("o", h, dt)] + 2
            for g in range(2):
                dl = marks[("op", h, 0, 2 * dt + g)]
                for j in range(8):
                    e = 16 * dt + 8 * g + j
                    if h == 0:
                        fill(r, dl, f"v_accvgpr_read_b32 v{160 + e}, a{e}")
                for j in range(8):
                    e = 160 + 16 * dt + 8 * g + j
                    fill(r, dl, f"v_mul_f32 v{e}, v29, v{e}")
                for j in range(4):
                    e = 160 + 16 * dt + 8 * g + 2 * j
                    fill(r, dl, f"v_cvt_pk_bf16_f32 v{224 + 4 * (2 * dt + g) + j}, v{e}, v{e + 1}")
    for T in range(14):
        r = marks[("op", 1, T, 7)] + 2
        acc = 16 * ((T + 4) % 14)
        tb = 32 + 32 * (T % 4)
        for g in range(2):
            for j in range(8):
                fill(r, N, f"v_accvgpr_read_b32 v{tb + 8 * g + j}, a{acc + 8 * g + j}")
            for j in range(4):
                fill(r, N, f"v_cvt_pk_bf16_f32 v{tb + 16 + 4 * g + j}, v{tb + 8 * g + 2 * j}, v{tb + 8 * g + 2 * j + 1}")
            tg = 2 * T + g
            if tg % 4 == 0:
                fill(r, N, f"s_mov_b32 s58, {tg * 1024}")
            fill(r, N, f"buffer_store_dwordx4 v[{tb + 16 + 4 * g}:{tb + 19 + 4 * g}], v30, s[52:55], s58 offen offset:{(tg % 4) * 1024} {stpol}", 8)

    nbar = [0]
    rd_ptr = 0
    fp = 0

    def emit_reads(j):
        m = M[j]
        cost = 0
        if j == 0 or M[j - 1]["tile"] != m["tile"]:
            assert CONS[nbar[0]] == m["tile"]
            C("s_barrier")
            nbar[0] += 1
            w = (slot[m["tile"]] // 4) * 65536
            a = m["aset"]
            if w != win[a]:
                for rg in aregs[a]:
                    if w > win[a]:
                        C(f"v_add_u32 v{rg}, {w - win[a]:#x}, v{rg}")
                    else:
                        C(f"v_subrev_u32 v{rg}, {win[a] - w:#x}, v{rg}")
                    cost += 4
                win[a] = w
        base = (slot[m["tile"]] % 4) * 16384
        ring = 224 + 4 * (j % 8)
        for n, (kind, ar, o) in enumerate(m["rd"]):
            if kind == "tr":
                C(f"ds_read_b64_tr_b16 a[{ring + 2 * n}:{ring + 2 * n + 1}], v{ar} offset:{base + o}")
            else:
                C(f"ds_read_b128 a[{ring}:{ring + 3}], v{ar} offset:{base + o}")
            cost += 4
        return cost

    def seg_start(j):
        return (j == 0 or M[j - 1]["tile"] != M[j]["tile"]) and M[j]["tile"] in HARD

    for i in range(N):
        m = M[i]
        if seg_start(i):
            while fp < len(F) and any(f[1] <= i for f in F[fp:fp + 400]):
                assert F[fp][0] - 2 < i
                C(F[fp][3]); fp += 1
            assert rd_ptr == i
            while rd_ptr < min(N, i + PD):
                emit_reads(rd_ptr); rd_ptr += 1
        while fp < len(F) and any(f[1] <= i for f in F[fp:fp + 400]):
            assert F[fp][0] - 2 < i
            C(F[fp][3]); fp += 1
        ring = 224 + 4 * (i % 8)
        c = "0" if m["first"] else m["d"]
        C(f"{MF} {m['d']}, a[{ring}:{ring + 3}], {m['b']}, {c}")
        budget = 24
        if rd_ptr < N and rd_ptr <= i + PD and not seg_start(rd_ptr):
            budget -= emit_reads(rd_ptr); rd_ptr += 1
        budget -= 4
        while fp < len(F) and F[fp][0] <= i and budget >= F[fp][2]:
            budget -= F[fp][2]
            C(F[fp][3]); fp += 1
    while fp < len(F):
        C(F[fp][3]); fp += 1
    assert nbar[0] == len(CONS)
    if prof:
        C(f"""
        s_waitcnt vmcnt(0)
        s_memtime s[60:61]
        s_waitcnt lgkmcnt(0)
        s_lshl_b32 s29, s2, 10
        s_lshl_b32 s31, s30, 2
        s_add_u32 s29, s29, s31
        s_add_u32 s29, s29, {PROF_OFF + 512}
        s_add_u32 s52, s24, s29
        s_addc_u32 s53, s25, 0
        s_mov_b32 s54, 4
        v_mov_b32 v1, s60
        v_lshlrev_b32 v2, 2, v0
        buffer_store_dword v1, v2, s[52:55], 0 offen
        """)
    if span:
        C(f"""
        s_waitcnt vmcnt(0)
        s_memrealtime s[72:73]
        s_memtime s[74:75]
        s_lshl_b32 s29, s2, 4
        s_add_u32 s29, s29, {PROF_OFF}
        s_add_u32 s52, s24, s29
        s_addc_u32 s53, s25, 0
        s_mov_b32 s54, 16
        s_waitcnt lgkmcnt(0)
        s_sub_u32 s77, s72, s64
        s_sub_u32 s78, s74, s66
        v_mov_b32 v4, s64
        v_mov_b32 v5, s72
        v_mov_b32 v6, s77
        v_mov_b32 v7, s78
        buffer_store_dwordx4 v[4:7], v30, s[52:55], 0 offen
        """)
    C("s_endpgm")

    Ld = Stream()
    Ld("L_loader:")
    if prof:
        Ld("s_memtime s[62:63]")
    Ld("""
    v_lshrrev_b32 v1, 5, v0
    v_and_b32 v2, 31, v0
    v_lshrrev_b32 v3, 2, v2
    v_xor_b32 v3, v3, v1
    v_and_b32 v4, 3, v0
    v_lshlrev_b32 v4, 4, v4
    v_lshl_add_u32 v3, v3, 6, v4
    v_lshl_add_u32 v8, v1, 13, v3
    v_xor_b32 v9, 128, v8
    v_add_u32 v9, 15360, v9
    v_add_u32 v10, 30720, v8
    v_add_u32 v11, 30720, v9
    s_waitcnt lgkmcnt(0)
    s_lshl_b32 s29, s27, 9
    s_add_u32 s44, s14, s29
    s_addc_u32 s45, s15, 0
    s_sub_u32 s46, 3670016, s29
    s_mov_b32 s47, 0x20000
    """)
    setup2 = """
    v_xor_b32 v3, v2, v1
    v_lshlrev_b32 v3, 4, v3
    v_lshl_add_u32 v12, v1, 9, v3
    """ + "\n".join(f"v_xor_b32 v{12 + j}, {32 * j}, v12" for j in range(1, 8)) + """
    v_lshrrev_b32 v1, 4, v0
    v_bfe_u32 v3, v0, 2, 2
    v_xor_b32 v3, v3, v1
    v_lshl_add_u32 v3, v3, 6, v4
    v_lshl_add_u32 v20, v1, 9, v3
    v_add_u32 v21, 1024, v20
    v_add_u32 v22, 2048, v20
    v_add_u32 v23, 3072, v20
    v_lshrrev_b32 v2, 3, v0
    v_mul_u32_u24 v2, 896, v2
    v_bfe_u32 v3, v0, 2, 1
    v_and_b32 v1, 1, v1
    v_xor_b32 v3, v3, v1
    v_lshl_add_u32 v3, v3, 6, v4
    v_add_u32 v24, v2, v3
    v_add_u32 v25, 6144, v24
    v_add_u32 v26, 12288, v24
    v_add_u32 v27, 18432, v24
    s_lshl_b32 s29, s28, 4
    s_add_u32 s29, s29, s27
    s_lshl_b32 s29, s29, 18
    s_add_u32 s36, s10, s29
    s_addc_u32 s37, s11, 0
    s_mov_b32 s38, 262144
    s_mov_b32 s39, 0x20000
    s_add_u32 s40, s12, s29
    s_addc_u32 s41, s13, 0
    s_mov_b32 s42, 262144
    s_mov_b32 s43, 0x20000
    s_mul_i32 s29, s27, 229376
    s_add_u32 s48, s16, s29
    s_addc_u32 s49, s17, 0
    s_mov_b32 s50, 229376
    s_mov_b32 s51, 0x20000
    """

    def issue(t, q):
        kind, i = t
        Ld(f"s_mov_b32 m0, {slot[t] * 16384 + q * 4096}")
        if kind == "wq":
            so, srd, vb, pol = i * 262144 + q * 65536, 44, 8, wpol
        elif kind == "k":
            so, srd, vb, pol = i * 16384 + q * 4096, 36, 12 + 4 * (q & 1), kvpol
        elif kind[0] == "v":
            so, srd, vb, pol = int(kind[1]) * 256 + i * 32768 + q * 8192, 40, 20, kvpol
        else:
            so, srd, vb, pol = (int(kind[2]) * 128 + q * 32) * 896 + i * 128, 48, 24, wpol
        Ld(f"s_mov_b32 s31, {so}")
        for p in range(4):
            Ld(f"buffer_load_dwordx4 v{vb + p}, s[{srd}:{srd + 3}], s31 offen offset:{p * 1024} {pol} lds")

    def stamp(idx):
        if prof:
            Ld(f"s_memtime s[60:61]\ns_waitcnt lgkmcnt(0)\nv_writelane_b32 v{40 + idx // 64}, s60, {idx % 64}")

    for b, (lst, wait) in enumerate(steps):
        for t, q in lst:
            if b == 0:
                assert t[0] == "wq"
            issue(t, q)
        if b == 0:
            Ld(setup2)
        if wait is not None:
            Ld(f"s_waitcnt vmcnt({wait})")
        stamp(2 * b)
        Ld("s_barrier")
        stamp(2 * b + 1)
    if prof:
        Ld(f"""
        v_writelane_b32 v41, s62, 63
        s_lshl_b32 s29, s2, 10
        s_add_u32 s29, s29, {PROF_OFF}
        s_add_u32 s52, s24, s29
        s_addc_u32 s53, s25, 0
        s_mov_b32 s54, 512
        s_mov_b32 s55, 0x20000
        v_lshlrev_b32 v2, 2, v0
        buffer_store_dword v40, v2, s[52:55], 0 offen
        buffer_store_dword v41, v2, s[52:55], 0 offen offset:256
        """)
    Ld("L_done:")
    Ld("s_endpgm")

    R = Stream()
    R(f"""
    s_cmp_ge_u32 s2, 336
    s_cbranch_scc1 L_rdone
    s_load_dwordx2 s[8:9], s[0:1], 80
    s_load_dwordx2 s[10:11], s[0:1], 96
    s_memrealtime s[64:65]
    s_load_dwordx2 s[68:69], s[0:1], 88
    v_mov_b32 v7, v0
    v_lshrrev_b32 v1, 6, v0
    v_and_b32 v0, 63, v0
    v_readfirstlane_b32 s30, v1
    s_mul_i32 s3, s2, 3121
    s_lshr_b32 s3, s3, 16
    s_mul_i32 s4, s3, 21
    s_sub_u32 s4, s2, s4
    s_lshl_b32 s4, s4, 2
    s_add_u32 s4, s4, s30
    v_lshlrev_b32 v2, 4, v0
    s_mul_i32 s5, s3, 1376256
    s_lshl_b32 s6, s4, 10
    s_waitcnt lgkmcnt(0)
    s_add_u32 s12, s10, s5
    s_addc_u32 s13, s11, 0
    s_mov_b32 s14, 1376256
    s_mov_b32 s15, 0x20000
    """)
    for h in range(16):
        R(f"buffer_load_dwordx4 v[{16 + 4 * h}:{19 + 4 * h}], v2, s[12:15], s6 offen {rdpol}")
        if h < 15:
            R("s_add_u32 s6, s6, 86016")
    R("""
    s_mov_b32 s16, s8
    s_mov_b32 s17, s9
    s_mov_b32 s18, 1376256
    s_mov_b32 s19, 0x20000
    s_cmp_ge_u32 s4, 28
    s_cselect_b32 s20, 1, 0
    s_cmp_ge_u32 s4, 56
    s_cselect_b32 s20, 2, s20
    s_mul_i32 s21, s20, 28
    s_sub_u32 s21, s4, s21
    s_and_b32 s22, s3, 7
    s_mul_i32 s22, s22, 3
    s_add_u32 s22, s22, s20
    s_mul_i32 s22, s22, 57344
    s_lshr_b32 s23, s3, 3
    s_mul_i32 s23, s23, 896
    s_add_u32 s22, s22, s23
    s_lshl_b32 s21, s21, 5
    s_add_u32 s22, s22, s21
    v_and_b32 v3, 31, v0
    v_mul_u32_u24 v3, 1792, v3
    v_lshrrev_b32 v4, 5, v0
    v_lshl_add_u32 v3, v4, 4, v3
    """)
    for h in range(16):
        R(f"s_waitcnt vmcnt({15 - h})")
        for j in range(4):
            x = 16 + 4 * h + j
            if h == 0:
                R(f"v_lshlrev_b32 v{8 + 2 * j}, 16, v{x}")
                R(f"v_and_b32 v{9 + 2 * j}, 0xffff0000, v{x}")
            else:
                R(f"v_lshlrev_b32 v5, 16, v{x}")
                R(f"v_and_b32 v6, 0xffff0000, v{x}")
                R(f"v_add_f32 v{8 + 2 * j}, v{8 + 2 * j}, v5")
                R(f"v_add_f32 v{9 + 2 * j}, v{9 + 2 * j}, v6")
    for j in range(4):
        R(f"v_cvt_pk_bf16_f32 v{4 + j}, v{8 + 2 * j}, v{9 + 2 * j}")
    R("buffer_store_dwordx4 v[4:7], v3, s[16:19], s22 offen")
    if span:
        R(f"""
        s_waitcnt vmcnt(0)
        s_memrealtime s[72:73]
        s_mov_b32 s70, 64
        s_mov_b32 s71, 0x20000
        s_add_u32 s12, s10, {PROF_OFF}
        s_addc_u32 s13, s11, 0
        s_mov_b32 s14, 4096
        s_waitcnt lgkmcnt(0)
        s_cmp_lg_u32 s30, 0
        s_cbranch_scc1 L_nost
        s_not_b32 s76, s64
        v_mov_b32 v1, s72
        v_mov_b32 v2, s76
        v_lshlrev_b32 v8, 8, v0
        buffer_atomic_umax v1, v8, s[68:71], 0 offen offset:32
        buffer_atomic_umax v2, v8, s[68:71], 0 offen offset:36
        L_nost:
        s_cmp_lg_u32 s2, 0
        s_cbranch_scc1 L_rdone
        s_lshl_b32 s31, s30, 10
        v_lshlrev_b32 v9, 4, v0
        buffer_load_dwordx4 v[12:15], v9, s[12:15], s31 offen
        v_mov_b32 v8, 0
        s_waitcnt vmcnt(0)
        v_not_b32 v10, v12
        v_not_b32 v11, v13
        buffer_atomic_umax v10, v8, s[68:71], 0 offen
        buffer_atomic_umax v12, v8, s[68:71], 0 offen offset:4
        buffer_atomic_umax v11, v8, s[68:71], 0 offen offset:8
        buffer_atomic_umax v13, v8, s[68:71], 0 offen offset:12
        buffer_atomic_umax v14, v8, s[68:71], 0 offen offset:16
        buffer_atomic_umax v15, v8, s[68:71], 0 offen offset:20
        """)
    R("L_rdone:")
    R("s_endpgm")

    body = P.finish() + C.finish() + Ld.finish()
    if verbose:
        print("consumer nops", C.nops, "instructions", len(C.ins))
    T = H + ["    " + l if not l.endswith(":") else l for l in body]
    T += [f".globl {K2}", ".p2align 8", f".type {K2},@function", f"{K2}:"]
    T += ["    " + l if not l.endswith(":") else l for l in R.finish()]
    ks = [(K1, 512, 256), (K2, 80, 80)]
    if noop:
        T += [".globl noop_kernel", ".p2align 8", ".type noop_kernel,@function", "noop_kernel:", "    s_endpgm"]
        ks.append(("noop_kernel", 8, 8))
    if cpf:
        T += [".fill 3200, 4, 0xbf800000"]
    T += ['.section .rodata,"a"']
    for k, nv, ao in ks:
        T += [".p2align 6", f".amdhsa_kernel {k}", f"  .amdhsa_next_free_vgpr {nv}", "  .amdhsa_next_free_sgpr 102",
              f"  .amdhsa_accum_offset {ao}", "  .amdhsa_group_segment_fixed_size 0", "  .amdhsa_kernarg_size 104",
              "  .amdhsa_user_sgpr_count 2", "  .amdhsa_user_sgpr_kernarg_segment_ptr 1",
              "  .amdhsa_system_sgpr_workgroup_id_x 1", ".end_amdhsa_kernel"]
    return "\n".join(T) + "\n"


if __name__ == "__main__":
    out = sys.argv[1] if len(sys.argv) > 1 else f"cdna_kernels/{NAME}.s"
    kw = {}
    for a in sys.argv[2:]:
        k, v = a.split("=")
        kw[k] = eval(v) if v and (v[0].isdigit() or v in ("True", "False")) else v
    open(out, "w").write(gen(verbose=True, **kw))
```

```python
import sys, math, struct
sys.path.insert(0, "dev")
from asmlib import Stream

NAME = "concat_heads__mha_block_cached__gqa_block_cached__near_ridge"
MF = "v_mfma_f32_32x32x16_bf16"
NSLOT = 10
PROF_OFF = 0x4000000
PB = [0, 4, 14, 20, 30, 38, 45, 53, 59]


def f32bits(x):
    return struct.unpack("<I", struct.pack("<f", x))[0]


def merge(a, b):
    out = []
    ia = ib = 0
    while ia < len(a) or ib < len(b):
        if ib >= len(b) or (ia < len(a) and ia * len(b) <= ib * len(a)):
            out.append(a[ia]); ia += 1
        else:
            out.append(b[ib]); ib += 1
    return out


def quarters(tiles):
    return [(t, q) for t in tiles for q in range(4)]


CONS = ([("wq", i) for i in range(14)] + [("k", i) for i in range(16)] + [("v0", i) for i in range(8)] +
        [("wo0", i) for i in range(7)] + [("v1", i) for i in range(8)] + [("wo1", i) for i in range(7)])
HARD = {("wq", 0), ("v0", 0), ("wo0", 0), ("wo1", 0)}


def load_order(kp=6):
    wq = [("wq", i) for i in range(14)]
    k = [("k", i) for i in range(16)]
    v0 = [("v0", i) for i in range(8)]
    v1 = [("v1", i) for i in range(8)]
    o0 = [("wo0", i) for i in range(7)]
    o1 = [("wo1", i) for i in range(7)]
    L = quarters(wq[:4]) + merge(quarters(wq[4:]), quarters(k[:kp])) + quarters(k[kp:])
    L += quarters(v0[:4]) + merge(quarters(v0[4:]), quarters(o0[:4]))
    L += merge(quarters(o0[4:]), quarters(v1[:3])) + quarters(v1[3:5])
    L += merge(quarters(o1[:5]), quarters(v1[5:])) + quarters(o1[5:])
    return L


def plan_loader(order, cap=60, stepmax=28):
    cidx = {t: i for i, t in enumerate(CONS)}
    slot = {}
    holder = {s: None for s in range(NSLOT)}
    for s in range(4, 10):
        holder[s] = "x"
    steps = []
    pos = 0
    issued = 0
    landed = 0
    endidx = {}
    cnt = {}
    for b in range(-1, len(CONS) - 1):
        if b >= 0:
            upto = b - 1 if CONS[b] in HARD else b - 2
            for s in holder:
                h = holder[s]
                if h == "x" or (h is not None and cidx[h] <= upto):
                    holder[s] = None
        nxt = CONS[b + 1]
        lst = []
        n = 0
        while pos < len(order):
            t, q = order[pos]
            forced = cnt.get(nxt, 0) < 4
            if not forced and (issued + 4 - landed > cap or (n + 4 > stepmax and b >= 0)):
                break
            if t not in slot:
                free = [s for s in holder if holder[s] is None]
                if not free:
                    assert not forced, ("deadlock", b, t, nxt)
                    break
                slot[t] = free[0]
                holder[free[0]] = t
            lst.append((t, q))
            issued += 4; n += 4
            cnt[t] = cnt.get(t, 0) + 1
            if cnt[t] == 4:
                endidx[t] = issued
            pos += 1
        w = issued - endidx[nxt]
        wait = None
        if endidx[nxt] > landed:
            wait = min(w, 63)
            landed = endidx[nxt]
        steps.append((lst, wait))
    assert pos == len(order)
    return slot, steps


def gen(kvpol="nt", wpol="nt", xpol="nt", stpol="sc1", rdpol="sc1", PD=4, prof=False, kp=6, cap=60, stepmax=28,
        order=None, verbose=False, noop=0, cpf=0, probe=None):
    order = order or load_order(kp)
    slot, steps = plan_loader(order, cap, stepmax)
    if verbose:
        for b, (lst, w) in enumerate(steps):
            print(b - 1, CONS[b], "slot", slot[CONS[b]], "wait", w, " ".join(f"{t[0]}{t[1]}.{q}" for t, q in lst))
    K1 = NAME + "_kernel"
    K2 = "reduce_kernel"
    H = []
    H.append(f"; @launch kernel={K1} grid=(256,1,1) block=(256,1,1) lds=163840")
    H.append(f"; @launch kernel={K2} grid=(336,1,1) block=(256,1,1) lds=0")
    if probe:
        H.append("; @launch kernel=probe_kernel grid=(1,1,1) block=(64,1,1) lds=0")
    for _ in range(noop):
        H.append(f"; @launch kernel=noop_kernel grid=(1,1,1) block=(64,1,1) lds=0")
    H.append('.amdgcn_target "amdgcn-amd-amdhsa--gfx950"')
    H += [".text", f".globl {K1}", ".p2align 8", f".type {K1},@function", f"{K1}:"]

    P = Stream()
    P("""
    s_cmp_ge_u32 s2, 256
    s_cbranch_scc1 L_done
    s_and_b32 s3, s2, 7
    s_lshr_b32 s4, s3, 2
    s_mul_i32 s5, s4, 40
    s_add_u32 s6, s0, s5
    s_addc_u32 s7, s1, 0
    s_load_dwordx8 s[8:15], s[6:7], 0
    s_load_dwordx2 s[16:17], s[6:7], 32
    s_load_dwordx2 s[24:25], s[0:1], 96
    """)
    if probe:
        P("s_memrealtime s[64:65]")
    P("""
    s_lshr_b32 s26, s2, 3
    s_and_b32 s27, s3, 3
    s_lshl_b32 s27, s27, 2
    s_and_b32 s28, s26, 3
    s_add_u32 s27, s27, s28
    s_lshr_b32 s28, s26, 2
    v_lshrrev_b32 v1, 6, v0
    v_and_b32 v0, 63, v0
    v_readfirstlane_b32 s30, v1
    """)
    if cpf:
        P(f"""
        s_getpc_b64 s[20:21]
        v_lshlrev_b32 v2, 7, v0
        v_lshl_add_u32 v2, v1, 13, v2
        """)
        for j in range(cpf):
            P(f"global_load_dword v{44 + j}, v2, s[20:21]")
            if j + 1 < cpf:
                P("v_add_u32 v2, 0x8000, v2")
    P("""
    s_cmp_eq_u32 s30, 3
    s_cbranch_scc1 L_loader
    """)

    C = Stream()
    C("""
    v_lshrrev_b32 v1, 3, v0
    v_mul_u32_u24 v1, 896, v1
    v_and_b32 v2, 7, v0
    v_lshrrev_b32 v3, 4, v0
    v_xor_b32 v2, v2, v3
    v_lshl_add_u32 v32, v2, 4, v1
    v_xor_b32 v33, 64, v32
    v_add_u32 v33, 6144, v33
    v_add_u32 v34, 12288, v32
    v_add_u32 v35, 12288, v33
    s_lshl_b32 s31, s30, 15
    s_add_u32 s31, s31, 65536
    s_mul_i32 s57, s30, 28672
    s_waitcnt lgkmcnt(0)
    s_mul_i32 s29, s28, 86016
    s_add_u32 s32, s8, s29
    s_addc_u32 s33, s9, 0
    s_mov_b32 s34, 86016
    s_mov_b32 s35, 0x20000
    """)
    for cb in range(7):
        C(f"s_add_u32 m0, s31, {cb * 4096}")
        if cb:
            C(f"s_add_u32 s57, s57, 128")
        for rg in range(4):
            C(f"buffer_load_dwordx4 v{32 + rg}, s[32:35], s57 offen offset:{rg * 1024} {xpol} lds")
    C("""
    v_and_b32 v1, 31, v0
    v_lshrrev_b32 v2, 5, v0
    v_bfe_u32 v3, v0, 1, 3
    v_xor_b32 v3, v3, v2
    v_lshlrev_b32 v3, 4, v3
    v_lshl_add_u32 v3, v1, 7, v3
    v_add_u32 v36, s31, v3
    v_xor_b32 v37, 32, v36
    v_xor_b32 v38, 64, v36
    v_xor_b32 v39, 96, v36
    """)
    C("""
    v_and_b32 v3, 15, v0
    v_xor_b32 v3, v3, v2
    v_lshlrev_b32 v3, 4, v3
    v_lshl_add_u32 v12, v1, 9, v3
    """)
    for j in range(1, 8):
        C(f"v_xor_b32 v{12 + j}, {32 * j}, v12")
    C("""
    v_bfe_u32 v4, v0, 2, 2
    v_and_b32 v5, 3, v0
    v_bfe_u32 v6, v0, 4, 1
    v_lshlrev_b32 v6, 5, v6
    v_lshl_add_u32 v7, v5, 3, v6
    v_and_b32 v3, 1, v0
    v_lshlrev_b32 v3, 4, v3
    v_bfe_u32 v5, v0, 1, 1
    v_lshl_add_u32 v3, v5, 3, v3
    v_add_u32 v6, v6, v3
    """)
    C("""
    v_lshl_add_u32 v3, v2, 3, v4
    v_lshlrev_b32 v3, 9, v3
    v_lshl_add_u32 v3, v4, 6, v3
    v_add_u32 v8, v3, v6
    v_xor_b32 v9, 64, v8
    v_xor_b32 v10, 128, v8
    v_xor_b32 v11, 192, v8
    v_lshl_add_u32 v5, v2, 2, v4
    v_lshlrev_b32 v3, 8, v5
    v_lshl_add_u32 v3, v4, 6, v3
    v_add_u32 v20, v3, v7
    v_xor_b32 v21, 64, v20
    v_xor_b32 v22, 128, v20
    v_xor_b32 v23, 192, v20
    v_lshlrev_b32 v3, 7, v5
    v_lshrrev_b32 v4, 1, v4
    v_lshl_add_u32 v3, v4, 6, v3
    v_add_u32 v24, v3, v6
    v_xor_b32 v25, 64, v24
    v_lshlrev_b32 v30, 4, v0
    """)
    C(f"""
    s_lshl_b32 s29, s4, 3
    s_add_u32 s29, s29, s28
    s_lshl_b32 s29, s29, 4
    s_add_u32 s29, s29, s27
    s_mul_i32 s29, s29, 3
    s_add_u32 s29, s29, s30
    s_mul_i32 s29, s29, 28672
    s_add_u32 s52, s24, s29
    s_addc_u32 s53, s25, 0
    s_mov_b32 s54, 28672
    s_mov_b32 s55, 0x20000
    s_mov_b32 s56, {f32bits(math.log2(math.e) / 16.0):#x}
    """)
    XF = 112
    for cb in range(7):
        C(f"s_waitcnt vmcnt({24 - 4 * cb})")
        for i in range(4):
            s = 4 * cb + i
            C(f"ds_read_b128 a[{XF + 4 * s}:{XF + 4 * s + 3}], v{36 + i} offset:{cb * 4096}")
    C("s_waitcnt lgkmcnt(0)")

    M = []
    win = {"q": 0, "k": 0, "v": 0, "o": 0}
    aregs = {"q": range(8, 12), "k": range(12, 20), "v": range(20, 24), "o": range(24, 26)}

    def rng(p, a, n):
        return f"{p}[{a}:{a + n - 1}]"

    def add(tile, aset, rd, d, dk, b, first):
        M.append(dict(tile=tile, aset=aset, rd=rd, d=rng(dk, d, 16), b=b, first=first))

    def sreg(t):
        return ("v", 32 + 16 * t) if t < 14 else ("a", 64 + 16 * (t - 14))

    marks = {}
    for i in range(14):
        seq = [(ks, dt) for ks in range(2) for dt in range(8)] if i < 13 else [(ks, dt) for dt in range(8) for ks in range(2)]
        for ks, dt in seq:
            o = (dt >> 2) * 256 + ks * 8192
            add(("wq", i), "q", [("tr", 8 + (dt & 3), o), ("tr", 8 + (dt & 3), o + 2048)], 128 + 16 * dt, "v",
                rng("a", XF + 4 * (2 * i + ks), 4), i == 0 and ks == 0)
            marks[("q", dt)] = len(M) - 1
    for t in range(16):
        dk, d = sreg(t)
        for s in range(16):
            add(("k", t), "k", [("b128", 12 + (s & 7), (s >> 3) * 256)], d, dk, rng("a", 4 * s, 4), s == 0)
            marks[("s", t, s)] = len(M) - 1
    for h in range(2):
        for i in range(8):
            seq = [(ka, dt) for ka in range(4) for dt in range(4)] if i < 7 else [(ka, dt) for dt in range(4) for ka in range(4)]
            for ka, dt in seq:
                t = 2 * i + (ka >> 1)
                o = ka * 4096
                dk, d = ("a", 16 * dt) if h == 0 else ("v", 160 + 16 * dt)
                add((f"v{h}", i), "v", [("tr", 20 + dt, o), ("tr", 20 + dt, o + 2048)], d, dk,
                    rng("v", 32 + 8 * t + 4 * (ka & 1), 4), i == 0 and ka == 0)
                marks[("pv", h, i, ka)] = min(marks.get(("pv", h, i, ka), 1 << 30), len(M) - 1)
                marks[("o", h, dt)] = len(M) - 1
        for i in range(7):
            for nt in range(2):
                T = 2 * i + nt
                acc = 16 * ((T + 4) % 14)
                for ka in range(8):
                    o = ka * 2048
                    add((f"wo{h}", i), "o", [("tr", 24 + nt, o), ("tr", 24 + nt, o + 1024)], acc, "a",
                        rng("v", 224 + 4 * ka, 4), h == 0 and ka == 0)
                    marks[("op", h, T, ka)] = len(M) - 1
    N = len(M)
    assert N == 960

    F = []

    def fill(ready, dead, text, cost=4):
        F.append((ready, dead, cost, text))

    for dt in range(8):
        r = marks[("q", dt)] + 2
        for g in range(2):
            dl = marks[("s", 0, 2 * dt + g)]
            for j in range(4):
                a = 128 + 16 * dt + 8 * g + 2 * j
                fill(r, dl, f"v_cvt_pk_bf16_f32 v{a}, v{a}, v{a + 1}")
            for j in range(4):
                a = 128 + 16 * dt + 8 * g + 2 * j
                fill(r, dl, f"v_accvgpr_write_b32 a{4 * (2 * dt + g) + j}, v{a}")
    pv0 = marks[("pv", 0, 0, 0)]
    for t in range(16):
        r = marks[("s", t, 15)] + 2
        dk, d = sreg(t)
        for j in range(8):
            if dk == "v":
                x, y = f"v{d + 2 * j}", f"v{d + 2 * j + 1}"
            else:
                x, y = f"v{1 + (j & 1) * 2}", f"v{2 + (j & 1) * 2}"
                fill(r, pv0, f"v_accvgpr_read_b32 {x}, a{d + 2 * j}")
                fill(r, pv0, f"v_accvgpr_read_b32 {y}, a{d + 2 * j + 1}")
            if t == 0 and j == 0:
                fill(r, pv0, f"v_max_f32 v26, {x}, {y}")
            else:
                fill(r, pv0, f"v_max3_f32 v26, v26, {x}, {y}")
    r = marks[("s", 15, 15)] + 2
    for txt in ["v_mov_b32 v27, v26", "v_permlane32_swap_b32 v26, v27", "v_max_f32 v26, v26, v27",
                "v_mul_f32 v26, s56, v26"]:
        fill(r, pv0, txt)
    for t in range(16):
        dk, d = sreg(t)
        for g in range(2):
            i, ka = t >> 1, (t & 1) * 2 + g
            dl = pv0 if i == 0 else marks[("pv", 0, i - 1, 0)] + 3 * (ka + 1)
            tmp = [1, 2, 3, 4, 5, 6, 7, 31]
            src = []
            for j in range(8):
                if dk == "v":
                    src.append(d + 8 * g + j)
                else:
                    src.append(tmp[j])
                    fill(r, dl, f"v_accvgpr_read_b32 v{tmp[j]}, a{d + 8 * g + j}")
            for j in range(8):
                fill(r, dl, f"v_fma_f32 v{src[j]}, v{src[j]}, s56, -v26")
                if j:
                    fill(r, dl, f"v_exp_f32 v{src[j - 1]}, v{src[j - 1]}", 8)
            fill(r, dl, f"v_exp_f32 v{src[7]}, v{src[7]}", 8)
            for j in range(8):
                acc = 27 + (j & 1)
                if t == 0 and g == 0 and j < 2:
                    fill(r, dl, f"v_mov_b32 v{acc}, v{src[j]}")
                else:
                    fill(r, dl, f"v_add_f32 v{acc}, v{acc}, v{src[j]}")
            for j in range(4):
                fill(r, dl, f"v_cvt_pk_bf16_f32 v{32 + 8 * t + 4 * g + j}, v{src[2 * j]}, v{src[2 * j + 1]}")
    op0 = marks[("op", 0, 0, 0)]
    for txt, c in [("v_add_f32 v27, v27, v28", 4), ("v_mov_b32 v28, v27", 4), ("v_permlane32_swap_b32 v27, v28", 4),
                   ("v_add_f32 v27, v27, v28", 4), ("v_rcp_f32 v29, v27", 8)]:
        fill(r, op0, txt, c)
    for h in range(2):
        for dt in range(4):
            r = marks[("o", h, dt)] + 2
            for g in range(2):
                dl = marks[("op", h, 0, 2 * dt + g)]
                for j in range(8):
                    e = 16 * dt + 8 * g + j
                    if h == 0:
                        fill(r, dl, f"v_accvgpr_read_b32 v{160 + e}, a{e}")
                for j in range(8):
                    e = 160 + 16 * dt + 8 * g + j
                    fill(r, dl, f"v_mul_f32 v{e}, v29, v{e}")
                for j in range(4):
                    e = 160 + 16 * dt + 8 * g + 2 * j
                    fill(r, dl, f"v_cvt_pk_bf16_f32 v{224 + 4 * (2 * dt + g) + j}, v{e}, v{e + 1}")
    for T in range(14):
        r = marks[("op", 1, T, 7)] + 2
        acc = 16 * ((T + 4) % 14)
        tb = 32 + 32 * (T % 4)
        for g in range(2):
            for j in range(8):
                fill(r, N, f"v_accvgpr_read_b32 v{tb + 8 * g + j}, a{acc + 8 * g + j}")
            for j in range(4):
                fill(r, N, f"v_cvt_pk_bf16_f32 v{tb + 16 + 4 * g + j}, v{tb + 8 * g + 2 * j}, v{tb + 8 * g + 2 * j + 1}")
            tg = 2 * T + g
            if tg % 4 == 0:
                fill(r, N, f"s_mov_b32 s58, {tg * 1024}")
            fill(r, N, f"buffer_store_dwordx4 v[{tb + 16 + 4 * g}:{tb + 19 + 4 * g}], v30, s[52:55], s58 offen offset:{(tg % 4) * 1024} {stpol}", 8)

    nbar = [0]
    rd_ptr = 0
    fp = 0

    def emit_reads(j):
        m = M[j]
        cost = 0
        if j == 0 or M[j - 1]["tile"] != m["tile"]:
            assert CONS[nbar[0]] == m["tile"]
            C("s_barrier")
            nbar[0] += 1
            w = (slot[m["tile"]] // 4) * 65536
            a = m["aset"]
            if w != win[a]:
                for rg in aregs[a]:
                    if w > win[a]:
                        C(f"v_add_u32 v{rg}, {w - win[a]:#x}, v{rg}")
                    else:
                        C(f"v_subrev_u32 v{rg}, {win[a] - w:#x}, v{rg}")
                    cost += 4
                win[a] = w
        base = (slot[m["tile"]] % 4) * 16384
        ring = 224 + 4 * (j % 8)
        for n, (kind, ar, o) in enumerate(m["rd"]):
            if kind == "tr":
                C(f"ds_read_b64_tr_b16 a[{ring + 2 * n}:{ring + 2 * n + 1}], v{ar} offset:{base + o}")
            else:
                C(f"ds_read_b128 a[{ring}:{ring + 3}], v{ar} offset:{base + o}")
            cost += 4
        return cost

    def seg_start(j):
        return (j == 0 or M[j - 1]["tile"] != M[j]["tile"]) and M[j]["tile"] in HARD

    for i in range(N):
        m = M[i]
        if seg_start(i):
            while fp < len(F) and any(f[1] <= i for f in F[fp:fp + 400]):
                assert F[fp][0] - 2 < i
                C(F[fp][3]); fp += 1
            assert rd_ptr == i
            while rd_ptr < min(N, i + PD):
                emit_reads(rd_ptr); rd_ptr += 1
        while fp < len(F) and any(f[1] <= i for f in F[fp:fp + 400]):
            assert F[fp][0] - 2 < i
            C(F[fp][3]); fp += 1
        ring = 224 + 4 * (i % 8)
        c = "0" if m["first"] else m["d"]
        C(f"{MF} {m['d']}, a[{ring}:{ring + 3}], {m['b']}, {c}")
        budget = 24
        if rd_ptr < N and rd_ptr <= i + PD and not seg_start(rd_ptr):
            budget -= emit_reads(rd_ptr); rd_ptr += 1
        budget -= 4
        while fp < len(F) and F[fp][0] <= i and budget >= F[fp][2]:
            budget -= F[fp][2]
            C(F[fp][3]); fp += 1
    while fp < len(F):
        C(F[fp][3]); fp += 1
    assert nbar[0] == len(CONS)
    if prof:
        C(f"""
        s_waitcnt vmcnt(0)
        s_memtime s[60:61]
        s_waitcnt lgkmcnt(0)
        s_lshl_b32 s29, s2, 10
        s_lshl_b32 s31, s30, 2
        s_add_u32 s29, s29, s31
        s_add_u32 s29, s29, {PROF_OFF + 512}
        s_add_u32 s52, s24, s29
        s_addc_u32 s53, s25, 0
        s_mov_b32 s54, 4
        v_mov_b32 v1, s60
        v_lshlrev_b32 v2, 2, v0
        buffer_store_dword v1, v2, s[52:55], 0 offen
        """)
    if probe:
        C(f"""
        s_waitcnt vmcnt(0)
        s_memrealtime s[72:73]
        s_lshl_b32 s29, s2, 6
        s_add_u32 s29, s29, {PROF_OFF}
        s_add_u32 s52, s24, s29
        s_addc_u32 s53, s25, 0
        s_mov_b32 s54, 8
        s_waitcnt lgkmcnt(0)
        v_mov_b32 v4, s64
        v_mov_b32 v5, s72
        buffer_store_dwordx2 v[4:5], v30, s[52:55], 0 offen
        """)
    C("s_endpgm")

    Ld = Stream()
    Ld("L_loader:")
    if prof:
        Ld("s_memtime s[62:63]")
    Ld("""
    v_lshrrev_b32 v1, 5, v0
    v_and_b32 v2, 31, v0
    v_lshrrev_b32 v3, 2, v2
    v_xor_b32 v3, v3, v1
    v_and_b32 v4, 3, v0
    v_lshlrev_b32 v4, 4, v4
    v_lshl_add_u32 v3, v3, 6, v4
    v_lshl_add_u32 v8, v1, 13, v3
    v_xor_b32 v9, 128, v8
    v_add_u32 v9, 15360, v9
    v_add_u32 v10, 30720, v8
    v_add_u32 v11, 30720, v9
    s_waitcnt lgkmcnt(0)
    s_lshl_b32 s29, s27, 9
    s_add_u32 s44, s14, s29
    s_addc_u32 s45, s15, 0
    s_sub_u32 s46, 3670016, s29
    s_mov_b32 s47, 0x20000
    """)
    setup2 = """
    v_xor_b32 v3, v2, v1
    v_lshlrev_b32 v3, 4, v3
    v_lshl_add_u32 v12, v1, 9, v3
    """ + "\n".join(f"v_xor_b32 v{12 + j}, {32 * j}, v12" for j in range(1, 8)) + """
    v_lshrrev_b32 v1, 4, v0
    v_bfe_u32 v3, v0, 2, 2
    v_xor_b32 v3, v3, v1
    v_lshl_add_u32 v3, v3, 6, v4
    v_lshl_add_u32 v20, v1, 9, v3
    v_add_u32 v21, 1024, v20
    v_add_u32 v22, 2048, v20
    v_add_u32 v23, 3072, v20
    v_lshrrev_b32 v2, 3, v0
    v_mul_u32_u24 v2, 896, v2
    v_bfe_u32 v3, v0, 2, 1
    v_and_b32 v1, 1, v1
    v_xor_b32 v3, v3, v1
    v_lshl_add_u32 v3, v3, 6, v4
    v_add_u32 v24, v2, v3
    v_add_u32 v25, 6144, v24
    v_add_u32 v26, 12288, v24
    v_add_u32 v27, 18432, v24
    s_lshl_b32 s29, s28, 4
    s_add_u32 s29, s29, s27
    s_lshl_b32 s29, s29, 18
    s_add_u32 s36, s10, s29
    s_addc_u32 s37, s11, 0
    s_mov_b32 s38, 262144
    s_mov_b32 s39, 0x20000
    s_add_u32 s40, s12, s29
    s_addc_u32 s41, s13, 0
    s_mov_b32 s42, 262144
    s_mov_b32 s43, 0x20000
    s_mul_i32 s29, s27, 229376
    s_add_u32 s48, s16, s29
    s_addc_u32 s49, s17, 0
    s_mov_b32 s50, 229376
    s_mov_b32 s51, 0x20000
    """

    def issue(t, q):
        kind, i = t
        Ld(f"s_mov_b32 m0, {slot[t] * 16384 + q * 4096}")
        if kind == "wq":
            so, srd, vb, pol = i * 262144 + q * 65536, 44, 8, wpol
        elif kind == "k":
            so, srd, vb, pol = i * 16384 + q * 4096, 36, 12 + 4 * (q & 1), kvpol
        elif kind[0] == "v":
            so, srd, vb, pol = int(kind[1]) * 256 + i * 32768 + q * 8192, 40, 20, kvpol
        else:
            so, srd, vb, pol = (int(kind[2]) * 128 + q * 32) * 896 + i * 128, 48, 24, wpol
        Ld(f"s_mov_b32 s31, {so}")
        for p in range(4):
            Ld(f"buffer_load_dwordx4 v{vb + p}, s[{srd}:{srd + 3}], s31 offen offset:{p * 1024} {pol} lds")

    def stamp(idx):
        if prof:
            Ld(f"s_memtime s[60:61]\ns_waitcnt lgkmcnt(0)\nv_writelane_b32 v{40 + idx // 64}, s60, {idx % 64}")

    for b, (lst, wait) in enumerate(steps):
        for t, q in lst:
            if b == 0:
                assert t[0] == "wq"
            issue(t, q)
        if b == 0:
            Ld(setup2)
        if wait is not None:
            Ld(f"s_waitcnt vmcnt({wait})")
        stamp(2 * b)
        Ld("s_barrier")
        stamp(2 * b + 1)
        if probe and b in PB:
            Ld(f"s_memrealtime s[{66 + 2 * PB.index(b)}:{67 + 2 * PB.index(b)}]")
    if probe:
        Ld(f"""
        s_lshl_b32 s29, s2, 6
        s_add_u32 s29, s29, {PROF_OFF + 8}
        s_add_u32 s52, s24, s29
        s_addc_u32 s53, s25, 0
        s_mov_b32 s54, 48
        s_mov_b32 s55, 0x20000
        s_waitcnt lgkmcnt(0)
        """)
        for j in range(len(PB)):
            Ld(f"v_writelane_b32 v40, s{66 + 2 * j}, {j}")
        Ld("v_lshlrev_b32 v2, 2, v0\nbuffer_store_dword v40, v2, s[52:55], 0 offen")
    if prof:
        Ld(f"""
        v_writelane_b32 v41, s62, 63
        s_lshl_b32 s29, s2, 10
        s_add_u32 s29, s29, {PROF_OFF}
        s_add_u32 s52, s24, s29
        s_addc_u32 s53, s25, 0
        s_mov_b32 s54, 512
        s_mov_b32 s55, 0x20000
        v_lshlrev_b32 v2, 2, v0
        buffer_store_dword v40, v2, s[52:55], 0 offen
        buffer_store_dword v41, v2, s[52:55], 0 offen offset:256
        """)
    Ld("L_done:")
    Ld("s_endpgm")

    R = Stream()
    R(f"""
    s_cmp_ge_u32 s2, 336
    s_cbranch_scc1 L_rdone
    s_load_dwordx2 s[8:9], s[0:1], 80
    s_load_dwordx2 s[10:11], s[0:1], 96
    """)
    if probe:
        R("s_memrealtime s[64:65]")
    R(f"""
    v_lshrrev_b32 v1, 6, v0
    v_and_b32 v0, 63, v0
    v_readfirstlane_b32 s30, v1
    s_mul_i32 s3, s2, 3121
    s_lshr_b32 s3, s3, 16
    s_mul_i32 s4, s3, 21
    s_sub_u32 s4, s2, s4
    s_lshl_b32 s4, s4, 2
    s_add_u32 s4, s4, s30
    v_lshlrev_b32 v2, 4, v0
    s_mul_i32 s5, s3, 1376256
    s_lshl_b32 s6, s4, 10
    s_waitcnt lgkmcnt(0)
    s_add_u32 s12, s10, s5
    s_addc_u32 s13, s11, 0
    s_mov_b32 s14, 1376256
    s_mov_b32 s15, 0x20000
    """)
    for h in range(16):
        R(f"buffer_load_dwordx4 v[{16 + 4 * h}:{19 + 4 * h}], v2, s[12:15], s6 offen {rdpol}")
        if h < 15:
            R("s_add_u32 s6, s6, 86016")
    R("""
    s_mov_b32 s16, s8
    s_mov_b32 s17, s9
    s_mov_b32 s18, 1376256
    s_mov_b32 s19, 0x20000
    s_cmp_ge_u32 s4, 28
    s_cselect_b32 s20, 1, 0
    s_cmp_ge_u32 s4, 56
    s_cselect_b32 s20, 2, s20
    s_mul_i32 s21, s20, 28
    s_sub_u32 s21, s4, s21
    s_and_b32 s22, s3, 7
    s_mul_i32 s22, s22, 3
    s_add_u32 s22, s22, s20
    s_mul_i32 s22, s22, 57344
    s_lshr_b32 s23, s3, 3
    s_mul_i32 s23, s23, 896
    s_add_u32 s22, s22, s23
    s_lshl_b32 s21, s21, 5
    s_add_u32 s22, s22, s21
    v_and_b32 v3, 31, v0
    v_mul_u32_u24 v3, 1792, v3
    v_lshrrev_b32 v4, 5, v0
    v_lshl_add_u32 v3, v4, 4, v3
    """)
    for h in range(16):
        R(f"s_waitcnt vmcnt({15 - h})")
        for j in range(4):
            x = 16 + 4 * h + j
            if h == 0:
                R(f"v_lshlrev_b32 v{8 + 2 * j}, 16, v{x}")
                R(f"v_and_b32 v{9 + 2 * j}, 0xffff0000, v{x}")
            else:
                R(f"v_lshlrev_b32 v5, 16, v{x}")
                R(f"v_and_b32 v6, 0xffff0000, v{x}")
                R(f"v_add_f32 v{8 + 2 * j}, v{8 + 2 * j}, v5")
                R(f"v_add_f32 v{9 + 2 * j}, v{9 + 2 * j}, v6")
    for j in range(4):
        R(f"v_cvt_pk_bf16_f32 v{4 + j}, v{8 + 2 * j}, v{9 + 2 * j}")
    R("buffer_store_dwordx4 v[4:7], v3, s[16:19], s22 offen")
    if probe:
        R(f"""
        s_waitcnt vmcnt(0)
        s_memrealtime s[72:73]
        s_and_b32 s29, s2, 255
        s_lshl_b32 s29, s29, 6
        s_add_u32 s29, s29, {PROF_OFF + 56}
        s_add_u32 s12, s10, s29
        s_addc_u32 s13, s11, 0
        s_mov_b32 s14, 8
        s_waitcnt lgkmcnt(0)
        v_mov_b32 v4, s64
        v_mov_b32 v5, s72
        buffer_store_dwordx2 v[4:5], v2, s[12:15], 0 offen
        """)
    R("L_rdone:")
    R("s_endpgm")

    body = P.finish() + C.finish() + Ld.finish()
    if verbose:
        print("consumer nops", C.nops, "instructions", len(C.ins))
    T = H + ["    " + l if not l.endswith(":") else l for l in body]
    T += [f".globl {K2}", ".p2align 8", f".type {K2},@function", f"{K2}:"]
    T += ["    " + l if not l.endswith(":") else l for l in R.finish()]
    ks = [(K1, 512, 256), (K2, 80, 80)]
    if probe:
        mode, fa, fb, mult = probe
        Q = Stream()
        Q(f"""
        s_cmp_ge_u32 s2, 1
        s_cbranch_scc1 L_pdone
        s_load_dwordx2 s[10:11], s[0:1], 96
        s_load_dwordx2 s[16:17], s[0:1], 88
        v_lshlrev_b32 v2, 6, v0
        s_waitcnt lgkmcnt(0)
        s_add_u32 s12, s10, {PROF_OFF}
        s_addc_u32 s13, s11, 0
        s_mov_b32 s14, 16384
        s_mov_b32 s15, 0x20000
        s_mov_b32 s18, 64
        s_mov_b32 s19, 0x20000
        """)
        for j in range(4):
            Q(f"s_mov_b32 s20, {j * 4096}")
            Q(f"buffer_load_dword v{8 + j}, v2, s[12:15], s20 offen offset:{4 * fa}")
            Q(f"buffer_load_dword v{12 + j}, v2, s[12:15], s20 offen offset:{4 * fb}")
        Q("s_waitcnt vmcnt(0)")
        Q("v_readfirstlane_b32 s21, v12")
        Q("s_sub_u32 s21, s21, 0x100000")
        for j in range(8):
            Q(f"v_subrev_u32 v{8 + j}, s21, v{8 + j}")
        if mode == "avg":
            for j in range(4):
                Q(f"v_sub_u32 v{8 + j}, v{8 + j}, v{12 + j}")
            Q("v_add_u32 v8, v8, v9\nv_add_u32 v10, v10, v11\nv_add_u32 v8, v8, v10\ns_mov_b32 s22, 0")
            for l in range(64):
                Q(f"v_readlane_b32 s23, v8, {l}\ns_add_u32 s22, s22, s23")
            Q("s_lshr_b32 s22, s22, 8")
        else:
            opa, opb = {"span": ("max", "min"), "gap": ("min", "max"), "maxmax": ("max", "max"), "minmin": ("min", "min")}[mode]
            Q(f"v_{opa}_u32 v8, v8, v9\nv_{opa}_u32 v10, v10, v11\nv_{opa}_u32 v8, v8, v10")
            Q(f"v_{opb}_u32 v12, v12, v13\nv_{opb}_u32 v14, v14, v15\nv_{opb}_u32 v12, v12, v14")
            Q("v_readlane_b32 s22, v8, 0\nv_readlane_b32 s24, v12, 0")
            for l in range(1, 64):
                Q(f"v_readlane_b32 s23, v8, {l}\ns_{opa}_u32 s22, s22, s23")
                Q(f"v_readlane_b32 s23, v12, {l}\ns_{opb}_u32 s24, s24, s23")
            Q("s_sub_u32 s22, s22, s24")
        Q(f"""
        s_min_u32 s22, s22, 10000
        v_mov_b32 v3, s22
        buffer_store_dword v3, v2, s[16:19], 0 offen
        s_mul_i32 s22, s22, {mult}
        s_memrealtime s[26:27]
        s_waitcnt lgkmcnt(0)
        L_spin:
        s_memrealtime s[28:29]
        s_waitcnt lgkmcnt(0)
        s_sub_u32 s30, s28, s26
        s_cmp_lt_u32 s30, s22
        s_cbranch_scc1 L_spin
        L_pdone:
        s_endpgm
        """)
        T += [".globl probe_kernel", ".p2align 8", ".type probe_kernel,@function", "probe_kernel:"]
        T += ["    " + l if not l.endswith(":") else l for l in Q.finish()]
        ks.append(("probe_kernel", 16, 16))
    if noop:
        T += [".globl noop_kernel", ".p2align 8", ".type noop_kernel,@function", "noop_kernel:", "    s_endpgm"]
        ks.append(("noop_kernel", 8, 8))
    if cpf:
        T += [".fill 3200, 4, 0xbf800000"]
    T += ['.section .rodata,"a"']
    for k, nv, ao in ks:
        T += [".p2align 6", f".amdhsa_kernel {k}", f"  .amdhsa_next_free_vgpr {nv}", "  .amdhsa_next_free_sgpr 102",
              f"  .amdhsa_accum_offset {ao}", "  .amdhsa_group_segment_fixed_size 0", "  .amdhsa_kernarg_size 104",
              "  .amdhsa_user_sgpr_count 2", "  .amdhsa_user_sgpr_kernarg_segment_ptr 1",
              "  .amdhsa_system_sgpr_workgroup_id_x 1", ".end_amdhsa_kernel"]
    return "\n".join(T) + "\n"


if __name__ == "__main__":
    out = sys.argv[1] if len(sys.argv) > 1 else f"cdna_kernels/{NAME}.s"
    kw = {}
    for a in sys.argv[2:]:
        k, v = a.split("=")
        kw[k] = eval(v) if v and (v[0].isdigit() or v[0] in "([" or v in ("True", "False")) else v
    open(out, "w").write(gen(verbose=True, **kw))
```

```python
import sys, math, struct
sys.path.insert(0, "dev")
from asmlib import Stream

NAME = "concat_heads__mha_block_cached__gqa_block_cached__near_ridge"
MF = "v_mfma_f32_32x32x16_bf16"
NSLOT = 10
PROF_OFF = 0x4000000
PB = [0, 4, 14, 20, 30, 38, 45, 53, 59]


def f32bits(x):
    return struct.unpack("<I", struct.pack("<f", x))[0]


def merge(a, b):
    out = []
    ia = ib = 0
    while ia < len(a) or ib < len(b):
        if ib >= len(b) or (ia < len(a) and ia * len(b) <= ib * len(a)):
            out.append(a[ia]); ia += 1
        else:
            out.append(b[ib]); ib += 1
    return out


def quarters(tiles):
    return [(t, q) for t in tiles for q in range(4)]


CONS = ([("wq", i) for i in range(14)] + [("k", i) for i in range(16)] + [("v0", i) for i in range(8)] +
        [("wo0", i) for i in range(7)] + [("v1", i) for i in range(8)] + [("wo1", i) for i in range(7)])
HARD = {("wq", 0), ("v0", 0), ("wo0", 0), ("wo1", 0)}


def load_order(kp=6):
    wq = [("wq", i) for i in range(14)]
    k = [("k", i) for i in range(16)]
    v0 = [("v0", i) for i in range(8)]
    v1 = [("v1", i) for i in range(8)]
    o0 = [("wo0", i) for i in range(7)]
    o1 = [("wo1", i) for i in range(7)]
    L = quarters(wq[:4]) + merge(quarters(wq[4:]), quarters(k[:kp])) + quarters(k[kp:])
    L += quarters(v0[:4]) + merge(quarters(v0[4:]), quarters(o0[:4]))
    L += merge(quarters(o0[4:]), quarters(v1[:3])) + quarters(v1[3:5])
    L += merge(quarters(o1[:5]), quarters(v1[5:])) + quarters(o1[5:])
    return L


def plan_loader(order, cap=60, stepmax=28):
    cidx = {t: i for i, t in enumerate(CONS)}
    slot = {}
    holder = {s: None for s in range(NSLOT)}
    for s in range(4, 10):
        holder[s] = "x"
    steps = []
    pos = 0
    issued = 0
    landed = 0
    endidx = {}
    cnt = {}
    for b in range(-1, len(CONS) - 1):
        if b >= 0:
            upto = b - 1 if CONS[b] in HARD else b - 2
            for s in holder:
                h = holder[s]
                if h == "x" or (h is not None and cidx[h] <= upto):
                    holder[s] = None
        nxt = CONS[b + 1]
        lst = []
        n = 0
        while pos < len(order):
            t, q = order[pos]
            forced = cnt.get(nxt, 0) < 4
            if not forced and (issued + 4 - landed > cap or (n + 4 > stepmax and b >= 0)):
                break
            if t not in slot:
                free = [s for s in holder if holder[s] is None]
                if not free:
                    assert not forced, ("deadlock", b, t, nxt)
                    break
                slot[t] = free[0]
                holder[free[0]] = t
            lst.append((t, q))
            issued += 4; n += 4
            cnt[t] = cnt.get(t, 0) + 1
            if cnt[t] == 4:
                endidx[t] = issued
            pos += 1
        w = issued - endidx[nxt]
        wait = None
        if endidx[nxt] > landed:
            wait = min(w, 63)
            landed = endidx[nxt]
        steps.append((lst, wait))
    assert pos == len(order)
    return slot, steps


def gen(kvpol="nt", wpol="nt", xpol="nt", stpol="sc1", rdpol="sc1", PD=4, prof=False, kp=6, cap=60, stepmax=28,
        order=None, verbose=False, noop=0, cpf=0, probe=None):
    order = order or load_order(kp)
    slot, steps = plan_loader(order, cap, stepmax)
    if verbose:
        for b, (lst, w) in enumerate(steps):
            print(b - 1, CONS[b], "slot", slot[CONS[b]], "wait", w, " ".join(f"{t[0]}{t[1]}.{q}" for t, q in lst))
    K1 = NAME + "_kernel"
    K2 = "reduce_kernel"
    H = []
    H.append(f"; @launch kernel={K1} grid=(256,1,1) block=(256,1,1) lds=163840")
    H.append(f"; @launch kernel={K2} grid=(336,1,1) block=(256,1,1) lds=0")
    if probe:
        H.append("; @launch kernel=probe_kernel grid=(1,1,1) block=(64,1,1) lds=0")
    for _ in range(noop):
        H.append(f"; @launch kernel=noop_kernel grid=(1,1,1) block=(64,1,1) lds=0")
    H.append('.amdgcn_target "amdgcn-amd-amdhsa--gfx950"')
    H += [".text", f".globl {K1}", ".p2align 8", f".type {K1},@function", f"{K1}:"]

    P = Stream()
    P("""
    s_cmp_ge_u32 s2, 256
    s_cbranch_scc1 L_done
    s_and_b32 s3, s2, 7
    s_lshr_b32 s4, s3, 2
    s_mul_i32 s5, s4, 40
    s_add_u32 s6, s0, s5
    s_addc_u32 s7, s1, 0
    s_load_dwordx8 s[8:15], s[6:7], 0
    s_load_dwordx2 s[16:17], s[6:7], 32
    s_load_dwordx2 s[24:25], s[0:1], 96
    """)
    if probe:
        P("s_memrealtime s[64:65]")
    P("""
    s_lshr_b32 s26, s2, 3
    s_and_b32 s27, s3, 3
    s_lshl_b32 s27, s27, 2
    s_and_b32 s28, s26, 3
    s_add_u32 s27, s27, s28
    s_lshr_b32 s28, s26, 2
    v_lshrrev_b32 v1, 6, v0
    v_and_b32 v0, 63, v0
    v_readfirstlane_b32 s30, v1
    """)
    if cpf:
        P(f"""
        s_getpc_b64 s[20:21]
        v_lshlrev_b32 v2, 7, v0
        v_lshl_add_u32 v2, v1, 13, v2
        """)
        for j in range(cpf):
            P(f"global_load_dword v{44 + j}, v2, s[20:21]")
            if j + 1 < cpf:
                P("v_add_u32 v2, 0x8000, v2")
    P("""
    s_cmp_eq_u32 s30, 3
    s_cbranch_scc1 L_loader
    """)

    C = Stream()
    C("""
    v_lshrrev_b32 v1, 3, v0
    v_mul_u32_u24 v1, 896, v1
    v_and_b32 v2, 7, v0
    v_lshrrev_b32 v3, 4, v0
    v_xor_b32 v2, v2, v3
    v_lshl_add_u32 v32, v2, 4, v1
    v_xor_b32 v33, 64, v32
    v_add_u32 v33, 6144, v33
    v_add_u32 v34, 12288, v32
    v_add_u32 v35, 12288, v33
    s_lshl_b32 s31, s30, 15
    s_add_u32 s31, s31, 65536
    s_mul_i32 s57, s30, 28672
    s_waitcnt lgkmcnt(0)
    s_mul_i32 s29, s28, 86016
    s_add_u32 s32, s8, s29
    s_addc_u32 s33, s9, 0
    s_mov_b32 s34, 86016
    s_mov_b32 s35, 0x20000
    """)
    for cb in range(7):
        C(f"s_add_u32 m0, s31, {cb * 4096}")
        if cb:
            C(f"s_add_u32 s57, s57, 128")
        for rg in range(4):
            C(f"buffer_load_dwordx4 v{32 + rg}, s[32:35], s57 offen offset:{rg * 1024} {xpol} lds")
    C("""
    v_and_b32 v1, 31, v0
    v_lshrrev_b32 v2, 5, v0
    v_bfe_u32 v3, v0, 1, 3
    v_xor_b32 v3, v3, v2
    v_lshlrev_b32 v3, 4, v3
    v_lshl_add_u32 v3, v1, 7, v3
    v_add_u32 v36, s31, v3
    v_xor_b32 v37, 32, v36
    v_xor_b32 v38, 64, v36
    v_xor_b32 v39, 96, v36
    """)
    C("""
    v_and_b32 v3, 15, v0
    v_xor_b32 v3, v3, v2
    v_lshlrev_b32 v3, 4, v3
    v_lshl_add_u32 v12, v1, 9, v3
    """)
    for j in range(1, 8):
        C(f"v_xor_b32 v{12 + j}, {32 * j}, v12")
    C("""
    v_bfe_u32 v4, v0, 2, 2
    v_and_b32 v5, 3, v0
    v_bfe_u32 v6, v0, 4, 1
    v_lshlrev_b32 v6, 5, v6
    v_lshl_add_u32 v7, v5, 3, v6
    v_and_b32 v3, 1, v0
    v_lshlrev_b32 v3, 4, v3
    v_bfe_u32 v5, v0, 1, 1
    v_lshl_add_u32 v3, v5, 3, v3
    v_add_u32 v6, v6, v3
    """)
    C("""
    v_lshl_add_u32 v3, v2, 3, v4
    v_lshlrev_b32 v3, 9, v3
    v_lshl_add_u32 v3, v4, 6, v3
    v_add_u32 v8, v3, v6
    v_xor_b32 v9, 64, v8
    v_xor_b32 v10, 128, v8
    v_xor_b32 v11, 192, v8
    v_lshl_add_u32 v5, v2, 2, v4
    v_lshlrev_b32 v3, 8, v5
    v_lshl_add_u32 v3, v4, 6, v3
    v_add_u32 v20, v3, v7
    v_xor_b32 v21, 64, v20
    v_xor_b32 v22, 128, v20
    v_xor_b32 v23, 192, v20
    v_lshlrev_b32 v3, 7, v5
    v_lshrrev_b32 v4, 1, v4
    v_lshl_add_u32 v3, v4, 6, v3
    v_add_u32 v24, v3, v6
    v_xor_b32 v25, 64, v24
    v_lshlrev_b32 v30, 4, v0
    """)
    C(f"""
    s_lshl_b32 s29, s4, 3
    s_add_u32 s29, s29, s28
    s_lshl_b32 s29, s29, 4
    s_add_u32 s29, s29, s27
    s_mul_i32 s29, s29, 3
    s_add_u32 s29, s29, s30
    s_mul_i32 s29, s29, 28672
    s_add_u32 s52, s24, s29
    s_addc_u32 s53, s25, 0
    s_mov_b32 s54, 28672
    s_mov_b32 s55, 0x20000
    s_mov_b32 s56, {f32bits(math.log2(math.e) / 16.0):#x}
    """)
    XF = 112
    for cb in range(7):
        C(f"s_waitcnt vmcnt({24 - 4 * cb})")
        for i in range(4):
            s = 4 * cb + i
            C(f"ds_read_b128 a[{XF + 4 * s}:{XF + 4 * s + 3}], v{36 + i} offset:{cb * 4096}")
    C("s_waitcnt lgkmcnt(0)")

    M = []
    win = {"q": 0, "k": 0, "v": 0, "o": 0}
    aregs = {"q": range(8, 12), "k": range(12, 20), "v": range(20, 24), "o": range(24, 26)}

    def rng(p, a, n):
        return f"{p}[{a}:{a + n - 1}]"

    def add(tile, aset, rd, d, dk, b, first):
        M.append(dict(tile=tile, aset=aset, rd=rd, d=rng(dk, d, 16), b=b, first=first))

    def sreg(t):
        return ("v", 32 + 16 * t) if t < 14 else ("a", 64 + 16 * (t - 14))

    marks = {}
    for i in range(14):
        seq = [(ks, dt) for ks in range(2) for dt in range(8)] if i < 13 else [(ks, dt) for dt in range(8) for ks in range(2)]
        for ks, dt in seq:
            o = (dt >> 2) * 256 + ks * 8192
            add(("wq", i), "q", [("tr", 8 + (dt & 3), o), ("tr", 8 + (dt & 3), o + 2048)], 128 + 16 * dt, "v",
                rng("a", XF + 4 * (2 * i + ks), 4), i == 0 and ks == 0)
            marks[("q", dt)] = len(M) - 1
    for t in range(16):
        dk, d = sreg(t)
        for s in range(16):
            add(("k", t), "k", [("b128", 12 + (s & 7), (s >> 3) * 256)], d, dk, rng("a", 4 * s, 4), s == 0)
            marks[("s", t, s)] = len(M) - 1
    for h in range(2):
        for i in range(8):
            seq = [(ka, dt) for ka in range(4) for dt in range(4)] if i < 7 else [(ka, dt) for dt in range(4) for ka in range(4)]
            for ka, dt in seq:
                t = 2 * i + (ka >> 1)
                o = ka * 4096
                dk, d = ("a", 16 * dt) if h == 0 else ("v", 160 + 16 * dt)
                add((f"v{h}", i), "v", [("tr", 20 + dt, o), ("tr", 20 + dt, o + 2048)], d, dk,
                    rng("v", 32 + 8 * t + 4 * (ka & 1), 4), i == 0 and ka == 0)
                marks[("pv", h, i, ka)] = min(marks.get(("pv", h, i, ka), 1 << 30), len(M) - 1)
                marks[("o", h, dt)] = len(M) - 1
        for i in range(7):
            for nt in range(2):
                T = 2 * i + nt
                acc = 16 * ((T + 4) % 14)
                for ka in range(8):
                    o = ka * 2048
                    add((f"wo{h}", i), "o", [("tr", 24 + nt, o), ("tr", 24 + nt, o + 1024)], acc, "a",
                        rng("v", 224 + 4 * ka, 4), h == 0 and ka == 0)
                    marks[("op", h, T, ka)] = len(M) - 1
    N = len(M)
    assert N == 960

    F = []

    def fill(ready, dead, text, cost=4):
        F.append((ready, dead, cost, text))

    for dt in range(8):
        r = marks[("q", dt)] + 2
        for g in range(2):
            dl = marks[("s", 0, 2 * dt + g)]
            for j in range(4):
                a = 128 + 16 * dt + 8 * g + 2 * j
                fill(r, dl, f"v_cvt_pk_bf16_f32 v{a}, v{a}, v{a + 1}")
            for j in range(4):
                a = 128 + 16 * dt + 8 * g + 2 * j
                fill(r, dl, f"v_accvgpr_write_b32 a{4 * (2 * dt + g) + j}, v{a}")
    pv0 = marks[("pv", 0, 0, 0)]
    for t in range(16):
        r = marks[("s", t, 15)] + 2
        dk, d = sreg(t)
        for j in range(8):
            if dk == "v":
                x, y = f"v{d + 2 * j}", f"v{d + 2 * j + 1}"
            else:
                x, y = f"v{1 + (j & 1) * 2}", f"v{2 + (j & 1) * 2}"
                fill(r, pv0, f"v_accvgpr_read_b32 {x}, a{d + 2 * j}")
                fill(r, pv0, f"v_accvgpr_read_b32 {y}, a{d + 2 * j + 1}")
            if t == 0 and j == 0:
                fill(r, pv0, f"v_max_f32 v26, {x}, {y}")
            else:
                fill(r, pv0, f"v_max3_f32 v26, v26, {x}, {y}")
    r = marks[("s", 15, 15)] + 2
    for txt in ["v_mov_b32 v27, v26", "v_permlane32_swap_b32 v26, v27", "v_max_f32 v26, v26, v27",
                "v_mul_f32 v26, s56, v26"]:
        fill(r, pv0, txt)
    for t in range(16):
        dk, d = sreg(t)
        for g in range(2):
            i, ka = t >> 1, (t & 1) * 2 + g
            dl = pv0 if i == 0 else marks[("pv", 0, i - 1, 0)] + 3 * (ka + 1)
            tmp = [1, 2, 3, 4, 5, 6, 7, 31]
            src = []
            for j in range(8):
                if dk == "v":
                    src.append(d + 8 * g + j)
                else:
                    src.append(tmp[j])
                    fill(r, dl, f"v_accvgpr_read_b32 v{tmp[j]}, a{d + 8 * g + j}")
            for j in range(8):
                fill(r, dl, f"v_fma_f32 v{src[j]}, v{src[j]}, s56, -v26")
                if j:
                    fill(r, dl, f"v_exp_f32 v{src[j - 1]}, v{src[j - 1]}", 8)
            fill(r, dl, f"v_exp_f32 v{src[7]}, v{src[7]}", 8)
            for j in range(8):
                acc = 27 + (j & 1)
                if t == 0 and g == 0 and j < 2:
                    fill(r, dl, f"v_mov_b32 v{acc}, v{src[j]}")
                else:
                    fill(r, dl, f"v_add_f32 v{acc}, v{acc}, v{src[j]}")
            for j in range(4):
                fill(r, dl, f"v_cvt_pk_bf16_f32 v{32 + 8 * t + 4 * g + j}, v{src[2 * j]}, v{src[2 * j + 1]}")
    op0 = marks[("op", 0, 0, 0)]
    for txt, c in [("v_add_f32 v27, v27, v28", 4), ("v_mov_b32 v28, v27", 4), ("v_permlane32_swap_b32 v27, v28", 4),
                   ("v_add_f32 v27, v27, v28", 4), ("v_rcp_f32 v29, v27", 8)]:
        fill(r, op0, txt, c)
    for h in range(2):
        for dt in range(4):
            r = marks[("o", h, dt)] + 2
            for g in range(2):
                dl = marks[("op", h, 0, 2 * dt + g)]
                for j in range(8):
                    e = 16 * dt + 8 * g + j
                    if h == 0:
                        fill(r, dl, f"v_accvgpr_read_b32 v{160 + e}, a{e}")
                for j in range(8):
                    e = 160 + 16 * dt + 8 * g + j
                    fill(r, dl, f"v_mul_f32 v{e}, v29, v{e}")
                for j in range(4):
                    e = 160 + 16 * dt + 8 * g + 2 * j
                    fill(r, dl, f"v_cvt_pk_bf16_f32 v{224 + 4 * (2 * dt + g) + j}, v{e}, v{e + 1}")
    for T in range(14):
        r = marks[("op", 1, T, 7)] + 2
        acc = 16 * ((T + 4) % 14)
        tb = 32 + 32 * (T % 4)
        for g in range(2):
            for j in range(8):
                fill(r, N, f"v_accvgpr_read_b32 v{tb + 8 * g + j}, a{acc + 8 * g + j}")
            for j in range(4):
                fill(r, N, f"v_cvt_pk_bf16_f32 v{tb + 16 + 4 * g + j}, v{tb + 8 * g + 2 * j}, v{tb + 8 * g + 2 * j + 1}")
            tg = 2 * T + g
            if tg % 4 == 0:
                fill(r, N, f"s_mov_b32 s58, {tg * 1024}")
            fill(r, N, f"buffer_store_dwordx4 v[{tb + 16 + 4 * g}:{tb + 19 + 4 * g}], v30, s[52:55], s58 offen offset:{(tg % 4) * 1024} {stpol}", 8)

    nbar = [0]
    rd_ptr = 0
    fp = 0

    def emit_reads(j):
        m = M[j]
        cost = 0
        if j == 0 or M[j - 1]["tile"] != m["tile"]:
            assert CONS[nbar[0]] == m["tile"]
            C("s_barrier")
            nbar[0] += 1
            w = (slot[m["tile"]] // 4) * 65536
            a = m["aset"]
            if w != win[a]:
                for rg in aregs[a]:
                    if w > win[a]:
                        C(f"v_add_u32 v{rg}, {w - win[a]:#x}, v{rg}")
                    else:
                        C(f"v_subrev_u32 v{rg}, {win[a] - w:#x}, v{rg}")
                    cost += 4
                win[a] = w
        base = (slot[m["tile"]] % 4) * 16384
        ring = 224 + 4 * (j % 8)
        for n, (kind, ar, o) in enumerate(m["rd"]):
            if kind == "tr":
                C(f"ds_read_b64_tr_b16 a[{ring + 2 * n}:{ring + 2 * n + 1}], v{ar} offset:{base + o}")
            else:
                C(f"ds_read_b128 a[{ring}:{ring + 3}], v{ar} offset:{base + o}")
            cost += 4
        return cost

    def seg_start(j):
        return (j == 0 or M[j - 1]["tile"] != M[j]["tile"]) and M[j]["tile"] in HARD

    for i in range(N):
        m = M[i]
        if seg_start(i):
            while fp < len(F) and any(f[1] <= i for f in F[fp:fp + 400]):
                assert F[fp][0] - 2 < i
                C(F[fp][3]); fp += 1
            assert rd_ptr == i
            while rd_ptr < min(N, i + PD):
                emit_reads(rd_ptr); rd_ptr += 1
        while fp < len(F) and any(f[1] <= i for f in F[fp:fp + 400]):
            assert F[fp][0] - 2 < i
            C(F[fp][3]); fp += 1
        ring = 224 + 4 * (i % 8)
        c = "0" if m["first"] else m["d"]
        C(f"{MF} {m['d']}, a[{ring}:{ring + 3}], {m['b']}, {c}")
        budget = 24
        if rd_ptr < N and rd_ptr <= i + PD and not seg_start(rd_ptr):
            budget -= emit_reads(rd_ptr); rd_ptr += 1
        budget -= 4
        while fp < len(F) and F[fp][0] <= i and budget >= F[fp][2]:
            budget -= F[fp][2]
            C(F[fp][3]); fp += 1
    while fp < len(F):
        C(F[fp][3]); fp += 1
    assert nbar[0] == len(CONS)
    if prof:
        C(f"""
        s_waitcnt vmcnt(0)
        s_memtime s[60:61]
        s_waitcnt lgkmcnt(0)
        s_lshl_b32 s29, s2, 10
        s_lshl_b32 s31, s30, 2
        s_add_u32 s29, s29, s31
        s_add_u32 s29, s29, {PROF_OFF + 512}
        s_add_u32 s52, s24, s29
        s_addc_u32 s53, s25, 0
        s_mov_b32 s54, 4
        v_mov_b32 v1, s60
        v_lshlrev_b32 v2, 2, v0
        buffer_store_dword v1, v2, s[52:55], 0 offen
        """)
    if probe:
        C(f"""
        s_waitcnt vmcnt(0)
        s_memrealtime s[72:73]
        s_lshl_b32 s29, s2, 6
        s_add_u32 s29, s29, {PROF_OFF}
        s_add_u32 s52, s24, s29
        s_addc_u32 s53, s25, 0
        s_mov_b32 s54, 8
        s_waitcnt lgkmcnt(0)
        v_mov_b32 v4, s64
        v_mov_b32 v5, s72
        buffer_store_dwordx2 v[4:5], v30, s[52:55], 0 offen
        """)
    C("s_endpgm")

    Ld = Stream()
    Ld("L_loader:")
    if prof:
        Ld("s_memtime s[62:63]")
    Ld("""
    v_lshrrev_b32 v1, 5, v0
    v_and_b32 v2, 31, v0
    v_lshrrev_b32 v3, 2, v2
    v_xor_b32 v3, v3, v1
    v_and_b32 v4, 3, v0
    v_lshlrev_b32 v4, 4, v4
    v_lshl_add_u32 v3, v3, 6, v4
    v_lshl_add_u32 v8, v1, 13, v3
    v_xor_b32 v9, 128, v8
    v_add_u32 v9, 15360, v9
    v_add_u32 v10, 30720, v8
    v_add_u32 v11, 30720, v9
    s_waitcnt lgkmcnt(0)
    s_lshl_b32 s29, s27, 9
    s_add_u32 s44, s14, s29
    s_addc_u32 s45, s15, 0
    s_sub_u32 s46, 3670016, s29
    s_mov_b32 s47, 0x20000
    """)
    setup2 = """
    v_xor_b32 v3, v2, v1
    v_lshlrev_b32 v3, 4, v3
    v_lshl_add_u32 v12, v1, 9, v3
    """ + "\n".join(f"v_xor_b32 v{12 + j}, {32 * j}, v12" for j in range(1, 8)) + """
    v_lshrrev_b32 v1, 4, v0
    v_bfe_u32 v3, v0, 2, 2
    v_xor_b32 v3, v3, v1
    v_lshl_add_u32 v3, v3, 6, v4
    v_lshl_add_u32 v20, v1, 9, v3
    v_add_u32 v21, 1024, v20
    v_add_u32 v22, 2048, v20
    v_add_u32 v23, 3072, v20
    v_lshrrev_b32 v2, 3, v0
    v_mul_u32_u24 v2, 896, v2
    v_bfe_u32 v3, v0, 2, 1
    v_and_b32 v1, 1, v1
    v_xor_b32 v3, v3, v1
    v_lshl_add_u32 v3, v3, 6, v4
    v_add_u32 v24, v2, v3
    v_add_u32 v25, 6144, v24
    v_add_u32 v26, 12288, v24
    v_add_u32 v27, 18432, v24
    s_lshl_b32 s29, s28, 4
    s_add_u32 s29, s29, s27
    s_lshl_b32 s29, s29, 18
    s_add_u32 s36, s10, s29
    s_addc_u32 s37, s11, 0
    s_mov_b32 s38, 262144
    s_mov_b32 s39, 0x20000
    s_add_u32 s40, s12, s29
    s_addc_u32 s41, s13, 0
    s_mov_b32 s42, 262144
    s_mov_b32 s43, 0x20000
    s_mul_i32 s29, s27, 229376
    s_add_u32 s48, s16, s29
    s_addc_u32 s49, s17, 0
    s_mov_b32 s50, 229376
    s_mov_b32 s51, 0x20000
    """

    def issue(t, q):
        kind, i = t
        Ld(f"s_mov_b32 m0, {slot[t] * 16384 + q * 4096}")
        if kind == "wq":
            so, srd, vb, pol = i * 262144 + q * 65536, 44, 8, wpol
        elif kind == "k":
            so, srd, vb, pol = i * 16384 + q * 4096, 36, 12 + 4 * (q & 1), kvpol
        elif kind[0] == "v":
            so, srd, vb, pol = int(kind[1]) * 256 + i * 32768 + q * 8192, 40, 20, kvpol
        else:
            so, srd, vb, pol = (int(kind[2]) * 128 + q * 32) * 896 + i * 128, 48, 24, wpol
        Ld(f"s_mov_b32 s31, {so}")
        for p in range(4):
            Ld(f"buffer_load_dwordx4 v{vb + p}, s[{srd}:{srd + 3}], s31 offen offset:{p * 1024} {pol} lds")

    def stamp(idx):
        if prof:
            Ld(f"s_memtime s[60:61]\ns_waitcnt lgkmcnt(0)\nv_writelane_b32 v{40 + idx // 64}, s60, {idx % 64}")

    for b, (lst, wait) in enumerate(steps):
        for t, q in lst:
            if b == 0:
                assert t[0] == "wq"
            issue(t, q)
        if b == 0:
            Ld(setup2)
        if wait is not None:
            Ld(f"s_waitcnt vmcnt({wait})")
        stamp(2 * b)
        Ld("s_barrier")
        stamp(2 * b + 1)
        if probe and b in PB:
            Ld(f"s_memrealtime s[{66 + 2 * PB.index(b)}:{67 + 2 * PB.index(b)}]")
    if probe:
        Ld(f"""
        s_lshl_b32 s29, s2, 6
        s_add_u32 s29, s29, {PROF_OFF + 8}
        s_add_u32 s52, s24, s29
        s_addc_u32 s53, s25, 0
        s_mov_b32 s54, 48
        s_mov_b32 s55, 0x20000
        s_waitcnt lgkmcnt(0)
        """)
        for j in range(len(PB)):
            Ld(f"v_writelane_b32 v40, s{66 + 2 * j}, {j}")
        Ld("v_lshlrev_b32 v2, 2, v0\nbuffer_store_dword v40, v2, s[52:55], 0 offen")
    if prof:
        Ld(f"""
        v_writelane_b32 v41, s62, 63
        s_lshl_b32 s29, s2, 10
        s_add_u32 s29, s29, {PROF_OFF}
        s_add_u32 s52, s24, s29
        s_addc_u32 s53, s25, 0
        s_mov_b32 s54, 512
        s_mov_b32 s55, 0x20000
        v_lshlrev_b32 v2, 2, v0
        buffer_store_dword v40, v2, s[52:55], 0 offen
        buffer_store_dword v41, v2, s[52:55], 0 offen offset:256
        """)
    Ld("L_done:")
    Ld("s_endpgm")

    R = Stream()
    R(f"""
    s_cmp_ge_u32 s2, 336
    s_cbranch_scc1 L_rdone
    s_load_dwordx2 s[8:9], s[0:1], 80
    s_load_dwordx2 s[10:11], s[0:1], 96
    """)
    if probe:
        R("s_memrealtime s[64:65]")
    R(f"""
    v_lshrrev_b32 v1, 6, v0
    v_and_b32 v0, 63, v0
    v_readfirstlane_b32 s30, v1
    s_mul_i32 s3, s2, 3121
    s_lshr_b32 s3, s3, 16
    s_mul_i32 s4, s3, 21
    s_sub_u32 s4, s2, s4
    s_lshl_b32 s4, s4, 2
    s_add_u32 s4, s4, s30
    v_lshlrev_b32 v2, 4, v0
    s_mul_i32 s5, s3, 1376256
    s_lshl_b32 s6, s4, 10
    s_waitcnt lgkmcnt(0)
    s_add_u32 s12, s10, s5
    s_addc_u32 s13, s11, 0
    s_mov_b32 s14, 1376256
    s_mov_b32 s15, 0x20000
    """)
    for h in range(16):
        R(f"buffer_load_dwordx4 v[{16 + 4 * h}:{19 + 4 * h}], v2, s[12:15], s6 offen {rdpol}")
        if h < 15:
            R("s_add_u32 s6, s6, 86016")
    R("""
    s_mov_b32 s16, s8
    s_mov_b32 s17, s9
    s_mov_b32 s18, 1376256
    s_mov_b32 s19, 0x20000
    s_cmp_ge_u32 s4, 28
    s_cselect_b32 s20, 1, 0
    s_cmp_ge_u32 s4, 56
    s_cselect_b32 s20, 2, s20
    s_mul_i32 s21, s20, 28
    s_sub_u32 s21, s4, s21
    s_and_b32 s22, s3, 7
    s_mul_i32 s22, s22, 3
    s_add_u32 s22, s22, s20
    s_mul_i32 s22, s22, 57344
    s_lshr_b32 s23, s3, 3
    s_mul_i32 s23, s23, 896
    s_add_u32 s22, s22, s23
    s_lshl_b32 s21, s21, 5
    s_add_u32 s22, s22, s21
    v_and_b32 v3, 31, v0
    v_mul_u32_u24 v3, 1792, v3
    v_lshrrev_b32 v4, 5, v0
    v_lshl_add_u32 v3, v4, 4, v3
    """)
    for h in range(16):
        R(f"s_waitcnt vmcnt({15 - h})")
        for j in range(4):
            x = 16 + 4 * h + j
            if h == 0:
                R(f"v_lshlrev_b32 v{8 + 2 * j}, 16, v{x}")
                R(f"v_and_b32 v{9 + 2 * j}, 0xffff0000, v{x}")
            else:
                R(f"v_lshlrev_b32 v5, 16, v{x}")
                R(f"v_and_b32 v6, 0xffff0000, v{x}")
                R(f"v_add_f32 v{8 + 2 * j}, v{8 + 2 * j}, v5")
                R(f"v_add_f32 v{9 + 2 * j}, v{9 + 2 * j}, v6")
    for j in range(4):
        R(f"v_cvt_pk_bf16_f32 v{4 + j}, v{8 + 2 * j}, v{9 + 2 * j}")
    R("buffer_store_dwordx4 v[4:7], v3, s[16:19], s22 offen")
    if probe:
        R(f"""
        s_waitcnt vmcnt(0)
        s_memrealtime s[72:73]
        s_and_b32 s29, s2, 255
        s_lshl_b32 s29, s29, 6
        s_add_u32 s29, s29, {PROF_OFF + 56}
        s_add_u32 s12, s10, s29
        s_addc_u32 s13, s11, 0
        s_mov_b32 s14, 8
        s_waitcnt lgkmcnt(0)
        v_mov_b32 v4, s64
        v_mov_b32 v5, s72
        buffer_store_dwordx2 v[4:5], v2, s[12:15], 0 offen
        """)
    R("L_rdone:")
    R("s_endpgm")

    body = P.finish() + C.finish() + Ld.finish()
    if verbose:
        print("consumer nops", C.nops, "instructions", len(C.ins))
    T = H + ["    " + l if not l.endswith(":") else l for l in body]
    T += [f".globl {K2}", ".p2align 8", f".type {K2},@function", f"{K2}:"]
    T += ["    " + l if not l.endswith(":") else l for l in R.finish()]
    ks = [(K1, 512, 256), (K2, 80, 80)]
    if probe:
        items, mult = probe
        if items == "all":
            items = [("span", 1, 0)] + [("avg", f, 0) for f in range(2, 11)] + [("avg", 1, 0), ("span", 0, 0), ("gap", 14, 1), ("span", 15, 14), ("span", 9, 9), ("span", 1, 1)]
        Q = Stream()
        Q(f"""
        s_cmp_ge_u32 s2, 1
        s_cbranch_scc1 L_pdone
        s_load_dwordx2 s[10:11], s[0:1], 96
        s_load_dwordx2 s[16:17], s[0:1], 88
        v_lshlrev_b32 v2, 6, v0
        v_mov_b32 v3, 0
        s_waitcnt lgkmcnt(0)
        s_add_u32 s12, s10, {PROF_OFF}
        s_addc_u32 s13, s11, 0
        s_mov_b32 s14, 16384
        s_mov_b32 s15, 0x20000
        s_mov_b32 s18, 64
        s_mov_b32 s19, 0x20000
        """)
        for n, (mode, fa, fb) in enumerate(items):
            for j in range(4):
                Q(f"s_mov_b32 s20, {j * 4096}")
                Q(f"buffer_load_dword v{8 + j}, v2, s[12:15], s20 offen offset:{4 * fa}")
                Q(f"buffer_load_dword v{12 + j}, v2, s[12:15], s20 offen offset:{4 * fb}")
            Q("s_waitcnt vmcnt(0)")
            Q("v_readfirstlane_b32 s21, v12")
            Q("s_sub_u32 s21, s21, 0x100000")
            for j in range(8):
                Q(f"v_subrev_u32 v{8 + j}, s21, v{8 + j}")
            Q("s_mov_b32 s25, 0")
            if mode == "avg":
                for j in range(4):
                    Q(f"v_sub_u32 v{8 + j}, v{8 + j}, v{12 + j}")
                Q("v_add_u32 v8, v8, v9\nv_add_u32 v10, v10, v11\nv_add_u32 v8, v8, v10\ns_mov_b32 s22, 0\ns_nop 4")
                Q(f"L_pl{n}:")
                Q(f"v_readlane_b32 s23, v8, s25\ns_add_u32 s22, s22, s23")
                Q(f"s_add_u32 s25, s25, 1\ns_cmp_lt_u32 s25, 64\ns_cbranch_scc1 L_pl{n}")
                Q("s_lshr_b32 s22, s22, 8")
            else:
                opa, opb = {"span": ("max", "min"), "gap": ("min", "max"), "maxmax": ("max", "max"), "minmin": ("min", "min")}[mode]
                Q(f"v_{opa}_u32 v8, v8, v9\nv_{opa}_u32 v10, v10, v11\nv_{opa}_u32 v8, v8, v10")
                Q(f"v_{opb}_u32 v12, v12, v13\nv_{opb}_u32 v14, v14, v15\nv_{opb}_u32 v12, v12, v14")
                Q("v_readlane_b32 s22, v8, 0\nv_readlane_b32 s24, v12, 0")
                Q(f"L_pl{n}:")
                Q(f"v_readlane_b32 s23, v8, s25\ns_{opa}_u32 s22, s22, s23")
                Q(f"v_readlane_b32 s23, v12, s25\ns_{opb}_u32 s24, s24, s23")
                Q(f"s_add_u32 s25, s25, 1\ns_cmp_lt_u32 s25, 64\ns_cbranch_scc1 L_pl{n}")
                Q("s_sub_u32 s22, s22, s24")
            Q(f"s_min_u32 s22, s22, 10000\nv_writelane_b32 v3, s22, {n}")
            if n == 0:
                Q(f"s_mul_i32 s40, s22, {mult}")
        Q(f"""
        v_lshlrev_b32 v2, 2, v0
        buffer_store_dword v3, v2, s[16:19], 0 offen
        s_memrealtime s[26:27]
        s_waitcnt lgkmcnt(0)
        L_spin:
        s_memrealtime s[28:29]
        s_waitcnt lgkmcnt(0)
        s_sub_u32 s30, s28, s26
        s_cmp_lt_u32 s30, s40
        s_cbranch_scc1 L_spin
        L_pdone:
        s_endpgm
        """)
        T += [".globl probe_kernel", ".p2align 8", ".type probe_kernel,@function", "probe_kernel:"]
        T += ["    " + l if not l.endswith(":") else l for l in Q.finish()]
        ks.append(("probe_kernel", 16, 16))
    if noop:
        T += [".globl noop_kernel", ".p2align 8", ".type noop_kernel,@function", "noop_kernel:", "    s_endpgm"]
        ks.append(("noop_kernel", 8, 8))
    if cpf:
        T += [".fill 3200, 4, 0xbf800000"]
    T += ['.section .rodata,"a"']
    for k, nv, ao in ks:
        T += [".p2align 6", f".amdhsa_kernel {k}", f"  .amdhsa_next_free_vgpr {nv}", "  .amdhsa_next_free_sgpr 102",
              f"  .amdhsa_accum_offset {ao}", "  .amdhsa_group_segment_fixed_size 0", "  .amdhsa_kernarg_size 104",
              "  .amdhsa_user_sgpr_count 2", "  .amdhsa_user_sgpr_kernarg_segment_ptr 1",
              "  .amdhsa_system_sgpr_workgroup_id_x 1", ".end_amdhsa_kernel"]
    return "\n".join(T) + "\n"


if __name__ == "__main__":
    out = sys.argv[1] if len(sys.argv) > 1 else f"cdna_kernels/{NAME}.s"
    kw = {}
    for a in sys.argv[2:]:
        k, v = a.split("=", 1); v = v.replace("+", " ")
        kw[k] = eval(v) if v and (v[0].isdigit() or v[0] in "([" or v in ("True", "False")) else v
    open(out, "w").write(gen(verbose=True, **kw))
```

```python
import sys, math, struct
sys.path.insert(0, "dev")
from asmlib import Stream

NAME = "concat_heads__mha_block_cached__gqa_block_cached__near_ridge"
MF = "v_mfma_f32_32x32x16_bf16"
NSLOT = 10
PROF_OFF = 0x4000000
PB = [0, 4, 14, 20, 30, 38, 45, 53, 59]


def f32bits(x):
    return struct.unpack("<I", struct.pack("<f", x))[0]


def merge(a, b):
    out = []
    ia = ib = 0
    while ia < len(a) or ib < len(b):
        if ib >= len(b) or (ia < len(a) and ia * len(b) <= ib * len(a)):
            out.append(a[ia]); ia += 1
        else:
            out.append(b[ib]); ib += 1
    return out


def quarters(tiles):
    return [(t, q) for t in tiles for q in range(4)]


CONS = ([("wq", i) for i in range(14)] + [("k", i) for i in range(16)] + [("v0", i) for i in range(8)] +
        [("wo0", i) for i in range(7)] + [("v1", i) for i in range(8)] + [("wo1", i) for i in range(7)])
HARD = {("wq", 0), ("v0", 0), ("wo0", 0), ("wo1", 0)}


def load_order(kp=6):
    wq = [("wq", i) for i in range(14)]
    k = [("k", i) for i in range(16)]
    v0 = [("v0", i) for i in range(8)]
    v1 = [("v1", i) for i in range(8)]
    o0 = [("wo0", i) for i in range(7)]
    o1 = [("wo1", i) for i in range(7)]
    L = quarters(wq[:4]) + merge(quarters(wq[4:]), quarters(k[:kp])) + quarters(k[kp:])
    L += quarters(v0[:4]) + merge(quarters(v0[4:]), quarters(o0[:4]))
    L += merge(quarters(o0[4:]), quarters(v1[:3])) + quarters(v1[3:5])
    L += merge(quarters(o1[:5]), quarters(v1[5:])) + quarters(o1[5:])
    return L


def plan_loader(order, cap=60, stepmax=28):
    cidx = {t: i for i, t in enumerate(CONS)}
    slot = {}
    holder = {s: None for s in range(NSLOT)}
    for s in range(4, 10):
        holder[s] = "x"
    steps = []
    pos = 0
    issued = 0
    landed = 0
    endidx = {}
    cnt = {}
    for b in range(-1, len(CONS) - 1):
        if b >= 0:
            upto = b - 1 if CONS[b] in HARD else b - 2
            for s in holder:
                h = holder[s]
                if h == "x" or (h is not None and cidx[h] <= upto):
                    holder[s] = None
        nxt = CONS[b + 1]
        lst = []
        n = 0
        while pos < len(order):
            t, q = order[pos]
            forced = cnt.get(nxt, 0) < 4
            if not forced and (issued + 4 - landed > cap or (n + 4 > stepmax and b >= 0)):
                break
            if t not in slot:
                free = [s for s in holder if holder[s] is None]
                if not free:
                    assert not forced, ("deadlock", b, t, nxt)
                    break
                slot[t] = free[0]
                holder[free[0]] = t
            lst.append((t, q))
            issued += 4; n += 4
            cnt[t] = cnt.get(t, 0) + 1
            if cnt[t] == 4:
                endidx[t] = issued
            pos += 1
        w = issued - endidx[nxt]
        wait = None
        if endidx[nxt] > landed:
            wait = min(w, 63)
            landed = endidx[nxt]
        steps.append((lst, wait))
    assert pos == len(order)
    return slot, steps


def gen(kvpol="nt", wpol="nt", xpol="nt", stpol="sc1", rdpol="sc1", PD=4, prof=False, kp=6, cap=60, stepmax=28,
        order=None, verbose=False, noop=0, cpf=0, probe=None, clk='rt'):
    order = order or load_order(kp)
    slot, steps = plan_loader(order, cap, stepmax)
    if verbose:
        for b, (lst, w) in enumerate(steps):
            print(b - 1, CONS[b], "slot", slot[CONS[b]], "wait", w, " ".join(f"{t[0]}{t[1]}.{q}" for t, q in lst))
    K1 = NAME + "_kernel"
    K2 = "reduce_kernel"
    H = []
    H.append(f"; @launch kernel={K1} grid=(256,1,1) block=(256,1,1) lds=163840")
    H.append(f"; @launch kernel={K2} grid=(336,1,1) block=(256,1,1) lds=0")
    if probe:
        H.append("; @launch kernel=probe_kernel grid=(1,1,1) block=(64,1,1) lds=0")
    for _ in range(noop):
        H.append(f"; @launch kernel=noop_kernel grid=(1,1,1) block=(64,1,1) lds=0")
    H.append('.amdgcn_target "amdgcn-amd-amdhsa--gfx950"')
    H += [".text", f".globl {K1}", ".p2align 8", f".type {K1},@function", f"{K1}:"]

    P = Stream()
    P("""
    s_cmp_ge_u32 s2, 256
    s_cbranch_scc1 L_done
    s_and_b32 s3, s2, 7
    s_lshr_b32 s4, s3, 2
    s_mul_i32 s5, s4, 40
    s_add_u32 s6, s0, s5
    s_addc_u32 s7, s1, 0
    s_load_dwordx8 s[8:15], s[6:7], 0
    s_load_dwordx2 s[16:17], s[6:7], 32
    s_load_dwordx2 s[24:25], s[0:1], 96
    """)
    if probe:
        P("s_memrealtime s[64:65]")
    P("""
    s_lshr_b32 s26, s2, 3
    s_and_b32 s27, s3, 3
    s_lshl_b32 s27, s27, 2
    s_and_b32 s28, s26, 3
    s_add_u32 s27, s27, s28
    s_lshr_b32 s28, s26, 2
    v_lshrrev_b32 v1, 6, v0
    v_and_b32 v0, 63, v0
    v_readfirstlane_b32 s30, v1
    """)
    if cpf:
        P(f"""
        s_getpc_b64 s[20:21]
        v_lshlrev_b32 v2, 7, v0
        v_lshl_add_u32 v2, v1, 13, v2
        """)
        for j in range(cpf):
            P(f"global_load_dword v{44 + j}, v2, s[20:21]")
            if j + 1 < cpf:
                P("v_add_u32 v2, 0x8000, v2")
    P("""
    s_cmp_eq_u32 s30, 3
    s_cbranch_scc1 L_loader
    """)

    C = Stream()
    C("""
    v_lshrrev_b32 v1, 3, v0
    v_mul_u32_u24 v1, 896, v1
    v_and_b32 v2, 7, v0
    v_lshrrev_b32 v3, 4, v0
    v_xor_b32 v2, v2, v3
    v_lshl_add_u32 v32, v2, 4, v1
    v_xor_b32 v33, 64, v32
    v_add_u32 v33, 6144, v33
    v_add_u32 v34, 12288, v32
    v_add_u32 v35, 12288, v33
    s_lshl_b32 s31, s30, 15
    s_add_u32 s31, s31, 65536
    s_mul_i32 s57, s30, 28672
    s_waitcnt lgkmcnt(0)
    s_mul_i32 s29, s28, 86016
    s_add_u32 s32, s8, s29
    s_addc_u32 s33, s9, 0
    s_mov_b32 s34, 86016
    s_mov_b32 s35, 0x20000
    """)
    for cb in range(7):
        C(f"s_add_u32 m0, s31, {cb * 4096}")
        if cb:
            C(f"s_add_u32 s57, s57, 128")
        for rg in range(4):
            C(f"buffer_load_dwordx4 v{32 + rg}, s[32:35], s57 offen offset:{rg * 1024} {xpol} lds")
    C("""
    v_and_b32 v1, 31, v0
    v_lshrrev_b32 v2, 5, v0
    v_bfe_u32 v3, v0, 1, 3
    v_xor_b32 v3, v3, v2
    v_lshlrev_b32 v3, 4, v3
    v_lshl_add_u32 v3, v1, 7, v3
    v_add_u32 v36, s31, v3
    v_xor_b32 v37, 32, v36
    v_xor_b32 v38, 64, v36
    v_xor_b32 v39, 96, v36
    """)
    C("""
    v_and_b32 v3, 15, v0
    v_xor_b32 v3, v3, v2
    v_lshlrev_b32 v3, 4, v3
    v_lshl_add_u32 v12, v1, 9, v3
    """)
    for j in range(1, 8):
        C(f"v_xor_b32 v{12 + j}, {32 * j}, v12")
    C("""
    v_bfe_u32 v4, v0, 2, 2
    v_and_b32 v5, 3, v0
    v_bfe_u32 v6, v0, 4, 1
    v_lshlrev_b32 v6, 5, v6
    v_lshl_add_u32 v7, v5, 3, v6
    v_and_b32 v3, 1, v0
    v_lshlrev_b32 v3, 4, v3
    v_bfe_u32 v5, v0, 1, 1
    v_lshl_add_u32 v3, v5, 3, v3
    v_add_u32 v6, v6, v3
    """)
    C("""
    v_lshl_add_u32 v3, v2, 3, v4
    v_lshlrev_b32 v3, 9, v3
    v_lshl_add_u32 v3, v4, 6, v3
    v_add_u32 v8, v3, v6
    v_xor_b32 v9, 64, v8
    v_xor_b32 v10, 128, v8
    v_xor_b32 v11, 192, v8
    v_lshl_add_u32 v5, v2, 2, v4
    v_lshlrev_b32 v3, 8, v5
    v_lshl_add_u32 v3, v4, 6, v3
    v_add_u32 v20, v3, v7
    v_xor_b32 v21, 64, v20
    v_xor_b32 v22, 128, v20
    v_xor_b32 v23, 192, v20
    v_lshlrev_b32 v3, 7, v5
    v_lshrrev_b32 v4, 1, v4
    v_lshl_add_u32 v3, v4, 6, v3
    v_add_u32 v24, v3, v6
    v_xor_b32 v25, 64, v24
    v_lshlrev_b32 v30, 4, v0
    """)
    C(f"""
    s_lshl_b32 s29, s4, 3
    s_add_u32 s29, s29, s28
    s_lshl_b32 s29, s29, 4
    s_add_u32 s29, s29, s27
    s_mul_i32 s29, s29, 3
    s_add_u32 s29, s29, s30
    s_mul_i32 s29, s29, 28672
    s_add_u32 s52, s24, s29
    s_addc_u32 s53, s25, 0
    s_mov_b32 s54, 28672
    s_mov_b32 s55, 0x20000
    s_mov_b32 s56, {f32bits(math.log2(math.e) / 16.0):#x}
    """)
    XF = 112
    for cb in range(7):
        C(f"s_waitcnt vmcnt({24 - 4 * cb})")
        for i in range(4):
            s = 4 * cb + i
            C(f"ds_read_b128 a[{XF + 4 * s}:{XF + 4 * s + 3}], v{36 + i} offset:{cb * 4096}")
    C("s_waitcnt lgkmcnt(0)")

    M = []
    win = {"q": 0, "k": 0, "v": 0, "o": 0}
    aregs = {"q": range(8, 12), "k": range(12, 20), "v": range(20, 24), "o": range(24, 26)}

    def rng(p, a, n):
        return f"{p}[{a}:{a + n - 1}]"

    def add(tile, aset, rd, d, dk, b, first):
        M.append(dict(tile=tile, aset=aset, rd=rd, d=rng(dk, d, 16), b=b, first=first))

    def sreg(t):
        return ("v", 32 + 16 * t) if t < 14 else ("a", 64 + 16 * (t - 14))

    marks = {}
    for i in range(14):
        seq = [(ks, dt) for ks in range(2) for dt in range(8)] if i < 13 else [(ks, dt) for dt in range(8) for ks in range(2)]
        for ks, dt in seq:
            o = (dt >> 2) * 256 + ks * 8192
            add(("wq", i), "q", [("tr", 8 + (dt & 3), o), ("tr", 8 + (dt & 3), o + 2048)], 128 + 16 * dt, "v",
                rng("a", XF + 4 * (2 * i + ks), 4), i == 0 and ks == 0)
            marks[("q", dt)] = len(M) - 1
    for t in range(16):
        dk, d = sreg(t)
        for s in range(16):
            add(("k", t), "k", [("b128", 12 + (s & 7), (s >> 3) * 256)], d, dk, rng("a", 4 * s, 4), s == 0)
            marks[("s", t, s)] = len(M) - 1
    for h in range(2):
        for i in range(8):
            seq = [(ka, dt) for ka in range(4) for dt in range(4)] if i < 7 else [(ka, dt) for dt in range(4) for ka in range(4)]
            for ka, dt in seq:
                t = 2 * i + (ka >> 1)
                o = ka * 4096
                dk, d = ("a", 16 * dt) if h == 0 else ("v", 160 + 16 * dt)
                add((f"v{h}", i), "v", [("tr", 20 + dt, o), ("tr", 20 + dt, o + 2048)], d, dk,
                    rng("v", 32 + 8 * t + 4 * (ka & 1), 4), i == 0 and ka == 0)
                marks[("pv", h, i, ka)] = min(marks.get(("pv", h, i, ka), 1 << 30), len(M) - 1)
                marks[("o", h, dt)] = len(M) - 1
        for i in range(7):
            for nt in range(2):
                T = 2 * i + nt
                acc = 16 * ((T + 4) % 14)
                for ka in range(8):
                    o = ka * 2048
                    add((f"wo{h}", i), "o", [("tr", 24 + nt, o), ("tr", 24 + nt, o + 1024)], acc, "a",
                        rng("v", 224 + 4 * ka, 4), h == 0 and ka == 0)
                    marks[("op", h, T, ka)] = len(M) - 1
    N = len(M)
    assert N == 960

    F = []

    def fill(ready, dead, text, cost=4):
        F.append((ready, dead, cost, text))

    for dt in range(8):
        r = marks[("q", dt)] + 2
        for g in range(2):
            dl = marks[("s", 0, 2 * dt + g)]
            for j in range(4):
                a = 128 + 16 * dt + 8 * g + 2 * j
                fill(r, dl, f"v_cvt_pk_bf16_f32 v{a}, v{a}, v{a + 1}")
            for j in range(4):
                a = 128 + 16 * dt + 8 * g + 2 * j
                fill(r, dl, f"v_accvgpr_write_b32 a{4 * (2 * dt + g) + j}, v{a}")
    pv0 = marks[("pv", 0, 0, 0)]
    for t in range(16):
        r = marks[("s", t, 15)] + 2
        dk, d = sreg(t)
        for j in range(8):
            if dk == "v":
                x, y = f"v{d + 2 * j}", f"v{d + 2 * j + 1}"
            else:
                x, y = f"v{1 + (j & 1) * 2}", f"v{2 + (j & 1) * 2}"
                fill(r, pv0, f"v_accvgpr_read_b32 {x}, a{d + 2 * j}")
                fill(r, pv0, f"v_accvgpr_read_b32 {y}, a{d + 2 * j + 1}")
            if t == 0 and j == 0:
                fill(r, pv0, f"v_max_f32 v26, {x}, {y}")
            else:
                fill(r, pv0, f"v_max3_f32 v26, v26, {x}, {y}")
    r = marks[("s", 15, 15)] + 2
    for txt in ["v_mov_b32 v27, v26", "v_permlane32_swap_b32 v26, v27", "v_max_f32 v26, v26, v27",
                "v_mul_f32 v26, s56, v26"]:
        fill(r, pv0, txt)
    for t in range(16):
        dk, d = sreg(t)
        for g in range(2):
            i, ka = t >> 1, (t & 1) * 2 + g
            dl = pv0 if i == 0 else marks[("pv", 0, i - 1, 0)] + 3 * (ka + 1)
            tmp = [1, 2, 3, 4, 5, 6, 7, 31]
            src = []
            for j in range(8):
                if dk == "v":
                    src.append(d + 8 * g + j)
                else:
                    src.append(tmp[j])
                    fill(r, dl, f"v_accvgpr_read_b32 v{tmp[j]}, a{d + 8 * g + j}")
            for j in range(8):
                fill(r, dl, f"v_fma_f32 v{src[j]}, v{src[j]}, s56, -v26")
                if j:
                    fill(r, dl, f"v_exp_f32 v{src[j - 1]}, v{src[j - 1]}", 8)
            fill(r, dl, f"v_exp_f32 v{src[7]}, v{src[7]}", 8)
            for j in range(8):
                acc = 27 + (j & 1)
                if t == 0 and g == 0 and j < 2:
                    fill(r, dl, f"v_mov_b32 v{acc}, v{src[j]}")
                else:
                    fill(r, dl, f"v_add_f32 v{acc}, v{acc}, v{src[j]}")
            for j in range(4):
                fill(r, dl, f"v_cvt_pk_bf16_f32 v{32 + 8 * t + 4 * g + j}, v{src[2 * j]}, v{src[2 * j + 1]}")
    op0 = marks[("op", 0, 0, 0)]
    for txt, c in [("v_add_f32 v27, v27, v28", 4), ("v_mov_b32 v28, v27", 4), ("v_permlane32_swap_b32 v27, v28", 4),
                   ("v_add_f32 v27, v27, v28", 4), ("v_rcp_f32 v29, v27", 8)]:
        fill(r, op0, txt, c)
    for h in range(2):
        for dt in range(4):
            r = marks[("o", h, dt)] + 2
            for g in range(2):
                dl = marks[("op", h, 0, 2 * dt + g)]
                for j in range(8):
                    e = 16 * dt + 8 * g + j
                    if h == 0:
                        fill(r, dl, f"v_accvgpr_read_b32 v{160 + e}, a{e}")
                for j in range(8):
                    e = 160 + 16 * dt + 8 * g + j
                    fill(r, dl, f"v_mul_f32 v{e}, v29, v{e}")
                for j in range(4):
                    e = 160 + 16 * dt + 8 * g + 2 * j
                    fill(r, dl, f"v_cvt_pk_bf16_f32 v{224 + 4 * (2 * dt + g) + j}, v{e}, v{e + 1}")
    for T in range(14):
        r = marks[("op", 1, T, 7)] + 2
        acc = 16 * ((T + 4) % 14)
        tb = 32 + 32 * (T % 4)
        for g in range(2):
            for j in range(8):
                fill(r, N, f"v_accvgpr_read_b32 v{tb + 8 * g + j}, a{acc + 8 * g + j}")
            for j in range(4):
                fill(r, N, f"v_cvt_pk_bf16_f32 v{tb + 16 + 4 * g + j}, v{tb + 8 * g + 2 * j}, v{tb + 8 * g + 2 * j + 1}")
            tg = 2 * T + g
            if tg % 4 == 0:
                fill(r, N, f"s_mov_b32 s58, {tg * 1024}")
            fill(r, N, f"buffer_store_dwordx4 v[{tb + 16 + 4 * g}:{tb + 19 + 4 * g}], v30, s[52:55], s58 offen offset:{(tg % 4) * 1024} {stpol}", 8)

    nbar = [0]
    rd_ptr = 0
    fp = 0

    def emit_reads(j):
        m = M[j]
        cost = 0
        if j == 0 or M[j - 1]["tile"] != m["tile"]:
            assert CONS[nbar[0]] == m["tile"]
            C("s_barrier")
            nbar[0] += 1
            w = (slot[m["tile"]] // 4) * 65536
            a = m["aset"]
            if w != win[a]:
                for rg in aregs[a]:
                    if w > win[a]:
                        C(f"v_add_u32 v{rg}, {w - win[a]:#x}, v{rg}")
                    else:
                        C(f"v_subrev_u32 v{rg}, {win[a] - w:#x}, v{rg}")
                    cost += 4
                win[a] = w
        base = (slot[m["tile"]] % 4) * 16384
        ring = 224 + 4 * (j % 8)
        for n, (kind, ar, o) in enumerate(m["rd"]):
            if kind == "tr":
                C(f"ds_read_b64_tr_b16 a[{ring + 2 * n}:{ring + 2 * n + 1}], v{ar} offset:{base + o}")
            else:
                C(f"ds_read_b128 a[{ring}:{ring + 3}], v{ar} offset:{base + o}")
            cost += 4
        return cost

    def seg_start(j):
        return (j == 0 or M[j - 1]["tile"] != M[j]["tile"]) and M[j]["tile"] in HARD

    for i in range(N):
        m = M[i]
        if seg_start(i):
            while fp < len(F) and any(f[1] <= i for f in F[fp:fp + 400]):
                assert F[fp][0] - 2 < i
                C(F[fp][3]); fp += 1
            assert rd_ptr == i
            while rd_ptr < min(N, i + PD):
                emit_reads(rd_ptr); rd_ptr += 1
        while fp < len(F) and any(f[1] <= i for f in F[fp:fp + 400]):
            assert F[fp][0] - 2 < i
            C(F[fp][3]); fp += 1
        ring = 224 + 4 * (i % 8)
        c = "0" if m["first"] else m["d"]
        C(f"{MF} {m['d']}, a[{ring}:{ring + 3}], {m['b']}, {c}")
        budget = 24
        if rd_ptr < N and rd_ptr <= i + PD and not seg_start(rd_ptr):
            budget -= emit_reads(rd_ptr); rd_ptr += 1
        budget -= 4
        while fp < len(F) and F[fp][0] <= i and budget >= F[fp][2]:
            budget -= F[fp][2]
            C(F[fp][3]); fp += 1
    while fp < len(F):
        C(F[fp][3]); fp += 1
    assert nbar[0] == len(CONS)
    if prof:
        C(f"""
        s_waitcnt vmcnt(0)
        s_memtime s[60:61]
        s_waitcnt lgkmcnt(0)
        s_lshl_b32 s29, s2, 10
        s_lshl_b32 s31, s30, 2
        s_add_u32 s29, s29, s31
        s_add_u32 s29, s29, {PROF_OFF + 512}
        s_add_u32 s52, s24, s29
        s_addc_u32 s53, s25, 0
        s_mov_b32 s54, 4
        v_mov_b32 v1, s60
        v_lshlrev_b32 v2, 2, v0
        buffer_store_dword v1, v2, s[52:55], 0 offen
        """)
    if probe:
        C(f"""
        s_waitcnt vmcnt(0)
        s_memrealtime s[72:73]
        s_lshl_b32 s29, s2, 6
        s_add_u32 s29, s29, {PROF_OFF}
        s_add_u32 s52, s24, s29
        s_addc_u32 s53, s25, 0
        s_mov_b32 s54, 8
        s_waitcnt lgkmcnt(0)
        v_mov_b32 v4, s64
        v_mov_b32 v5, s72
        buffer_store_dwordx2 v[4:5], v30, s[52:55], 0 offen
        """)
    C("s_endpgm")

    Ld = Stream()
    Ld("L_loader:")
    if prof:
        Ld("s_memtime s[62:63]")
    Ld("""
    v_lshrrev_b32 v1, 5, v0
    v_and_b32 v2, 31, v0
    v_lshrrev_b32 v3, 2, v2
    v_xor_b32 v3, v3, v1
    v_and_b32 v4, 3, v0
    v_lshlrev_b32 v4, 4, v4
    v_lshl_add_u32 v3, v3, 6, v4
    v_lshl_add_u32 v8, v1, 13, v3
    v_xor_b32 v9, 128, v8
    v_add_u32 v9, 15360, v9
    v_add_u32 v10, 30720, v8
    v_add_u32 v11, 30720, v9
    s_waitcnt lgkmcnt(0)
    s_lshl_b32 s29, s27, 9
    s_add_u32 s44, s14, s29
    s_addc_u32 s45, s15, 0
    s_sub_u32 s46, 3670016, s29
    s_mov_b32 s47, 0x20000
    """)
    setup2 = """
    v_xor_b32 v3, v2, v1
    v_lshlrev_b32 v3, 4, v3
    v_lshl_add_u32 v12, v1, 9, v3
    """ + "\n".join(f"v_xor_b32 v{12 + j}, {32 * j}, v12" for j in range(1, 8)) + """
    v_lshrrev_b32 v1, 4, v0
    v_bfe_u32 v3, v0, 2, 2
    v_xor_b32 v3, v3, v1
    v_lshl_add_u32 v3, v3, 6, v4
    v_lshl_add_u32 v20, v1, 9, v3
    v_add_u32 v21, 1024, v20
    v_add_u32 v22, 2048, v20
    v_add_u32 v23, 3072, v20
    v_lshrrev_b32 v2, 3, v0
    v_mul_u32_u24 v2, 896, v2
    v_bfe_u32 v3, v0, 2, 1
    v_and_b32 v1, 1, v1
    v_xor_b32 v3, v3, v1
    v_lshl_add_u32 v3, v3, 6, v4
    v_add_u32 v24, v2, v3
    v_add_u32 v25, 6144, v24
    v_add_u32 v26, 12288, v24
    v_add_u32 v27, 18432, v24
    s_lshl_b32 s29, s28, 4
    s_add_u32 s29, s29, s27
    s_lshl_b32 s29, s29, 18
    s_add_u32 s36, s10, s29
    s_addc_u32 s37, s11, 0
    s_mov_b32 s38, 262144
    s_mov_b32 s39, 0x20000
    s_add_u32 s40, s12, s29
    s_addc_u32 s41, s13, 0
    s_mov_b32 s42, 262144
    s_mov_b32 s43, 0x20000
    s_mul_i32 s29, s27, 229376
    s_add_u32 s48, s16, s29
    s_addc_u32 s49, s17, 0
    s_mov_b32 s50, 229376
    s_mov_b32 s51, 0x20000
    """

    def issue(t, q):
        kind, i = t
        Ld(f"s_mov_b32 m0, {slot[t] * 16384 + q * 4096}")
        if kind == "wq":
            so, srd, vb, pol = i * 262144 + q * 65536, 44, 8, wpol
        elif kind == "k":
            so, srd, vb, pol = i * 16384 + q * 4096, 36, 12 + 4 * (q & 1), kvpol
        elif kind[0] == "v":
            so, srd, vb, pol = int(kind[1]) * 256 + i * 32768 + q * 8192, 40, 20, kvpol
        else:
            so, srd, vb, pol = (int(kind[2]) * 128 + q * 32) * 896 + i * 128, 48, 24, wpol
        Ld(f"s_mov_b32 s31, {so}")
        for p in range(4):
            Ld(f"buffer_load_dwordx4 v{vb + p}, s[{srd}:{srd + 3}], s31 offen offset:{p * 1024} {pol} lds")

    def stamp(idx):
        if prof:
            Ld(f"s_memtime s[60:61]\ns_waitcnt lgkmcnt(0)\nv_writelane_b32 v{40 + idx // 64}, s60, {idx % 64}")

    for b, (lst, wait) in enumerate(steps):
        for t, q in lst:
            if b == 0:
                assert t[0] == "wq"
            issue(t, q)
        if b == 0:
            Ld(setup2)
        if wait is not None:
            Ld(f"s_waitcnt vmcnt({wait})")
        stamp(2 * b)
        Ld("s_barrier")
        stamp(2 * b + 1)
        if probe and b in PB:
            Ld(f"s_memrealtime s[{66 + 2 * PB.index(b)}:{67 + 2 * PB.index(b)}]")
    if probe:
        Ld(f"""
        s_lshl_b32 s29, s2, 6
        s_add_u32 s29, s29, {PROF_OFF + 8}
        s_add_u32 s52, s24, s29
        s_addc_u32 s53, s25, 0
        s_mov_b32 s54, 48
        s_mov_b32 s55, 0x20000
        s_waitcnt lgkmcnt(0)
        """)
        for j in range(len(PB)):
            Ld(f"v_writelane_b32 v40, s{66 + 2 * j}, {j}")
        Ld("v_lshlrev_b32 v2, 2, v0\nbuffer_store_dword v40, v2, s[52:55], 0 offen")
    if prof:
        Ld(f"""
        v_writelane_b32 v41, s62, 63
        s_lshl_b32 s29, s2, 10
        s_add_u32 s29, s29, {PROF_OFF}
        s_add_u32 s52, s24, s29
        s_addc_u32 s53, s25, 0
        s_mov_b32 s54, 512
        s_mov_b32 s55, 0x20000
        v_lshlrev_b32 v2, 2, v0
        buffer_store_dword v40, v2, s[52:55], 0 offen
        buffer_store_dword v41, v2, s[52:55], 0 offen offset:256
        """)
    Ld("L_done:")
    Ld("s_endpgm")

    R = Stream()
    R(f"""
    s_cmp_ge_u32 s2, 336
    s_cbranch_scc1 L_rdone
    s_load_dwordx2 s[8:9], s[0:1], 80
    s_load_dwordx2 s[10:11], s[0:1], 96
    """)
    if probe:
        R("s_memrealtime s[64:65]")
    R(f"""
    v_lshrrev_b32 v1, 6, v0
    v_and_b32 v0, 63, v0
    v_readfirstlane_b32 s30, v1
    s_mul_i32 s3, s2, 3121
    s_lshr_b32 s3, s3, 16
    s_mul_i32 s4, s3, 21
    s_sub_u32 s4, s2, s4
    s_lshl_b32 s4, s4, 2
    s_add_u32 s4, s4, s30
    v_lshlrev_b32 v2, 4, v0
    s_mul_i32 s5, s3, 1376256
    s_lshl_b32 s6, s4, 10
    s_waitcnt lgkmcnt(0)
    s_add_u32 s12, s10, s5
    s_addc_u32 s13, s11, 0
    s_mov_b32 s14, 1376256
    s_mov_b32 s15, 0x20000
    """)
    for h in range(16):
        R(f"buffer_load_dwordx4 v[{16 + 4 * h}:{19 + 4 * h}], v2, s[12:15], s6 offen {rdpol}")
        if h < 15:
            R("s_add_u32 s6, s6, 86016")
    R("""
    s_mov_b32 s16, s8
    s_mov_b32 s17, s9
    s_mov_b32 s18, 1376256
    s_mov_b32 s19, 0x20000
    s_cmp_ge_u32 s4, 28
    s_cselect_b32 s20, 1, 0
    s_cmp_ge_u32 s4, 56
    s_cselect_b32 s20, 2, s20
    s_mul_i32 s21, s20, 28
    s_sub_u32 s21, s4, s21
    s_and_b32 s22, s3, 7
    s_mul_i32 s22, s22, 3
    s_add_u32 s22, s22, s20
    s_mul_i32 s22, s22, 57344
    s_lshr_b32 s23, s3, 3
    s_mul_i32 s23, s23, 896
    s_add_u32 s22, s22, s23
    s_lshl_b32 s21, s21, 5
    s_add_u32 s22, s22, s21
    v_and_b32 v3, 31, v0
    v_mul_u32_u24 v3, 1792, v3
    v_lshrrev_b32 v4, 5, v0
    v_lshl_add_u32 v3, v4, 4, v3
    """)
    for h in range(16):
        R(f"s_waitcnt vmcnt({15 - h})")
        for j in range(4):
            x = 16 + 4 * h + j
            if h == 0:
                R(f"v_lshlrev_b32 v{8 + 2 * j}, 16, v{x}")
                R(f"v_and_b32 v{9 + 2 * j}, 0xffff0000, v{x}")
            else:
                R(f"v_lshlrev_b32 v5, 16, v{x}")
                R(f"v_and_b32 v6, 0xffff0000, v{x}")
                R(f"v_add_f32 v{8 + 2 * j}, v{8 + 2 * j}, v5")
                R(f"v_add_f32 v{9 + 2 * j}, v{9 + 2 * j}, v6")
    for j in range(4):
        R(f"v_cvt_pk_bf16_f32 v{4 + j}, v{8 + 2 * j}, v{9 + 2 * j}")
    R("buffer_store_dwordx4 v[4:7], v3, s[16:19], s22 offen")
    if probe:
        R(f"""
        s_waitcnt vmcnt(0)
        s_memrealtime s[72:73]
        s_and_b32 s29, s2, 255
        s_lshl_b32 s29, s29, 6
        s_add_u32 s29, s29, {PROF_OFF + 56}
        s_add_u32 s12, s10, s29
        s_addc_u32 s13, s11, 0
        s_mov_b32 s14, 8
        s_waitcnt lgkmcnt(0)
        v_mov_b32 v4, s64
        v_mov_b32 v5, s72
        buffer_store_dwordx2 v[4:5], v2, s[12:15], 0 offen
        """)
    R("L_rdone:")
    R("s_endpgm")

    body = P.finish() + C.finish() + Ld.finish()
    if clk == "cyc":
        body = [l.replace("s_memrealtime", "s_memtime") for l in body]
    if verbose:
        print("consumer nops", C.nops, "instructions", len(C.ins))
    T = H + ["    " + l if not l.endswith(":") else l for l in body]
    T += [f".globl {K2}", ".p2align 8", f".type {K2},@function", f"{K2}:"]
    T += ["    " + l if not l.endswith(":") else l for l in R.finish()]
    ks = [(K1, 512, 256), (K2, 80, 80)]
    if probe:
        items, mult = probe
        if items == "all":
            items = [("span", 1, 0)] + [("avg", f, 0) for f in range(2, 11)] + [("avg", 1, 0), ("span", 0, 0), ("gap", 14, 1), ("span", 15, 14), ("span", 9, 9), ("span", 1, 1)]
        Q = Stream()
        Q(f"""
        s_cmp_ge_u32 s2, 1
        s_cbranch_scc1 L_pdone
        s_load_dwordx2 s[10:11], s[0:1], 96
        s_load_dwordx2 s[16:17], s[0:1], 88
        v_lshlrev_b32 v2, 6, v0
        v_mov_b32 v3, 0
        s_waitcnt lgkmcnt(0)
        s_add_u32 s12, s10, {PROF_OFF}
        s_addc_u32 s13, s11, 0
        s_mov_b32 s14, 16384
        s_mov_b32 s15, 0x20000
        s_mov_b32 s18, 64
        s_mov_b32 s19, 0x20000
        """)
        for n, (mode, fa, fb) in enumerate(items):
            for j in range(4):
                Q(f"s_mov_b32 s20, {j * 4096}")
                Q(f"buffer_load_dword v{8 + j}, v2, s[12:15], s20 offen offset:{4 * fa}")
                Q(f"buffer_load_dword v{12 + j}, v2, s[12:15], s20 offen offset:{4 * fb}")
            Q("s_waitcnt vmcnt(0)")
            Q("v_readfirstlane_b32 s21, v12")
            Q("s_sub_u32 s21, s21, 0x100000")
            for j in range(8):
                Q(f"v_subrev_u32 v{8 + j}, s21, v{8 + j}")
            Q("s_mov_b32 s25, 0")
            if mode == "avg":
                for j in range(4):
                    Q(f"v_sub_u32 v{8 + j}, v{8 + j}, v{12 + j}")
                Q("v_add_u32 v8, v8, v9\nv_add_u32 v10, v10, v11\nv_add_u32 v8, v8, v10\ns_mov_b32 s22, 0\ns_nop 4")
                Q(f"L_pl{n}:")
                Q(f"v_readlane_b32 s23, v8, s25\ns_add_u32 s22, s22, s23")
                Q(f"s_add_u32 s25, s25, 1\ns_cmp_lt_u32 s25, 64\ns_cbranch_scc1 L_pl{n}")
                Q("s_lshr_b32 s22, s22, 8")
            else:
                opa, opb = {"span": ("max", "min"), "gap": ("min", "max"), "maxmax": ("max", "max"), "minmin": ("min", "min")}[mode]
                Q(f"v_{opa}_u32 v8, v8, v9\nv_{opa}_u32 v10, v10, v11\nv_{opa}_u32 v8, v8, v10")
                Q(f"v_{opb}_u32 v12, v12, v13\nv_{opb}_u32 v14, v14, v15\nv_{opb}_u32 v12, v12, v14")
                Q("v_readlane_b32 s22, v8, 0\nv_readlane_b32 s24, v12, 0")
                Q(f"L_pl{n}:")
                Q(f"v_readlane_b32 s23, v8, s25\ns_{opa}_u32 s22, s22, s23")
                Q(f"v_readlane_b32 s23, v12, s25\ns_{opb}_u32 s24, s24, s23")
                Q(f"s_add_u32 s25, s25, 1\ns_cmp_lt_u32 s25, 64\ns_cbranch_scc1 L_pl{n}")
                Q("s_sub_u32 s22, s22, s24")
            Q(f"s_min_u32 s22, s22, {10000 if clk == 'rt' else 1000000}\nv_writelane_b32 v3, s22, {n}")
            if n == 0:
                Q(f"s_mul_i32 s40, s22, {mult}")
        Q(f"""
        v_lshlrev_b32 v2, 2, v0
        buffer_store_dword v3, v2, s[16:19], 0 offen
        s_memrealtime s[26:27]
        s_waitcnt lgkmcnt(0)
        L_spin:
        s_memrealtime s[28:29]
        s_waitcnt lgkmcnt(0)
        s_sub_u32 s30, s28, s26
        s_cmp_lt_u32 s30, s40
        s_cbranch_scc1 L_spin
        L_pdone:
        s_endpgm
        """)
        T += [".globl probe_kernel", ".p2align 8", ".type probe_kernel,@function", "probe_kernel:"]
        T += ["    " + l if not l.endswith(":") else l for l in Q.finish()]
        ks.append(("probe_kernel", 16, 16))
    if noop:
        T += [".globl noop_kernel", ".p2align 8", ".type noop_kernel,@function", "noop_kernel:", "    s_endpgm"]
        ks.append(("noop_kernel", 8, 8))
    if cpf:
        T += [".fill 3200, 4, 0xbf800000"]
    T += ['.section .rodata,"a"']
    for k, nv, ao in ks:
        T += [".p2align 6", f".amdhsa_kernel {k}", f"  .amdhsa_next_free_vgpr {nv}", "  .amdhsa_next_free_sgpr 102",
              f"  .amdhsa_accum_offset {ao}", "  .amdhsa_group_segment_fixed_size 0", "  .amdhsa_kernarg_size 104",
              "  .amdhsa_user_sgpr_count 2", "  .amdhsa_user_sgpr_kernarg_segment_ptr 1",
              "  .amdhsa_system_sgpr_workgroup_id_x 1", ".end_amdhsa_kernel"]
    return "\n".join(T) + "\n"


if __name__ == "__main__":
    out = sys.argv[1] if len(sys.argv) > 1 else f"cdna_kernels/{NAME}.s"
    kw = {}
    for a in sys.argv[2:]:
        k, v = a.split("=", 1); v = v.replace("+", " ")
        kw[k] = eval(v) if v and (v[0].isdigit() or v[0] in "([" or v in ("True", "False")) else v
    open(out, "w").write(gen(verbose=True, **kw))
```

```python
import sys, math, struct
sys.path.insert(0, "dev")
from asmlib import Stream

NAME = "concat_heads__mha_block_cached__gqa_block_cached__near_ridge"
MF = "v_mfma_f32_32x32x16_bf16"
NSLOT = 10
PROF_OFF = 0x4000000
PB = [0, 4, 14, 20, 30, 38, 45, 53, 59]


def f32bits(x):
    return struct.unpack("<I", struct.pack("<f", x))[0]


def merge(a, b):
    out = []
    ia = ib = 0
    while ia < len(a) or ib < len(b):
        if ib >= len(b) or (ia < len(a) and ia * len(b) <= ib * len(a)):
            out.append(a[ia]); ia += 1
        else:
            out.append(b[ib]); ib += 1
    return out


def quarters(tiles):
    return [(t, q) for t in tiles for q in range(4)]


CONS = ([("wq", i) for i in range(14)] + [("k", i) for i in range(16)] + [("v0", i) for i in range(8)] +
        [("wo0", i) for i in range(7)] + [("v1", i) for i in range(8)] + [("wo1", i) for i in range(7)])
HARD = {("wq", 0), ("v0", 0), ("wo0", 0), ("wo1", 0)}


def load_order(kp=6):
    wq = [("wq", i) for i in range(14)]
    k = [("k", i) for i in range(16)]
    v0 = [("v0", i) for i in range(8)]
    v1 = [("v1", i) for i in range(8)]
    o0 = [("wo0", i) for i in range(7)]
    o1 = [("wo1", i) for i in range(7)]
    L = quarters(wq[:4]) + merge(quarters(wq[4:]), quarters(k[:kp])) + quarters(k[kp:])
    L += quarters(v0[:4]) + merge(quarters(v0[4:]), quarters(o0[:4]))
    L += merge(quarters(o0[4:]), quarters(v1[:3])) + quarters(v1[3:5])
    L += merge(quarters(o1[:5]), quarters(v1[5:])) + quarters(o1[5:])
    return L


def plan_loader(order, cap=60, stepmax=28):
    cidx = {t: i for i, t in enumerate(CONS)}
    slot = {}
    holder = {s: None for s in range(NSLOT)}
    for s in range(4, 10):
        holder[s] = "x"
    steps = []
    pos = 0
    issued = 0
    landed = 0
    endidx = {}
    cnt = {}
    for b in range(-1, len(CONS) - 1):
        if b >= 0:
            upto = b - 1 if CONS[b] in HARD else b - 2
            for s in holder:
                h = holder[s]
                if h == "x" or (h is not None and cidx[h] <= upto):
                    holder[s] = None
        nxt = CONS[b + 1]
        lst = []
        n = 0
        while pos < len(order):
            t, q = order[pos]
            forced = cnt.get(nxt, 0) < 4
            if not forced and (issued + 4 - landed > cap or (n + 4 > stepmax and b >= 0)):
                break
            if t not in slot:
                free = [s for s in holder if holder[s] is None]
                if not free:
                    assert not forced, ("deadlock", b, t, nxt)
                    break
                slot[t] = free[0]
                holder[free[0]] = t
            lst.append((t, q))
            issued += 4; n += 4
            cnt[t] = cnt.get(t, 0) + 1
            if cnt[t] == 4:
                endidx[t] = issued
            pos += 1
        w = issued - endidx[nxt]
        wait = None
        if endidx[nxt] > landed:
            wait = min(w, 63)
            landed = endidx[nxt]
        steps.append((lst, wait))
    assert pos == len(order)
    return slot, steps


def gen(kvpol="nt", wpol="nt", xpol="nt", stpol="sc1", rdpol="sc1", PD=4, prof=False, kp=6, cap=60, stepmax=28,
        order=None, verbose=False, noop=0, cpf=0, probe=None, clk='rt'):
    order = order or load_order(kp)
    slot, steps = plan_loader(order, cap, stepmax)
    if verbose:
        for b, (lst, w) in enumerate(steps):
            print(b - 1, CONS[b], "slot", slot[CONS[b]], "wait", w, " ".join(f"{t[0]}{t[1]}.{q}" for t, q in lst))
    K1 = NAME + "_kernel"
    K2 = "reduce_kernel"
    H = []
    H.append(f"; @launch kernel={K1} grid=(256,1,1) block=(256,1,1) lds=163840")
    H.append(f"; @launch kernel={K2} grid=(336,1,1) block=(256,1,1) lds=0")
    if probe:
        H.append("; @launch kernel=probe_kernel grid=(1,1,1) block=(64,1,1) lds=0")
    for _ in range(noop):
        H.append(f"; @launch kernel=noop_kernel grid=(1,1,1) block=(64,1,1) lds=0")
    H.append('.amdgcn_target "amdgcn-amd-amdhsa--gfx950"')
    H += [".text", f".globl {K1}", ".p2align 8", f".type {K1},@function", f"{K1}:"]

    P = Stream()
    P("""
    s_cmp_ge_u32 s2, 256
    s_cbranch_scc1 L_done
    s_and_b32 s3, s2, 7
    s_lshr_b32 s4, s3, 2
    s_mul_i32 s5, s4, 40
    s_add_u32 s6, s0, s5
    s_addc_u32 s7, s1, 0
    s_load_dwordx8 s[8:15], s[6:7], 0
    s_load_dwordx2 s[16:17], s[6:7], 32
    s_load_dwordx2 s[24:25], s[0:1], 96
    """)
    if probe:
        P("s_memrealtime s[64:65]")
    P("""
    s_lshr_b32 s26, s2, 3
    s_and_b32 s27, s3, 3
    s_lshl_b32 s27, s27, 2
    s_and_b32 s28, s26, 3
    s_add_u32 s27, s27, s28
    s_lshr_b32 s28, s26, 2
    v_lshrrev_b32 v1, 6, v0
    v_and_b32 v0, 63, v0
    v_readfirstlane_b32 s30, v1
    """)
    if cpf:
        P(f"""
        s_getpc_b64 s[20:21]
        v_lshlrev_b32 v2, 7, v0
        v_lshl_add_u32 v2, v1, 13, v2
        """)
        for j in range(cpf):
            P(f"global_load_dword v{44 + j}, v2, s[20:21]")
            if j + 1 < cpf:
                P("v_add_u32 v2, 0x8000, v2")
    P("""
    s_cmp_eq_u32 s30, 3
    s_cbranch_scc1 L_loader
    """)

    C = Stream()
    C("""
    v_lshrrev_b32 v1, 3, v0
    v_mul_u32_u24 v1, 896, v1
    v_and_b32 v2, 7, v0
    v_lshrrev_b32 v3, 4, v0
    v_xor_b32 v2, v2, v3
    v_lshl_add_u32 v32, v2, 4, v1
    v_xor_b32 v33, 64, v32
    v_add_u32 v33, 6144, v33
    v_add_u32 v34, 12288, v32
    v_add_u32 v35, 12288, v33
    s_lshl_b32 s31, s30, 15
    s_add_u32 s31, s31, 65536
    s_mul_i32 s57, s30, 28672
    s_waitcnt lgkmcnt(0)
    s_mul_i32 s29, s28, 86016
    s_add_u32 s32, s8, s29
    s_addc_u32 s33, s9, 0
    s_mov_b32 s34, 86016
    s_mov_b32 s35, 0x20000
    """)
    for cb in range(7):
        C(f"s_add_u32 m0, s31, {cb * 4096}")
        if cb:
            C(f"s_add_u32 s57, s57, 128")
        for rg in range(4):
            C(f"buffer_load_dwordx4 v{32 + rg}, s[32:35], s57 offen offset:{rg * 1024} {xpol} lds")
    C("""
    v_and_b32 v1, 31, v0
    v_lshrrev_b32 v2, 5, v0
    v_bfe_u32 v3, v0, 1, 3
    v_xor_b32 v3, v3, v2
    v_lshlrev_b32 v3, 4, v3
    v_lshl_add_u32 v3, v1, 7, v3
    v_add_u32 v36, s31, v3
    v_xor_b32 v37, 32, v36
    v_xor_b32 v38, 64, v36
    v_xor_b32 v39, 96, v36
    """)
    C("""
    v_and_b32 v3, 15, v0
    v_xor_b32 v3, v3, v2
    v_lshlrev_b32 v3, 4, v3
    v_lshl_add_u32 v12, v1, 9, v3
    """)
    for j in range(1, 8):
        C(f"v_xor_b32 v{12 + j}, {32 * j}, v12")
    C("""
    v_bfe_u32 v4, v0, 2, 2
    v_and_b32 v5, 3, v0
    v_bfe_u32 v6, v0, 4, 1
    v_lshlrev_b32 v6, 5, v6
    v_lshl_add_u32 v7, v5, 3, v6
    v_and_b32 v3, 1, v0
    v_lshlrev_b32 v3, 4, v3
    v_bfe_u32 v5, v0, 1, 1
    v_lshl_add_u32 v3, v5, 3, v3
    v_add_u32 v6, v6, v3
    """)
    C("""
    v_lshl_add_u32 v3, v2, 3, v4
    v_lshlrev_b32 v3, 9, v3
    v_lshl_add_u32 v3, v4, 6, v3
    v_add_u32 v8, v3, v6
    v_xor_b32 v9, 64, v8
    v_xor_b32 v10, 128, v8
    v_xor_b32 v11, 192, v8
    v_lshl_add_u32 v5, v2, 2, v4
    v_lshlrev_b32 v3, 8, v5
    v_lshl_add_u32 v3, v4, 6, v3
    v_add_u32 v20, v3, v7
    v_xor_b32 v21, 64, v20
    v_xor_b32 v22, 128, v20
    v_xor_b32 v23, 192, v20
    v_lshlrev_b32 v3, 7, v5
    v_lshrrev_b32 v4, 1, v4
    v_lshl_add_u32 v3, v4, 6, v3
    v_add_u32 v24, v3, v6
    v_xor_b32 v25, 64, v24
    v_lshlrev_b32 v30, 4, v0
    """)
    C(f"""
    s_lshl_b32 s29, s4, 3
    s_add_u32 s29, s29, s28
    s_lshl_b32 s29, s29, 4
    s_add_u32 s29, s29, s27
    s_mul_i32 s29, s29, 3
    s_add_u32 s29, s29, s30
    s_mul_i32 s29, s29, 28672
    s_add_u32 s52, s24, s29
    s_addc_u32 s53, s25, 0
    s_mov_b32 s54, 28672
    s_mov_b32 s55, 0x20000
    s_mov_b32 s56, {f32bits(math.log2(math.e) / 16.0):#x}
    """)
    XF = 112
    for cb in range(7):
        C(f"s_waitcnt vmcnt({24 - 4 * cb})")
        for i in range(4):
            s = 4 * cb + i
            C(f"ds_read_b128 a[{XF + 4 * s}:{XF + 4 * s + 3}], v{36 + i} offset:{cb * 4096}")
    C("s_waitcnt lgkmcnt(0)")

    M = []
    win = {"q": 0, "k": 0, "v": 0, "o": 0}
    aregs = {"q": range(8, 12), "k": range(12, 20), "v": range(20, 24), "o": range(24, 26)}

    def rng(p, a, n):
        return f"{p}[{a}:{a + n - 1}]"

    def add(tile, aset, rd, d, dk, b, first):
        M.append(dict(tile=tile, aset=aset, rd=rd, d=rng(dk, d, 16), b=b, first=first))

    def sreg(t):
        return ("v", 32 + 16 * t) if t < 14 else ("a", 64 + 16 * (t - 14))

    marks = {}
    for i in range(14):
        seq = [(ks, dt) for ks in range(2) for dt in range(8)] if i < 13 else [(ks, dt) for dt in range(8) for ks in range(2)]
        for ks, dt in seq:
            o = (dt >> 2) * 256 + ks * 8192
            add(("wq", i), "q", [("tr", 8 + (dt & 3), o), ("tr", 8 + (dt & 3), o + 2048)], 128 + 16 * dt, "v",
                rng("a", XF + 4 * (2 * i + ks), 4), i == 0 and ks == 0)
            marks[("q", dt)] = len(M) - 1
    for t in range(16):
        dk, d = sreg(t)
        for s in range(16):
            add(("k", t), "k", [("b128", 12 + (s & 7), (s >> 3) * 256)], d, dk, rng("a", 4 * s, 4), s == 0)
            marks[("s", t, s)] = len(M) - 1
    for h in range(2):
        for i in range(8):
            seq = [(ka, dt) for ka in range(4) for dt in range(4)] if i < 7 else [(ka, dt) for dt in range(4) for ka in range(4)]
            for ka, dt in seq:
                t = 2 * i + (ka >> 1)
                o = ka * 4096
                dk, d = ("a", 16 * dt) if h == 0 else ("v", 160 + 16 * dt)
                add((f"v{h}", i), "v", [("tr", 20 + dt, o), ("tr", 20 + dt, o + 2048)], d, dk,
                    rng("v", 32 + 8 * t + 4 * (ka & 1), 4), i == 0 and ka == 0)
                marks[("pv", h, i, ka)] = min(marks.get(("pv", h, i, ka), 1 << 30), len(M) - 1)
                marks[("o", h, dt)] = len(M) - 1
        for i in range(7):
            for nt in range(2):
                T = 2 * i + nt
                acc = 16 * ((T + 4) % 14)
                for ka in range(8):
                    o = ka * 2048
                    add((f"wo{h}", i), "o", [("tr", 24 + nt, o), ("tr", 24 + nt, o + 1024)], acc, "a",
                        rng("v", 224 + 4 * ka, 4), h == 0 and ka == 0)
                    marks[("op", h, T, ka)] = len(M) - 1
    N = len(M)
    assert N == 960

    F = []

    def fill(ready, dead, text, cost=4):
        F.append((ready, dead, cost, text))

    for dt in range(8):
        r = marks[("q", dt)] + 2
        for g in range(2):
            dl = marks[("s", 0, 2 * dt + g)]
            for j in range(4):
                a = 128 + 16 * dt + 8 * g + 2 * j
                fill(r, dl, f"v_cvt_pk_bf16_f32 v{a}, v{a}, v{a + 1}")
            for j in range(4):
                a = 128 + 16 * dt + 8 * g + 2 * j
                fill(r, dl, f"v_accvgpr_write_b32 a{4 * (2 * dt + g) + j}, v{a}")
    pv0 = marks[("pv", 0, 0, 0)]
    for t in range(16):
        r = marks[("s", t, 15)] + 2
        dk, d = sreg(t)
        for j in range(8):
            if dk == "v":
                x, y = f"v{d + 2 * j}", f"v{d + 2 * j + 1}"
            else:
                x, y = f"v{1 + (j & 1) * 2}", f"v{2 + (j & 1) * 2}"
                fill(r, pv0, f"v_accvgpr_read_b32 {x}, a{d + 2 * j}")
                fill(r, pv0, f"v_accvgpr_read_b32 {y}, a{d + 2 * j + 1}")
            if t == 0 and j == 0:
                fill(r, pv0, f"v_max_f32 v26, {x}, {y}")
            else:
                fill(r, pv0, f"v_max3_f32 v26, v26, {x}, {y}")
    r = marks[("s", 15, 15)] + 2
    for txt in ["v_mov_b32 v27, v26", "v_permlane32_swap_b32 v26, v27", "v_max_f32 v26, v26, v27",
                "v_mul_f32 v26, s56, v26"]:
        fill(r, pv0, txt)
    for t in range(16):
        dk, d = sreg(t)
        for g in range(2):
            i, ka = t >> 1, (t & 1) * 2 + g
            dl = pv0 if i == 0 else marks[("pv", 0, i - 1, 0)] + 3 * (ka + 1)
            tmp = [1, 2, 3, 4, 5, 6, 7, 31]
            src = []
            for j in range(8):
                if dk == "v":
                    src.append(d + 8 * g + j)
                else:
                    src.append(tmp[j])
                    fill(r, dl, f"v_accvgpr_read_b32 v{tmp[j]}, a{d + 8 * g + j}")
            for j in range(8):
                fill(r, dl, f"v_fma_f32 v{src[j]}, v{src[j]}, s56, -v26")
                if j:
                    fill(r, dl, f"v_exp_f32 v{src[j - 1]}, v{src[j - 1]}", 8)
            fill(r, dl, f"v_exp_f32 v{src[7]}, v{src[7]}", 8)
            for j in range(8):
                acc = 27 + (j & 1)
                if t == 0 and g == 0 and j < 2:
                    fill(r, dl, f"v_mov_b32 v{acc}, v{src[j]}")
                else:
                    fill(r, dl, f"v_add_f32 v{acc}, v{acc}, v{src[j]}")
            for j in range(4):
                fill(r, dl, f"v_cvt_pk_bf16_f32 v{32 + 8 * t + 4 * g + j}, v{src[2 * j]}, v{src[2 * j + 1]}")
    op0 = marks[("op", 0, 0, 0)]
    for txt, c in [("v_add_f32 v27, v27, v28", 4), ("v_mov_b32 v28, v27", 4), ("v_permlane32_swap_b32 v27, v28", 4),
                   ("v_add_f32 v27, v27, v28", 4), ("v_rcp_f32 v29, v27", 8)]:
        fill(r, op0, txt, c)
    for h in range(2):
        for dt in range(4):
            r = marks[("o", h, dt)] + 2
            for g in range(2):
                dl = marks[("op", h, 0, 2 * dt + g)]
                for j in range(8):
                    e = 16 * dt + 8 * g + j
                    if h == 0:
                        fill(r, dl, f"v_accvgpr_read_b32 v{160 + e}, a{e}")
                for j in range(8):
                    e = 160 + 16 * dt + 8 * g + j
                    fill(r, dl, f"v_mul_f32 v{e}, v29, v{e}")
                for j in range(4):
                    e = 160 + 16 * dt + 8 * g + 2 * j
                    fill(r, dl, f"v_cvt_pk_bf16_f32 v{224 + 4 * (2 * dt + g) + j}, v{e}, v{e + 1}")
    for T in range(14):
        r = marks[("op", 1, T, 7)] + 2
        acc = 16 * ((T + 4) % 14)
        tb = 32 + 32 * (T % 4)
        for g in range(2):
            for j in range(8):
                fill(r, N, f"v_accvgpr_read_b32 v{tb + 8 * g + j}, a{acc + 8 * g + j}")
            for j in range(4):
                fill(r, N, f"v_cvt_pk_bf16_f32 v{tb + 16 + 4 * g + j}, v{tb + 8 * g + 2 * j}, v{tb + 8 * g + 2 * j + 1}")
            tg = 2 * T + g
            if tg % 4 == 0:
                fill(r, N, f"s_mov_b32 s58, {tg * 1024}")
            fill(r, N, f"buffer_store_dwordx4 v[{tb + 16 + 4 * g}:{tb + 19 + 4 * g}], v30, s[52:55], s58 offen offset:{(tg % 4) * 1024} {stpol}", 8)

    nbar = [0]
    rd_ptr = 0
    fp = 0

    def emit_reads(j):
        m = M[j]
        cost = 0
        if j == 0 or M[j - 1]["tile"] != m["tile"]:
            assert CONS[nbar[0]] == m["tile"]
            C("s_barrier")
            nbar[0] += 1
            w = (slot[m["tile"]] // 4) * 65536
            a = m["aset"]
            if w != win[a]:
                for rg in aregs[a]:
                    if w > win[a]:
                        C(f"v_add_u32 v{rg}, {w - win[a]:#x}, v{rg}")
                    else:
                        C(f"v_subrev_u32 v{rg}, {win[a] - w:#x}, v{rg}")
                    cost += 4
                win[a] = w
        base = (slot[m["tile"]] % 4) * 16384
        ring = 224 + 4 * (j % 8)
        for n, (kind, ar, o) in enumerate(m["rd"]):
            if kind == "tr":
                C(f"ds_read_b64_tr_b16 a[{ring + 2 * n}:{ring + 2 * n + 1}], v{ar} offset:{base + o}")
            else:
                C(f"ds_read_b128 a[{ring}:{ring + 3}], v{ar} offset:{base + o}")
            cost += 4
        return cost

    def seg_start(j):
        return (j == 0 or M[j - 1]["tile"] != M[j]["tile"]) and M[j]["tile"] in HARD

    for i in range(N):
        m = M[i]
        if seg_start(i):
            while fp < len(F) and any(f[1] <= i for f in F[fp:fp + 400]):
                assert F[fp][0] - 2 < i
                C(F[fp][3]); fp += 1
            assert rd_ptr == i
            while rd_ptr < min(N, i + PD):
                emit_reads(rd_ptr); rd_ptr += 1
        while fp < len(F) and any(f[1] <= i for f in F[fp:fp + 400]):
            assert F[fp][0] - 2 < i
            C(F[fp][3]); fp += 1
        ring = 224 + 4 * (i % 8)
        c = "0" if m["first"] else m["d"]
        C(f"{MF} {m['d']}, a[{ring}:{ring + 3}], {m['b']}, {c}")
        budget = 24
        if rd_ptr < N and rd_ptr <= i + PD and not seg_start(rd_ptr):
            budget -= emit_reads(rd_ptr); rd_ptr += 1
        budget -= 4
        while fp < len(F) and F[fp][0] <= i and budget >= F[fp][2]:
            budget -= F[fp][2]
            C(F[fp][3]); fp += 1
    while fp < len(F):
        C(F[fp][3]); fp += 1
    assert nbar[0] == len(CONS)
    if prof:
        C(f"""
        s_waitcnt vmcnt(0)
        s_memtime s[60:61]
        s_waitcnt lgkmcnt(0)
        s_lshl_b32 s29, s2, 10
        s_lshl_b32 s31, s30, 2
        s_add_u32 s29, s29, s31
        s_add_u32 s29, s29, {PROF_OFF + 512}
        s_add_u32 s52, s24, s29
        s_addc_u32 s53, s25, 0
        s_mov_b32 s54, 4
        v_mov_b32 v1, s60
        v_lshlrev_b32 v2, 2, v0
        buffer_store_dword v1, v2, s[52:55], 0 offen
        """)
    if probe:
        C(f"""
        s_waitcnt vmcnt(0)
        s_memrealtime s[72:73]
        s_lshl_b32 s29, s2, 6
        s_add_u32 s29, s29, {PROF_OFF}
        s_add_u32 s52, s24, s29
        s_addc_u32 s53, s25, 0
        s_mov_b32 s54, 8
        s_waitcnt lgkmcnt(0)
        v_mov_b32 v4, s64
        v_mov_b32 v5, s72
        buffer_store_dwordx2 v[4:5], v30, s[52:55], 0 offen
        """)
    C("s_endpgm")

    Ld = Stream()
    Ld("L_loader:")
    if prof:
        Ld("s_memtime s[62:63]")
    Ld("""
    v_lshrrev_b32 v1, 5, v0
    v_and_b32 v2, 31, v0
    v_lshrrev_b32 v3, 2, v2
    v_xor_b32 v3, v3, v1
    v_and_b32 v4, 3, v0
    v_lshlrev_b32 v4, 4, v4
    v_lshl_add_u32 v3, v3, 6, v4
    v_lshl_add_u32 v8, v1, 13, v3
    v_xor_b32 v9, 128, v8
    v_add_u32 v9, 15360, v9
    v_add_u32 v10, 30720, v8
    v_add_u32 v11, 30720, v9
    s_waitcnt lgkmcnt(0)
    s_lshl_b32 s29, s27, 9
    s_add_u32 s44, s14, s29
    s_addc_u32 s45, s15, 0
    s_sub_u32 s46, 3670016, s29
    s_mov_b32 s47, 0x20000
    """)
    setup2 = """
    v_xor_b32 v3, v2, v1
    v_lshlrev_b32 v3, 4, v3
    v_lshl_add_u32 v12, v1, 9, v3
    """ + "\n".join(f"v_xor_b32 v{12 + j}, {32 * j}, v12" for j in range(1, 8)) + """
    v_lshrrev_b32 v1, 4, v0
    v_bfe_u32 v3, v0, 2, 2
    v_xor_b32 v3, v3, v1
    v_lshl_add_u32 v3, v3, 6, v4
    v_lshl_add_u32 v20, v1, 9, v3
    v_add_u32 v21, 1024, v20
    v_add_u32 v22, 2048, v20
    v_add_u32 v23, 3072, v20
    v_lshrrev_b32 v2, 3, v0
    v_mul_u32_u24 v2, 896, v2
    v_bfe_u32 v3, v0, 2, 1
    v_and_b32 v1, 1, v1
    v_xor_b32 v3, v3, v1
    v_lshl_add_u32 v3, v3, 6, v4
    v_add_u32 v24, v2, v3
    v_add_u32 v25, 6144, v24
    v_add_u32 v26, 12288, v24
    v_add_u32 v27, 18432, v24
    s_lshl_b32 s29, s28, 4
    s_add_u32 s29, s29, s27
    s_lshl_b32 s29, s29, 18
    s_add_u32 s36, s10, s29
    s_addc_u32 s37, s11, 0
    s_mov_b32 s38, 262144
    s_mov_b32 s39, 0x20000
    s_add_u32 s40, s12, s29
    s_addc_u32 s41, s13, 0
    s_mov_b32 s42, 262144
    s_mov_b32 s43, 0x20000
    s_mul_i32 s29, s27, 229376
    s_add_u32 s48, s16, s29
    s_addc_u32 s49, s17, 0
    s_mov_b32 s50, 229376
    s_mov_b32 s51, 0x20000
    """

    def issue(t, q):
        kind, i = t
        Ld(f"s_mov_b32 m0, {slot[t] * 16384 + q * 4096}")
        if kind == "wq":
            so, srd, vb, pol = i * 262144 + q * 65536, 44, 8, wpol
        elif kind == "k":
            so, srd, vb, pol = i * 16384 + q * 4096, 36, 12 + 4 * (q & 1), kvpol
        elif kind[0] == "v":
            so, srd, vb, pol = int(kind[1]) * 256 + i * 32768 + q * 8192, 40, 20, kvpol
        else:
            so, srd, vb, pol = (int(kind[2]) * 128 + q * 32) * 896 + i * 128, 48, 24, wpol
        Ld(f"s_mov_b32 s31, {so}")
        for p in range(4):
            Ld(f"buffer_load_dwordx4 v{vb + p}, s[{srd}:{srd + 3}], s31 offen offset:{p * 1024} {pol} lds")

    def stamp(idx):
        if prof:
            Ld(f"s_memtime s[60:61]\ns_waitcnt lgkmcnt(0)\nv_writelane_b32 v{40 + idx // 64}, s60, {idx % 64}")

    for b, (lst, wait) in enumerate(steps):
        for t, q in lst:
            if b == 0:
                assert t[0] == "wq"
            issue(t, q)
        if b == 0:
            Ld(setup2)
        if wait is not None:
            Ld(f"s_waitcnt vmcnt({wait})")
        stamp(2 * b)
        Ld("s_barrier")
        stamp(2 * b + 1)
        if probe and b in PB:
            Ld(f"s_memrealtime s[{66 + 2 * PB.index(b)}:{67 + 2 * PB.index(b)}]")
    if probe:
        Ld(f"""
        s_lshl_b32 s29, s2, 6
        s_add_u32 s29, s29, {PROF_OFF + 8}
        s_add_u32 s52, s24, s29
        s_addc_u32 s53, s25, 0
        s_mov_b32 s54, 48
        s_mov_b32 s55, 0x20000
        s_waitcnt lgkmcnt(0)
        """)
        for j in range(len(PB)):
            Ld(f"v_writelane_b32 v40, s{66 + 2 * j}, {j}")
        Ld("v_lshlrev_b32 v2, 2, v0\nbuffer_store_dword v40, v2, s[52:55], 0 offen")
    if prof:
        Ld(f"""
        v_writelane_b32 v41, s62, 63
        s_lshl_b32 s29, s2, 10
        s_add_u32 s29, s29, {PROF_OFF}
        s_add_u32 s52, s24, s29
        s_addc_u32 s53, s25, 0
        s_mov_b32 s54, 512
        s_mov_b32 s55, 0x20000
        v_lshlrev_b32 v2, 2, v0
        buffer_store_dword v40, v2, s[52:55], 0 offen
        buffer_store_dword v41, v2, s[52:55], 0 offen offset:256
        """)
    Ld("L_done:")
    Ld("s_endpgm")

    R = Stream()
    R(f"""
    s_cmp_ge_u32 s2, 336
    s_cbranch_scc1 L_rdone
    s_load_dwordx2 s[8:9], s[0:1], 80
    s_load_dwordx2 s[10:11], s[0:1], 96
    """)
    if probe:
        R("s_memrealtime s[64:65]")
    R(f"""
    v_lshrrev_b32 v1, 6, v0
    v_and_b32 v0, 63, v0
    v_readfirstlane_b32 s30, v1
    s_mul_i32 s3, s2, 3121
    s_lshr_b32 s3, s3, 16
    s_mul_i32 s4, s3, 21
    s_sub_u32 s4, s2, s4
    s_lshl_b32 s4, s4, 2
    s_add_u32 s4, s4, s30
    v_lshlrev_b32 v2, 4, v0
    s_mul_i32 s5, s3, 1376256
    s_lshl_b32 s6, s4, 10
    s_waitcnt lgkmcnt(0)
    s_add_u32 s12, s10, s5
    s_addc_u32 s13, s11, 0
    s_mov_b32 s14, 1376256
    s_mov_b32 s15, 0x20000
    """)
    for h in range(16):
        R(f"buffer_load_dwordx4 v[{16 + 4 * h}:{19 + 4 * h}], v2, s[12:15], s6 offen {rdpol}")
        if h < 15:
            R("s_add_u32 s6, s6, 86016")
    R("""
    s_mov_b32 s16, s8
    s_mov_b32 s17, s9
    s_mov_b32 s18, 1376256
    s_mov_b32 s19, 0x20000
    s_cmp_ge_u32 s4, 28
    s_cselect_b32 s20, 1, 0
    s_cmp_ge_u32 s4, 56
    s_cselect_b32 s20, 2, s20
    s_mul_i32 s21, s20, 28
    s_sub_u32 s21, s4, s21
    s_and_b32 s22, s3, 7
    s_mul_i32 s22, s22, 3
    s_add_u32 s22, s22, s20
    s_mul_i32 s22, s22, 57344
    s_lshr_b32 s23, s3, 3
    s_mul_i32 s23, s23, 896
    s_add_u32 s22, s22, s23
    s_lshl_b32 s21, s21, 5
    s_add_u32 s22, s22, s21
    v_and_b32 v3, 31, v0
    v_mul_u32_u24 v3, 1792, v3
    v_lshrrev_b32 v4, 5, v0
    v_lshl_add_u32 v3, v4, 4, v3
    """)
    for h in range(16):
        R(f"s_waitcnt vmcnt({15 - h})")
        for j in range(4):
            x = 16 + 4 * h + j
            if h == 0:
                R(f"v_lshlrev_b32 v{8 + 2 * j}, 16, v{x}")
                R(f"v_and_b32 v{9 + 2 * j}, 0xffff0000, v{x}")
            else:
                R(f"v_lshlrev_b32 v5, 16, v{x}")
                R(f"v_and_b32 v6, 0xffff0000, v{x}")
                R(f"v_add_f32 v{8 + 2 * j}, v{8 + 2 * j}, v5")
                R(f"v_add_f32 v{9 + 2 * j}, v{9 + 2 * j}, v6")
    for j in range(4):
        R(f"v_cvt_pk_bf16_f32 v{4 + j}, v{8 + 2 * j}, v{9 + 2 * j}")
    R("buffer_store_dwordx4 v[4:7], v3, s[16:19], s22 offen")
    if probe:
        R(f"""
        s_waitcnt vmcnt(0)
        s_memrealtime s[72:73]
        s_and_b32 s29, s2, 255
        s_lshl_b32 s29, s29, 6
        s_add_u32 s29, s29, {PROF_OFF + 56}
        s_add_u32 s12, s10, s29
        s_addc_u32 s13, s11, 0
        s_mov_b32 s14, 8
        s_waitcnt lgkmcnt(0)
        v_mov_b32 v4, s64
        v_mov_b32 v5, s72
        buffer_store_dwordx2 v[4:5], v2, s[12:15], 0 offen
        """)
    R("L_rdone:")
    R("s_endpgm")

    body = P.finish() + C.finish() + Ld.finish()
    if clk == "cyc":
        body = [l.replace("s_memrealtime", "s_memtime") for l in body]
    if verbose:
        print("consumer nops", C.nops, "instructions", len(C.ins))
    T = H + ["    " + l if not l.endswith(":") else l for l in body]
    T += [f".globl {K2}", ".p2align 8", f".type {K2},@function", f"{K2}:"]
    T += ["    " + l if not l.endswith(":") else l for l in R.finish()]
    ks = [(K1, 512, 256), (K2, 80, 80)]
    if probe:
        items, mult = probe
        if items == "all":
            items = [("span", 1, 0)] + [("avg", f, 0) for f in range(2, 11)] + [("avg", 1, 0), ("span", 0, 0), ("gap", 14, 1), ("span", 15, 14), ("span", 9, 9), ("span", 1, 1)]
        Q = Stream()
        Q(f"""
        s_cmp_ge_u32 s2, 1
        s_cbranch_scc1 L_pdone
        s_load_dwordx2 s[10:11], s[0:1], 96
        s_load_dwordx2 s[16:17], s[0:1], 88
        v_lshlrev_b32 v2, 6, v0
        v_mov_b32 v3, 0
        s_waitcnt lgkmcnt(0)
        s_add_u32 s12, s10, {PROF_OFF}
        s_addc_u32 s13, s11, 0
        s_mov_b32 s14, 16384
        s_mov_b32 s15, 0x20000
        s_mov_b32 s18, 64
        s_mov_b32 s19, 0x20000
        """)
        for n, (mode, fa, fb) in enumerate(items):
            for j in range(4):
                Q(f"s_mov_b32 s20, {j * 4096}")
                Q(f"buffer_load_dword v{8 + j}, v2, s[12:15], s20 offen offset:{4 * fa}")
                Q(f"buffer_load_dword v{12 + j}, v2, s[12:15], s20 offen offset:{4 * fb}")
            Q("s_waitcnt vmcnt(0)")
            Q("v_readfirstlane_b32 s21, v12")
            Q("s_sub_u32 s21, s21, 0x100000")
            for j in range(8):
                Q(f"v_subrev_u32 v{8 + j}, s21, v{8 + j}")
            Q("s_mov_b32 s25, 0")
            if mode.startswith("avg"):
                for j in range(4):
                    Q(f"v_sub_u32 v{8 + j}, v{8 + j}, v{12 + j}")
                Q("v_add_u32 v8, v8, v9\nv_add_u32 v10, v10, v11\nv_add_u32 v8, v8, v10\ns_mov_b32 s22, 0")
                if mode != "avg":
                    Q("v_bfe_u32 v9, v0, 2, 1")
                    if mode == "avgA":
                        Q("v_xor_b32 v9, 1, v9")
                    Q("v_mul_u32_u24 v8, v8, v9\nv_lshlrev_b32 v8, 1, v8")
                Q("s_nop 4")
                Q(f"L_pl{n}:")
                Q(f"v_readlane_b32 s23, v8, s25\ns_add_u32 s22, s22, s23")
                Q(f"s_add_u32 s25, s25, 1\ns_cmp_lt_u32 s25, 64\ns_cbranch_scc1 L_pl{n}")
                Q("s_lshr_b32 s22, s22, 8")
            else:
                opa, opb = {"span": ("max", "min"), "gap": ("min", "max"), "maxmax": ("max", "max"), "minmin": ("min", "min")}[mode]
                Q(f"v_{opa}_u32 v8, v8, v9\nv_{opa}_u32 v10, v10, v11\nv_{opa}_u32 v8, v8, v10")
                Q(f"v_{opb}_u32 v12, v12, v13\nv_{opb}_u32 v14, v14, v15\nv_{opb}_u32 v12, v12, v14")
                Q("v_readlane_b32 s22, v8, 0\nv_readlane_b32 s24, v12, 0")
                Q(f"L_pl{n}:")
                Q(f"v_readlane_b32 s23, v8, s25\ns_{opa}_u32 s22, s22, s23")
                Q(f"v_readlane_b32 s23, v12, s25\ns_{opb}_u32 s24, s24, s23")
                Q(f"s_add_u32 s25, s25, 1\ns_cmp_lt_u32 s25, 64\ns_cbranch_scc1 L_pl{n}")
                Q("s_sub_u32 s22, s22, s24")
            Q(f"s_min_u32 s22, s22, {10000 if clk == 'rt' else 1000000}\nv_writelane_b32 v3, s22, {n}")
            if n == 0:
                Q(f"s_mul_i32 s40, s22, {mult}")
        Q(f"""
        v_lshlrev_b32 v2, 2, v0
        buffer_store_dword v3, v2, s[16:19], 0 offen
        s_memrealtime s[26:27]
        s_waitcnt lgkmcnt(0)
        L_spin:
        s_memrealtime s[28:29]
        s_waitcnt lgkmcnt(0)
        s_sub_u32 s30, s28, s26
        s_cmp_lt_u32 s30, s40
        s_cbranch_scc1 L_spin
        L_pdone:
        s_endpgm
        """)
        T += [".globl probe_kernel", ".p2align 8", ".type probe_kernel,@function", "probe_kernel:"]
        T += ["    " + l if not l.endswith(":") else l for l in Q.finish()]
        ks.append(("probe_kernel", 16, 16))
    if noop:
        T += [".globl noop_kernel", ".p2align 8", ".type noop_kernel,@function", "noop_kernel:", "    s_endpgm"]
        ks.append(("noop_kernel", 8, 8))
    if cpf:
        T += [".fill 3200, 4, 0xbf800000"]
    T += ['.section .rodata,"a"']
    for k, nv, ao in ks:
        T += [".p2align 6", f".amdhsa_kernel {k}", f"  .amdhsa_next_free_vgpr {nv}", "  .amdhsa_next_free_sgpr 102",
              f"  .amdhsa_accum_offset {ao}", "  .amdhsa_group_segment_fixed_size 0", "  .amdhsa_kernarg_size 104",
              "  .amdhsa_user_sgpr_count 2", "  .amdhsa_user_sgpr_kernarg_segment_ptr 1",
              "  .amdhsa_system_sgpr_workgroup_id_x 1", ".end_amdhsa_kernel"]
    return "\n".join(T) + "\n"


if __name__ == "__main__":
    out = sys.argv[1] if len(sys.argv) > 1 else f"cdna_kernels/{NAME}.s"
    kw = {}
    for a in sys.argv[2:]:
        k, v = a.split("=", 1); v = v.replace("+", " ")
        kw[k] = eval(v) if v and (v[0].isdigit() or v[0] in "([" or v in ("True", "False")) else v
    open(out, "w").write(gen(verbose=True, **kw))
```

```python
import re
def tiles(s):
    m = re.fullmatch(r"(wq|k|v0_|v1_|wo0_|wo1_)(\d+)(?:-(\d+))?", s)
    k = m.group(1).rstrip("_"); a = int(m.group(2)); b = int(m.group(3) or a)
    return [(k, i) for i in range(a, b + 1)]
def parse(spec):
    out = []
    for tok in spec.split():
        out += [(t, q) for t in tiles(tok) for q in range(4)]
    assert len(out) == 240 and len(set(out)) == 240, len(out)
    return out
O = {
 "b1": "wq0-3 k0-1 wq4-6 k2-3 wq7-9 k4-5 wq10-13 k6-15 v0_0-3 wo0_0-2 v0_4-5 wo0_3-4 v0_6-7 wo0_5-6 v1_0-3 wo1_0-2 v1_4-5 wo1_3-4 v1_6-7 wo1_5-6",
 "b2": "wq0-5 k0-1 wq6-9 k2-3 wq10-13 k4-15 v0_0-5 wo0_0-3 v0_6-7 wo0_4-6 v1_0-3 wo1_0-3 v1_4-7 wo1_4-6",
 "b3": "wq0-13 k0-15 v0_0-7 wo0_0-6 v1_0-7 wo1_0-6",
 "b4": "wq0-7 k0-1 wq8-13 k2-15 v0_0-5 wo0_0-3 v0_6-7 wo0_4-6 v1_0-5 wo1_0-3 v1_6-7 wo1_4-6",
 "b5": "wq0-3 k0-1 wq4-7 k2-3 wq8-11 k4-5 wq12-13 k6-15 v0_0-5 wo0_0-1 v0_6-7 wo0_2-3 v1_0-1 wo0_4-6 v1_2-5 wo1_0-3 v1_6-7 wo1_4-6",
}
```

```python
import sys, math, struct
sys.path.insert(0, "dev")
from asmlib import Stream

NAME = "concat_heads__mha_block_cached__gqa_block_cached__near_ridge"
MF = "v_mfma_f32_32x32x16_bf16"
NSLOT = 10
PROF_OFF = 0x4000000
PB = [0, 4, 14, 20, 30, 38, 45, 53, 59]


def f32bits(x):
    return struct.unpack("<I", struct.pack("<f", x))[0]


def merge(a, b):
    out = []
    ia = ib = 0
    while ia < len(a) or ib < len(b):
        if ib >= len(b) or (ia < len(a) and ia * len(b) <= ib * len(a)):
            out.append(a[ia]); ia += 1
        else:
            out.append(b[ib]); ib += 1
    return out


def quarters(tiles):
    return [(t, q) for t in tiles for q in range(4)]


CONS = ([("wq", i) for i in range(14)] + [("k", i) for i in range(16)] + [("v0", i) for i in range(8)] +
        [("wo0", i) for i in range(7)] + [("v1", i) for i in range(8)] + [("wo1", i) for i in range(7)])
HARD = {("wq", 0), ("v0", 0), ("wo0", 0), ("wo1", 0)}


def load_order(kp=6):
    wq = [("wq", i) for i in range(14)]
    k = [("k", i) for i in range(16)]
    v0 = [("v0", i) for i in range(8)]
    v1 = [("v1", i) for i in range(8)]
    o0 = [("wo0", i) for i in range(7)]
    o1 = [("wo1", i) for i in range(7)]
    L = quarters(wq[:4]) + merge(quarters(wq[4:]), quarters(k[:kp])) + quarters(k[kp:])
    L += quarters(v0[:4]) + merge(quarters(v0[4:]), quarters(o0[:4]))
    L += merge(quarters(o0[4:]), quarters(v1[:3])) + quarters(v1[3:5])
    L += merge(quarters(o1[:5]), quarters(v1[5:])) + quarters(o1[5:])
    return L


def plan_loader(order, cap=60, stepmax=28):
    cidx = {t: i for i, t in enumerate(CONS)}
    slot = {}
    holder = {s: None for s in range(NSLOT)}
    for s in range(4, 10):
        holder[s] = "x"
    steps = []
    pos = 0
    issued = 0
    landed = 0
    endidx = {}
    cnt = {}
    for b in range(-1, len(CONS) - 1):
        if b >= 0:
            upto = b - 1 if CONS[b] in HARD else b - 2
            for s in holder:
                h = holder[s]
                if h == "x" or (h is not None and cidx[h] <= upto):
                    holder[s] = None
        nxt = CONS[b + 1]
        lst = []
        n = 0
        while pos < len(order):
            t, q = order[pos]
            forced = cnt.get(nxt, 0) < 4
            if not forced and (issued + 4 - landed > cap or (n + 4 > stepmax and b >= 0)):
                break
            if t not in slot:
                free = [s for s in holder if holder[s] is None]
                if not free:
                    assert not forced, ("deadlock", b, t, nxt)
                    break
                slot[t] = free[0]
                holder[free[0]] = t
            lst.append((t, q))
            issued += 4; n += 4
            cnt[t] = cnt.get(t, 0) + 1
            if cnt[t] == 4:
                endidx[t] = issued
            pos += 1
        w = issued - endidx[nxt]
        wait = None
        if endidx[nxt] > landed:
            wait = min(w, 63)
            landed = endidx[nxt]
        steps.append((lst, wait))
    assert pos == len(order)
    return slot, steps


def gen(kvpol="nt", wpol="nt", xpol="nt", stpol="sc1", rdpol="sc1", PD=4, prof=False, kp=6, cap=60, stepmax=28,
        order=None, verbose=False, noop=0, cpf=0, probe=None, clk='rt'):
    if isinstance(order, str):
        import orders
        order = orders.parse(orders.O.get(order, order))
    order = order or load_order(kp)
    slot, steps = plan_loader(order, cap, stepmax)
    if verbose:
        for b, (lst, w) in enumerate(steps):
            print(b - 1, CONS[b], "slot", slot[CONS[b]], "wait", w, " ".join(f"{t[0]}{t[1]}.{q}" for t, q in lst))
    K1 = NAME + "_kernel"
    K2 = "reduce_kernel"
    H = []
    H.append(f"; @launch kernel={K1} grid=(256,1,1) block=(256,1,1) lds=163840")
    H.append(f"; @launch kernel={K2} grid=(336,1,1) block=(256,1,1) lds=0")
    if probe:
        H.append("; @launch kernel=probe_kernel grid=(1,1,1) block=(64,1,1) lds=0")
    for _ in range(noop):
        H.append(f"; @launch kernel=noop_kernel grid=(1,1,1) block=(64,1,1) lds=0")
    H.append('.amdgcn_target "amdgcn-amd-amdhsa--gfx950"')
    H += [".text", f".globl {K1}", ".p2align 8", f".type {K1},@function", f"{K1}:"]

    P = Stream()
    P("""
    s_cmp_ge_u32 s2, 256
    s_cbranch_scc1 L_done
    s_and_b32 s3, s2, 7
    s_lshr_b32 s4, s3, 2
    s_mul_i32 s5, s4, 40
    s_add_u32 s6, s0, s5
    s_addc_u32 s7, s1, 0
    s_load_dwordx8 s[8:15], s[6:7], 0
    s_load_dwordx2 s[16:17], s[6:7], 32
    s_load_dwordx2 s[24:25], s[0:1], 96
    """)
    if probe:
        P("s_memrealtime s[64:65]")
    P("""
    s_lshr_b32 s26, s2, 3
    s_and_b32 s27, s3, 3
    s_lshl_b32 s27, s27, 2
    s_and_b32 s28, s26, 3
    s_add_u32 s27, s27, s28
    s_lshr_b32 s28, s26, 2
    v_lshrrev_b32 v1, 6, v0
    v_and_b32 v0, 63, v0
    v_readfirstlane_b32 s30, v1
    """)
    if cpf:
        P(f"""
        s_getpc_b64 s[20:21]
        v_lshlrev_b32 v2, 7, v0
        v_lshl_add_u32 v2, v1, 13, v2
        """)
        for j in range(cpf):
            P(f"global_load_dword v{44 + j}, v2, s[20:21]")
            if j + 1 < cpf:
                P("v_add_u32 v2, 0x8000, v2")
    P("""
    s_cmp_eq_u32 s30, 3
    s_cbranch_scc1 L_loader
    """)

    C = Stream()
    C("""
    v_lshrrev_b32 v1, 3, v0
    v_mul_u32_u24 v1, 896, v1
    v_and_b32 v2, 7, v0
    v_lshrrev_b32 v3, 4, v0
    v_xor_b32 v2, v2, v3
    v_lshl_add_u32 v32, v2, 4, v1
    v_xor_b32 v33, 64, v32
    v_add_u32 v33, 6144, v33
    v_add_u32 v34, 12288, v32
    v_add_u32 v35, 12288, v33
    s_lshl_b32 s31, s30, 15
    s_add_u32 s31, s31, 65536
    s_mul_i32 s57, s30, 28672
    s_waitcnt lgkmcnt(0)
    s_mul_i32 s29, s28, 86016
    s_add_u32 s32, s8, s29
    s_addc_u32 s33, s9, 0
    s_mov_b32 s34, 86016
    s_mov_b32 s35, 0x20000
    """)
    for cb in range(7):
        C(f"s_add_u32 m0, s31, {cb * 4096}")
        if cb:
            C(f"s_add_u32 s57, s57, 128")
        for rg in range(4):
            C(f"buffer_load_dwordx4 v{32 + rg}, s[32:35], s57 offen offset:{rg * 1024} {xpol} lds")
    C("""
    v_and_b32 v1, 31, v0
    v_lshrrev_b32 v2, 5, v0
    v_bfe_u32 v3, v0, 1, 3
    v_xor_b32 v3, v3, v2
    v_lshlrev_b32 v3, 4, v3
    v_lshl_add_u32 v3, v1, 7, v3
    v_add_u32 v36, s31, v3
    v_xor_b32 v37, 32, v36
    v_xor_b32 v38, 64, v36
    v_xor_b32 v39, 96, v36
    """)
    C("""
    v_and_b32 v3, 15, v0
    v_xor_b32 v3, v3, v2
    v_lshlrev_b32 v3, 4, v3
    v_lshl_add_u32 v12, v1, 9, v3
    """)
    for j in range(1, 8):
        C(f"v_xor_b32 v{12 + j}, {32 * j}, v12")
    C("""
    v_bfe_u32 v4, v0, 2, 2
    v_and_b32 v5, 3, v0
    v_bfe_u32 v6, v0, 4, 1
    v_lshlrev_b32 v6, 5, v6
    v_lshl_add_u32 v7, v5, 3, v6
    v_and_b32 v3, 1, v0
    v_lshlrev_b32 v3, 4, v3
    v_bfe_u32 v5, v0, 1, 1
    v_lshl_add_u32 v3, v5, 3, v3
    v_add_u32 v6, v6, v3
    """)
    C("""
    v_lshl_add_u32 v3, v2, 3, v4
    v_lshlrev_b32 v3, 9, v3
    v_lshl_add_u32 v3, v4, 6, v3
    v_add_u32 v8, v3, v6
    v_xor_b32 v9, 64, v8
    v_xor_b32 v10, 128, v8
    v_xor_b32 v11, 192, v8
    v_lshl_add_u32 v5, v2, 2, v4
    v_lshlrev_b32 v3, 8, v5
    v_lshl_add_u32 v3, v4, 6, v3
    v_add_u32 v20, v3, v7
    v_xor_b32 v21, 64, v20
    v_xor_b32 v22, 128, v20
    v_xor_b32 v23, 192, v20
    v_lshlrev_b32 v3, 7, v5
    v_lshrrev_b32 v4, 1, v4
    v_lshl_add_u32 v3, v4, 6, v3
    v_add_u32 v24, v3, v6
    v_xor_b32 v25, 64, v24
    v_lshlrev_b32 v30, 4, v0
    """)
    C(f"""
    s_lshl_b32 s29, s4, 3
    s_add_u32 s29, s29, s28
    s_lshl_b32 s29, s29, 4
    s_add_u32 s29, s29, s27
    s_mul_i32 s29, s29, 3
    s_add_u32 s29, s29, s30
    s_mul_i32 s29, s29, 28672
    s_add_u32 s52, s24, s29
    s_addc_u32 s53, s25, 0
    s_mov_b32 s54, 28672
    s_mov_b32 s55, 0x20000
    s_mov_b32 s56, {f32bits(math.log2(math.e) / 16.0):#x}
    """)
    XF = 112
    for cb in range(7):
        C(f"s_waitcnt vmcnt({24 - 4 * cb})")
        for i in range(4):
            s = 4 * cb + i
            C(f"ds_read_b128 a[{XF + 4 * s}:{XF + 4 * s + 3}], v{36 + i} offset:{cb * 4096}")
    C("s_waitcnt lgkmcnt(0)")

    M = []
    win = {"q": 0, "k": 0, "v": 0, "o": 0}
    aregs = {"q": range(8, 12), "k": range(12, 20), "v": range(20, 24), "o": range(24, 26)}

    def rng(p, a, n):
        return f"{p}[{a}:{a + n - 1}]"

    def add(tile, aset, rd, d, dk, b, first):
        M.append(dict(tile=tile, aset=aset, rd=rd, d=rng(dk, d, 16), b=b, first=first))

    def sreg(t):
        return ("v", 32 + 16 * t) if t < 14 else ("a", 64 + 16 * (t - 14))

    marks = {}
    for i in range(14):
        seq = [(ks, dt) for ks in range(2) for dt in range(8)] if i < 13 else [(ks, dt) for dt in range(8) for ks in range(2)]
        for ks, dt in seq:
            o = (dt >> 2) * 256 + ks * 8192
            add(("wq", i), "q", [("tr", 8 + (dt & 3), o), ("tr", 8 + (dt & 3), o + 2048)], 128 + 16 * dt, "v",
                rng("a", XF + 4 * (2 * i + ks), 4), i == 0 and ks == 0)
            marks[("q", dt)] = len(M) - 1
    for t in range(16):
        dk, d = sreg(t)
        for s in range(16):
            add(("k", t), "k", [("b128", 12 + (s & 7), (s >> 3) * 256)], d, dk, rng("a", 4 * s, 4), s == 0)
            marks[("s", t, s)] = len(M) - 1
    for h in range(2):
        for i in range(8):
            seq = [(ka, dt) for ka in range(4) for dt in range(4)] if i < 7 else [(ka, dt) for dt in range(4) for ka in range(4)]
            for ka, dt in seq:
                t = 2 * i + (ka >> 1)
                o = ka * 4096
                dk, d = ("a", 16 * dt) if h == 0 else ("v", 160 + 16 * dt)
                add((f"v{h}", i), "v", [("tr", 20 + dt, o), ("tr", 20 + dt, o + 2048)], d, dk,
                    rng("v", 32 + 8 * t + 4 * (ka & 1), 4), i == 0 and ka == 0)
                marks[("pv", h, i, ka)] = min(marks.get(("pv", h, i, ka), 1 << 30), len(M) - 1)
                marks[("o", h, dt)] = len(M) - 1
        for i in range(7):
            for nt in range(2):
                T = 2 * i + nt
                acc = 16 * ((T + 4) % 14)
                for ka in range(8):
                    o = ka * 2048
                    add((f"wo{h}", i), "o", [("tr", 24 + nt, o), ("tr", 24 + nt, o + 1024)], acc, "a",
                        rng("v", 224 + 4 * ka, 4), h == 0 and ka == 0)
                    marks[("op", h, T, ka)] = len(M) - 1
    N = len(M)
    assert N == 960

    F = []

    def fill(ready, dead, text, cost=4):
        F.append((ready, dead, cost, text))

    for dt in range(8):
        r = marks[("q", dt)] + 2
        for g in range(2):
            dl = marks[("s", 0, 2 * dt + g)]
            for j in range(4):
                a = 128 + 16 * dt + 8 * g + 2 * j
                fill(r, dl, f"v_cvt_pk_bf16_f32 v{a}, v{a}, v{a + 1}")
            for j in range(4):
                a = 128 + 16 * dt + 8 * g + 2 * j
                fill(r, dl, f"v_accvgpr_write_b32 a{4 * (2 * dt + g) + j}, v{a}")
    pv0 = marks[("pv", 0, 0, 0)]
    for t in range(16):
        r = marks[("s", t, 15)] + 2
        dk, d = sreg(t)
        for j in range(8):
            if dk == "v":
                x, y = f"v{d + 2 * j}", f"v{d + 2 * j + 1}"
            else:
                x, y = f"v{1 + (j & 1) * 2}", f"v{2 + (j & 1) * 2}"
                fill(r, pv0, f"v_accvgpr_read_b32 {x}, a{d + 2 * j}")
                fill(r, pv0, f"v_accvgpr_read_b32 {y}, a{d + 2 * j + 1}")
            if t == 0 and j == 0:
                fill(r, pv0, f"v_max_f32 v26, {x}, {y}")
            else:
                fill(r, pv0, f"v_max3_f32 v26, v26, {x}, {y}")
    r = marks[("s", 15, 15)] + 2
    for txt in ["v_mov_b32 v27, v26", "v_permlane32_swap_b32 v26, v27", "v_max_f32 v26, v26, v27",
                "v_mul_f32 v26, s56, v26"]:
        fill(r, pv0, txt)
    for t in range(16):
        dk, d = sreg(t)
        for g in range(2):
            i, ka = t >> 1, (t & 1) * 2 + g
            dl = pv0 if i == 0 else marks[("pv", 0, i - 1, 0)] + 3 * (ka + 1)
            tmp = [1, 2, 3, 4, 5, 6, 7, 31]
            src = []
            for j in range(8):
                if dk == "v":
                    src.append(d + 8 * g + j)
                else:
                    src.append(tmp[j])
                    fill(r, dl, f"v_accvgpr_read_b32 v{tmp[j]}, a{d + 8 * g + j}")
            for j in range(8):
                fill(r, dl, f"v_fma_f32 v{src[j]}, v{src[j]}, s56, -v26")
                if j:
                    fill(r, dl, f"v_exp_f32 v{src[j - 1]}, v{src[j - 1]}", 8)
            fill(r, dl, f"v_exp_f32 v{src[7]}, v{src[7]}", 8)
            for j in range(8):
                acc = 27 + (j & 1)
                if t == 0 and g == 0 and j < 2:
                    fill(r, dl, f"v_mov_b32 v{acc}, v{src[j]}")
                else:
                    fill(r, dl, f"v_add_f32 v{acc}, v{acc}, v{src[j]}")
            for j in range(4):
                fill(r, dl, f"v_cvt_pk_bf16_f32 v{32 + 8 * t + 4 * g + j}, v{src[2 * j]}, v{src[2 * j + 1]}")
    op0 = marks[("op", 0, 0, 0)]
    for txt, c in [("v_add_f32 v27, v27, v28", 4), ("v_mov_b32 v28, v27", 4), ("v_permlane32_swap_b32 v27, v28", 4),
                   ("v_add_f32 v27, v27, v28", 4), ("v_rcp_f32 v29, v27", 8)]:
        fill(r, op0, txt, c)
    for h in range(2):
        for dt in range(4):
            r = marks[("o", h, dt)] + 2
            for g in range(2):
                dl = marks[("op", h, 0, 2 * dt + g)]
                for j in range(8):
                    e = 16 * dt + 8 * g + j
                    if h == 0:
                        fill(r, dl, f"v_accvgpr_read_b32 v{160 + e}, a{e}")
                for j in range(8):
                    e = 160 + 16 * dt + 8 * g + j
                    fill(r, dl, f"v_mul_f32 v{e}, v29, v{e}")
                for j in range(4):
                    e = 160 + 16 * dt + 8 * g + 2 * j
                    fill(r, dl, f"v_cvt_pk_bf16_f32 v{224 + 4 * (2 * dt + g) + j}, v{e}, v{e + 1}")
    for T in range(14):
        r = marks[("op", 1, T, 7)] + 2
        acc = 16 * ((T + 4) % 14)
        tb = 32 + 32 * (T % 4)
        for g in range(2):
            for j in range(8):
                fill(r, N, f"v_accvgpr_read_b32 v{tb + 8 * g + j}, a{acc + 8 * g + j}")
            for j in range(4):
                fill(r, N, f"v_cvt_pk_bf16_f32 v{tb + 16 + 4 * g + j}, v{tb + 8 * g + 2 * j}, v{tb + 8 * g + 2 * j + 1}")
            tg = 2 * T + g
            if tg % 4 == 0:
                fill(r, N, f"s_mov_b32 s58, {tg * 1024}")
            fill(r, N, f"buffer_store_dwordx4 v[{tb + 16 + 4 * g}:{tb + 19 + 4 * g}], v30, s[52:55], s58 offen offset:{(tg % 4) * 1024} {stpol}", 8)

    nbar = [0]
    rd_ptr = 0
    fp = 0

    def emit_reads(j):
        m = M[j]
        cost = 0
        if j == 0 or M[j - 1]["tile"] != m["tile"]:
            assert CONS[nbar[0]] == m["tile"]
            C("s_barrier")
            nbar[0] += 1
            w = (slot[m["tile"]] // 4) * 65536
            a = m["aset"]
            if w != win[a]:
                for rg in aregs[a]:
                    if w > win[a]:
                        C(f"v_add_u32 v{rg}, {w - win[a]:#x}, v{rg}")
                    else:
                        C(f"v_subrev_u32 v{rg}, {win[a] - w:#x}, v{rg}")
                    cost += 4
                win[a] = w
        base = (slot[m["tile"]] % 4) * 16384
        ring = 224 + 4 * (j % 8)
        for n, (kind, ar, o) in enumerate(m["rd"]):
            if kind == "tr":
                C(f"ds_read_b64_tr_b16 a[{ring + 2 * n}:{ring + 2 * n + 1}], v{ar} offset:{base + o}")
            else:
                C(f"ds_read_b128 a[{ring}:{ring + 3}], v{ar} offset:{base + o}")
            cost += 4
        return cost

    def seg_start(j):
        return (j == 0 or M[j - 1]["tile"] != M[j]["tile"]) and M[j]["tile"] in HARD

    for i in range(N):
        m = M[i]
        if seg_start(i):
            while fp < len(F) and any(f[1] <= i for f in F[fp:fp + 400]):
                assert F[fp][0] - 2 < i
                C(F[fp][3]); fp += 1
            assert rd_ptr == i
            while rd_ptr < min(N, i + PD):
                emit_reads(rd_ptr); rd_ptr += 1
        while fp < len(F) and any(f[1] <= i for f in F[fp:fp + 400]):
            assert F[fp][0] - 2 < i
            C(F[fp][3]); fp += 1
        ring = 224 + 4 * (i % 8)
        c = "0" if m["first"] else m["d"]
        C(f"{MF} {m['d']}, a[{ring}:{ring + 3}], {m['b']}, {c}")
        budget = 24
        if rd_ptr < N and rd_ptr <= i + PD and not seg_start(rd_ptr):
            budget -= emit_reads(rd_ptr); rd_ptr += 1
        budget -= 4
        while fp < len(F) and F[fp][0] <= i and budget >= F[fp][2]:
            budget -= F[fp][2]
            C(F[fp][3]); fp += 1
    while fp < len(F):
        C(F[fp][3]); fp += 1
    assert nbar[0] == len(CONS)
    if prof:
        C(f"""
        s_waitcnt vmcnt(0)
        s_memtime s[60:61]
        s_waitcnt lgkmcnt(0)
        s_lshl_b32 s29, s2, 10
        s_lshl_b32 s31, s30, 2
        s_add_u32 s29, s29, s31
        s_add_u32 s29, s29, {PROF_OFF + 512}
        s_add_u32 s52, s24, s29
        s_addc_u32 s53, s25, 0
        s_mov_b32 s54, 4
        v_mov_b32 v1, s60
        v_lshlrev_b32 v2, 2, v0
        buffer_store_dword v1, v2, s[52:55], 0 offen
        """)
    if probe:
        C(f"""
        s_waitcnt vmcnt(0)
        s_memrealtime s[72:73]
        s_lshl_b32 s29, s2, 6
        s_add_u32 s29, s29, {PROF_OFF}
        s_add_u32 s52, s24, s29
        s_addc_u32 s53, s25, 0
        s_mov_b32 s54, 8
        s_waitcnt lgkmcnt(0)
        v_mov_b32 v4, s64
        v_mov_b32 v5, s72
        buffer_store_dwordx2 v[4:5], v30, s[52:55], 0 offen
        """)
    C("s_endpgm")

    Ld = Stream()
    Ld("L_loader:")
    if prof:
        Ld("s_memtime s[62:63]\ns_memrealtime s[56:57]")
    Ld("""
    v_lshrrev_b32 v1, 5, v0
    v_and_b32 v2, 31, v0
    v_lshrrev_b32 v3, 2, v2
    v_xor_b32 v3, v3, v1
    v_and_b32 v4, 3, v0
    v_lshlrev_b32 v4, 4, v4
    v_lshl_add_u32 v3, v3, 6, v4
    v_lshl_add_u32 v8, v1, 13, v3
    v_xor_b32 v9, 128, v8
    v_add_u32 v9, 15360, v9
    v_add_u32 v10, 30720, v8
    v_add_u32 v11, 30720, v9
    s_waitcnt lgkmcnt(0)
    s_lshl_b32 s29, s27, 9
    s_add_u32 s44, s14, s29
    s_addc_u32 s45, s15, 0
    s_sub_u32 s46, 3670016, s29
    s_mov_b32 s47, 0x20000
    """)
    setup2 = """
    v_xor_b32 v3, v2, v1
    v_lshlrev_b32 v3, 4, v3
    v_lshl_add_u32 v12, v1, 9, v3
    """ + "\n".join(f"v_xor_b32 v{12 + j}, {32 * j}, v12" for j in range(1, 8)) + """
    v_lshrrev_b32 v1, 4, v0
    v_bfe_u32 v3, v0, 2, 2
    v_xor_b32 v3, v3, v1
    v_lshl_add_u32 v3, v3, 6, v4
    v_lshl_add_u32 v20, v1, 9, v3
    v_add_u32 v21, 1024, v20
    v_add_u32 v22, 2048, v20
    v_add_u32 v23, 3072, v20
    v_lshrrev_b32 v2, 3, v0
    v_mul_u32_u24 v2, 896, v2
    v_bfe_u32 v3, v0, 2, 1
    v_and_b32 v1, 1, v1
    v_xor_b32 v3, v3, v1
    v_lshl_add_u32 v3, v3, 6, v4
    v_add_u32 v24, v2, v3
    v_add_u32 v25, 6144, v24
    v_add_u32 v26, 12288, v24
    v_add_u32 v27, 18432, v24
    s_lshl_b32 s29, s28, 4
    s_add_u32 s29, s29, s27
    s_lshl_b32 s29, s29, 18
    s_add_u32 s36, s10, s29
    s_addc_u32 s37, s11, 0
    s_mov_b32 s38, 262144
    s_mov_b32 s39, 0x20000
    s_add_u32 s40, s12, s29
    s_addc_u32 s41, s13, 0
    s_mov_b32 s42, 262144
    s_mov_b32 s43, 0x20000
    s_mul_i32 s29, s27, 229376
    s_add_u32 s48, s16, s29
    s_addc_u32 s49, s17, 0
    s_mov_b32 s50, 229376
    s_mov_b32 s51, 0x20000
    """

    def issue(t, q):
        kind, i = t
        Ld(f"s_mov_b32 m0, {slot[t] * 16384 + q * 4096}")
        if kind == "wq":
            so, srd, vb, pol = i * 262144 + q * 65536, 44, 8, wpol
        elif kind == "k":
            so, srd, vb, pol = i * 16384 + q * 4096, 36, 12 + 4 * (q & 1), kvpol
        elif kind[0] == "v":
            so, srd, vb, pol = int(kind[1]) * 256 + i * 32768 + q * 8192, 40, 20, kvpol
        else:
            so, srd, vb, pol = (int(kind[2]) * 128 + q * 32) * 896 + i * 128, 48, 24, wpol
        Ld(f"s_mov_b32 s31, {so}")
        for p in range(4):
            Ld(f"buffer_load_dwordx4 v{vb + p}, s[{srd}:{srd + 3}], s31 offen offset:{p * 1024} {pol} lds")

    def stamp(idx):
        if prof:
            if idx % 2:
                Ld(f"s_memrealtime s[58:59]")
            Ld(f"s_memtime s[60:61]\ns_waitcnt lgkmcnt(0)\nv_writelane_b32 v{40 + idx // 64}, s60, {idx % 64}")
            if idx % 2:
                Ld(f"v_writelane_b32 v42, s58, {idx // 2}")

    for b, (lst, wait) in enumerate(steps):
        for t, q in lst:
            if b == 0:
                assert t[0] == "wq"
            issue(t, q)
        if b == 0:
            Ld(setup2)
        if wait is not None:
            Ld(f"s_waitcnt vmcnt({wait})")
        stamp(2 * b)
        Ld("s_barrier")
        stamp(2 * b + 1)
        if probe and b in PB:
            Ld(f"s_memrealtime s[{66 + 2 * PB.index(b)}:{67 + 2 * PB.index(b)}]")
    if probe:
        Ld(f"""
        s_lshl_b32 s29, s2, 6
        s_add_u32 s29, s29, {PROF_OFF + 8}
        s_add_u32 s52, s24, s29
        s_addc_u32 s53, s25, 0
        s_mov_b32 s54, 48
        s_mov_b32 s55, 0x20000
        s_waitcnt lgkmcnt(0)
        """)
        for j in range(len(PB)):
            Ld(f"v_writelane_b32 v40, s{66 + 2 * j}, {j}")
        Ld("v_lshlrev_b32 v2, 2, v0\nbuffer_store_dword v40, v2, s[52:55], 0 offen")
    if prof:
        Ld(f"""
        v_writelane_b32 v41, s62, 63
        v_writelane_b32 v42, s56, 63
        s_lshl_b32 s29, s2, 10
        s_add_u32 s29, s29, {PROF_OFF}
        s_add_u32 s52, s24, s29
        s_addc_u32 s53, s25, 0
        s_mov_b32 s54, 1024
        s_mov_b32 s55, 0x20000
        v_lshlrev_b32 v2, 2, v0
        buffer_store_dword v42, v2, s[52:55], 0 offen offset:768
        buffer_store_dword v40, v2, s[52:55], 0 offen
        buffer_store_dword v41, v2, s[52:55], 0 offen offset:256
        """)
    Ld("L_done:")
    Ld("s_endpgm")

    R = Stream()
    R(f"""
    s_cmp_ge_u32 s2, 336
    s_cbranch_scc1 L_rdone
    s_load_dwordx2 s[8:9], s[0:1], 80
    s_load_dwordx2 s[10:11], s[0:1], 96
    """)
    if probe:
        R("s_memrealtime s[64:65]")
    R(f"""
    v_lshrrev_b32 v1, 6, v0
    v_and_b32 v0, 63, v0
    v_readfirstlane_b32 s30, v1
    s_mul_i32 s3, s2, 3121
    s_lshr_b32 s3, s3, 16
    s_mul_i32 s4, s3, 21
    s_sub_u32 s4, s2, s4
    s_lshl_b32 s4, s4, 2
    s_add_u32 s4, s4, s30
    v_lshlrev_b32 v2, 4, v0
    s_mul_i32 s5, s3, 1376256
    s_lshl_b32 s6, s4, 10
    s_waitcnt lgkmcnt(0)
    s_add_u32 s12, s10, s5
    s_addc_u32 s13, s11, 0
    s_mov_b32 s14, 1376256
    s_mov_b32 s15, 0x20000
    """)
    for h in range(16):
        R(f"buffer_load_dwordx4 v[{16 + 4 * h}:{19 + 4 * h}], v2, s[12:15], s6 offen {rdpol}")
        if h < 15:
            R("s_add_u32 s6, s6, 86016")
    R("""
    s_mov_b32 s16, s8
    s_mov_b32 s17, s9
    s_mov_b32 s18, 1376256
    s_mov_b32 s19, 0x20000
    s_cmp_ge_u32 s4, 28
    s_cselect_b32 s20, 1, 0
    s_cmp_ge_u32 s4, 56
    s_cselect_b32 s20, 2, s20
    s_mul_i32 s21, s20, 28
    s_sub_u32 s21, s4, s21
    s_and_b32 s22, s3, 7
    s_mul_i32 s22, s22, 3
    s_add_u32 s22, s22, s20
    s_mul_i32 s22, s22, 57344
    s_lshr_b32 s23, s3, 3
    s_mul_i32 s23, s23, 896
    s_add_u32 s22, s22, s23
    s_lshl_b32 s21, s21, 5
    s_add_u32 s22, s22, s21
    v_and_b32 v3, 31, v0
    v_mul_u32_u24 v3, 1792, v3
    v_lshrrev_b32 v4, 5, v0
    v_lshl_add_u32 v3, v4, 4, v3
    """)
    for h in range(16):
        R(f"s_waitcnt vmcnt({15 - h})")
        for j in range(4):
            x = 16 + 4 * h + j
            if h == 0:
                R(f"v_lshlrev_b32 v{8 + 2 * j}, 16, v{x}")
                R(f"v_and_b32 v{9 + 2 * j}, 0xffff0000, v{x}")
            else:
                R(f"v_lshlrev_b32 v5, 16, v{x}")
                R(f"v_and_b32 v6, 0xffff0000, v{x}")
                R(f"v_add_f32 v{8 + 2 * j}, v{8 + 2 * j}, v5")
                R(f"v_add_f32 v{9 + 2 * j}, v{9 + 2 * j}, v6")
    for j in range(4):
        R(f"v_cvt_pk_bf16_f32 v{4 + j}, v{8 + 2 * j}, v{9 + 2 * j}")
    R("buffer_store_dwordx4 v[4:7], v3, s[16:19], s22 offen")
    if probe:
        R(f"""
        s_waitcnt vmcnt(0)
        s_memrealtime s[72:73]
        s_and_b32 s29, s2, 255
        s_lshl_b32 s29, s29, 6
        s_add_u32 s29, s29, {PROF_OFF + 56}
        s_add_u32 s12, s10, s29
        s_addc_u32 s13, s11, 0
        s_mov_b32 s14, 8
        s_waitcnt lgkmcnt(0)
        v_mov_b32 v4, s64
        v_mov_b32 v5, s72
        buffer_store_dwordx2 v[4:5], v2, s[12:15], 0 offen
        """)
    R("L_rdone:")
    R("s_endpgm")

    body = P.finish() + C.finish() + Ld.finish()
    if clk == "cyc":
        body = [l.replace("s_memrealtime", "s_memtime") for l in body]
    if verbose:
        print("consumer nops", C.nops, "instructions", len(C.ins))
    T = H + ["    " + l if not l.endswith(":") else l for l in body]
    T += [f".globl {K2}", ".p2align 8", f".type {K2},@function", f"{K2}:"]
    T += ["    " + l if not l.endswith(":") else l for l in R.finish()]
    ks = [(K1, 512, 256), (K2, 80, 80)]
    if probe:
        items, mult = probe
        if items == "all":
            items = [("span", 1, 0)] + [("avg", f, 0) for f in range(2, 11)] + [("avg", 1, 0), ("span", 0, 0), ("gap", 14, 1), ("span", 15, 14), ("span", 9, 9), ("span", 1, 1)]
        Q = Stream()
        Q(f"""
        s_cmp_ge_u32 s2, 1
        s_cbranch_scc1 L_pdone
        s_load_dwordx2 s[10:11], s[0:1], 96
        s_load_dwordx2 s[16:17], s[0:1], 88
        v_lshlrev_b32 v2, 6, v0
        v_mov_b32 v3, 0
        s_waitcnt lgkmcnt(0)
        s_add_u32 s12, s10, {PROF_OFF}
        s_addc_u32 s13, s11, 0
        s_mov_b32 s14, 16384
        s_mov_b32 s15, 0x20000
        s_mov_b32 s18, 64
        s_mov_b32 s19, 0x20000
        """)
        for n, (mode, fa, fb) in enumerate(items):
            for j in range(4):
                Q(f"s_mov_b32 s20, {j * 4096}")
                Q(f"buffer_load_dword v{8 + j}, v2, s[12:15], s20 offen offset:{4 * fa}")
                Q(f"buffer_load_dword v{12 + j}, v2, s[12:15], s20 offen offset:{4 * fb}")
            Q("s_waitcnt vmcnt(0)")
            Q("v_readfirstlane_b32 s21, v12")
            Q("s_sub_u32 s21, s21, 0x100000")
            for j in range(8):
                Q(f"v_subrev_u32 v{8 + j}, s21, v{8 + j}")
            Q("s_mov_b32 s25, 0")
            if mode.startswith("avg"):
                for j in range(4):
                    Q(f"v_sub_u32 v{8 + j}, v{8 + j}, v{12 + j}")
                Q("v_add_u32 v8, v8, v9\nv_add_u32 v10, v10, v11\nv_add_u32 v8, v8, v10\ns_mov_b32 s22, 0")
                if mode != "avg":
                    Q("v_bfe_u32 v9, v0, 2, 1")
                    if mode == "avgA":
                        Q("v_xor_b32 v9, 1, v9")
                    Q("v_mul_u32_u24 v8, v8, v9\nv_lshlrev_b32 v8, 1, v8")
                Q("s_nop 4")
                Q(f"L_pl{n}:")
                Q(f"v_readlane_b32 s23, v8, s25\ns_add_u32 s22, s22, s23")
                Q(f"s_add_u32 s25, s25, 1\ns_cmp_lt_u32 s25, 64\ns_cbranch_scc1 L_pl{n}")
                Q("s_lshr_b32 s22, s22, 8")
            else:
                opa, opb = {"span": ("max", "min"), "gap": ("min", "max"), "maxmax": ("max", "max"), "minmin": ("min", "min")}[mode]
                Q(f"v_{opa}_u32 v8, v8, v9\nv_{opa}_u32 v10, v10, v11\nv_{opa}_u32 v8, v8, v10")
                Q(f"v_{opb}_u32 v12, v12, v13\nv_{opb}_u32 v14, v14, v15\nv_{opb}_u32 v12, v12, v14")
                Q("v_readlane_b32 s22, v8, 0\nv_readlane_b32 s24, v12, 0")
                Q(f"L_pl{n}:")
                Q(f"v_readlane_b32 s23, v8, s25\ns_{opa}_u32 s22, s22, s23")
                Q(f"v_readlane_b32 s23, v12, s25\ns_{opb}_u32 s24, s24, s23")
                Q(f"s_add_u32 s25, s25, 1\ns_cmp_lt_u32 s25, 64\ns_cbranch_scc1 L_pl{n}")
                Q("s_sub_u32 s22, s22, s24")
            Q(f"s_min_u32 s22, s22, {10000 if clk == 'rt' else 1000000}\nv_writelane_b32 v3, s22, {n}")
            if n == 0:
                Q(f"s_mul_i32 s40, s22, {mult}")
        Q(f"""
        v_lshlrev_b32 v2, 2, v0
        buffer_store_dword v3, v2, s[16:19], 0 offen
        s_memrealtime s[26:27]
        s_waitcnt lgkmcnt(0)
        L_spin:
        s_memrealtime s[28:29]
        s_waitcnt lgkmcnt(0)
        s_sub_u32 s30, s28, s26
        s_cmp_lt_u32 s30, s40
        s_cbranch_scc1 L_spin
        L_pdone:
        s_endpgm
        """)
        T += [".globl probe_kernel", ".p2align 8", ".type probe_kernel,@function", "probe_kernel:"]
        T += ["    " + l if not l.endswith(":") else l for l in Q.finish()]
        ks.append(("probe_kernel", 16, 16))
    if noop:
        T += [".globl noop_kernel", ".p2align 8", ".type noop_kernel,@function", "noop_kernel:", "    s_endpgm"]
        ks.append(("noop_kernel", 8, 8))
    if cpf:
        T += [".fill 3200, 4, 0xbf800000"]
    T += ['.section .rodata,"a"']
    for k, nv, ao in ks:
        T += [".p2align 6", f".amdhsa_kernel {k}", f"  .amdhsa_next_free_vgpr {nv}", "  .amdhsa_next_free_sgpr 102",
              f"  .amdhsa_accum_offset {ao}", "  .amdhsa_group_segment_fixed_size 0", "  .amdhsa_kernarg_size 104",
              "  .amdhsa_user_sgpr_count 2", "  .amdhsa_user_sgpr_kernarg_segment_ptr 1",
              "  .amdhsa_system_sgpr_workgroup_id_x 1", ".end_amdhsa_kernel"]
    return "\n".join(T) + "\n"


if __name__ == "__main__":
    out = sys.argv[1] if len(sys.argv) > 1 else f"cdna_kernels/{NAME}.s"
    kw = {}
    for a in sys.argv[2:]:
        k, v = a.split("=", 1); v = v.replace("+", " ")
        kw[k] = eval(v) if v and (v[0].isdigit() or v[0] in "([" or v in ("True", "False")) else v
    open(out, "w").write(gen(verbose=True, **kw))
```

```python
import re

TRANS = ("v_exp_f32", "v_rcp_f32", "v_log_f32", "v_rsq_f32", "v_sqrt_f32")


def regs_of(tok):
    tok = tok.strip()
    neg = tok.startswith("-")
    if neg:
        tok = tok[1:]
    m = re.fullmatch(r"([vas])(\d+)", tok)
    if m:
        return [(m.group(1), int(m.group(2)))]
    m = re.fullmatch(r"([vas])\[(\d+):(\d+)\]", tok)
    if m:
        return [(m.group(1), i) for i in range(int(m.group(2)), int(m.group(3)) + 1)]
    if tok in ("m0", "vcc", "exec"):
        return [(tok, 0)]
    return []


class Ins:
    __slots__ = ("text", "op", "kind", "w", "r", "srcc", "wide", "touch")

    def __init__(self, text):
        self.text = text
        t = text.split(";")[0].strip()
        self.touch = []
        if ";+" in text:
            for tok in text.split(";+")[1].split():
                self.touch += regs_of(tok)
            self.text = t
        parts = t.split(None, 1)
        self.op = op = parts[0]
        ops = []
        if len(parts) > 1:
            ops = [o.strip() for o in parts[1].split(",")]
            ops = [o.split()[0] if o else o for o in ops]
        R = [regs_of(o) for o in ops]
        self.w, self.r, self.srcc, self.wide = [], [], [], False
        flat = lambda xs: [y for x in xs for y in x]
        if op.endswith(":"):
            self.kind = "label"
        elif op.startswith("v_mfma"):
            self.kind = "mfma"
            self.w = R[0]; self.r = R[1] + R[2]; self.srcc = R[3]
        elif op.startswith("ds_read"):
            self.kind = "ds"; self.w = R[0]; self.r = flat(R[1:])
        elif op.startswith("ds_"):
            self.kind = "ds"; self.r = flat(R)
        elif op.startswith("buffer_load"):
            self.kind = "vmem"
            if " lds" in t:
                self.r = flat(R) + [("m0", 0)]
            else:
                self.w = R[0]; self.r = flat(R[1:])
        elif op.startswith("buffer_store") or op.startswith("buffer_atomic"):
            self.kind = "vmem"; self.r = flat(R)
            self.wide = len(R[0]) >= 3
            self.srcc = R[0]
        elif op.startswith("v_permlane"):
            self.kind = "valu"; self.w = flat(R); self.r = flat(R)
        elif op.startswith("v_"):
            self.kind = "trans" if re.sub(r"_e(32|64)$", "", op) in TRANS else "valu"
            self.w = R[0]; self.r = flat(R[1:])
            if op.startswith("v_writelane") or op.startswith("v_fmac"):
                self.r += R[0]
        elif op.startswith("s_"):
            self.kind = "salu"
            if op.startswith(("s_cmp", "s_waitcnt", "s_barrier", "s_nop", "s_cbranch", "s_branch", "s_endpgm", "s_setprio", "s_sleep")):
                self.r = flat(R)
            else:
                self.w = R[0] if R else []; self.r = flat(R[1:])
        else:
            self.kind = "other"


class Stream:
    def __init__(self, auto_lgkm=True):
        self.ins = []
        self.auto = auto_lgkm

    def __call__(self, text):
        for t in text.split("\n"):
            t = t.strip()
            if t:
                self.ins.append(Ins(t))

    def finish(self):
        out = []
        t = 0
        last_mfma = -100
        mlen = 7
        wv = {}
        sm = {}
        wd = {}
        cread = {}
        sdata = {}
        dsq = []
        nops = 0
        for I in self.ins:
            if I.kind in ("label", "other"):
                out.append(I.text)
                continue
            if I.op == "s_waitcnt" and "lgkmcnt" in I.text:
                n = int(re.search(r"lgkmcnt\((\d+)\)", I.text).group(1))
                if len(dsq) > n:
                    dsq = dsq[len(dsq) - n:] if n else []
            elif self.auto and dsq:
                touch = set(I.r) | set(I.w) | set(I.srcc) | set(I.touch)
                hit = -1
                for k, s in enumerate(dsq):
                    if s & touch:
                        hit = k
                if hit >= 0:
                    n = len(dsq) - 1 - hit
                    n = min(n, 15)
                    out.append(f"s_waitcnt lgkmcnt({n})")
                    t += 1
                    dsq = dsq[len(dsq) - n:] if n else []
            if I.kind == "ds" and len(dsq) >= 15:
                out.append("s_waitcnt lgkmcnt(13)")
                t += 1
                dsq = dsq[len(dsq) - 13:]
            tt = t + 1
            if I.kind == "mfma":
                tt = max(tt, last_mfma + mlen)
            need = 0

            def req(tp, n):
                nonlocal need
                need = max(need, n - (tt - tp - 1))
            isvalu = I.kind in ("valu", "trans")
            for x in I.r + (I.srcc if I.kind != "mfma" else []):
                if x not in wv:
                    continue
                tp, k = wv[x]
                if k == "mfma":
                    req(tp, 12 - sm.get(x, 0))
                elif k in ("valu", "trans"):
                    if I.kind == "mfma":
                        req(tp, 2)
                    elif I.op.startswith("v_permlane"):
                        req(tp, 2)
                    elif I.op.startswith(("v_readfirstlane", "v_readlane")) and x[0] == "v":
                        req(tp, 1)
                    elif x[0] in ("s", "vcc"):
                        if I.kind == "vmem":
                            req(tp, 5)
                        elif isvalu:
                            req(tp, 4 if I.op.startswith(("v_readlane", "v_writelane")) else 2)
                    if k == "trans" and isvalu:
                        req(tp, 1)
                elif k == "salu" and x[0] == "m0" and I.kind == "vmem":
                    req(tp, 1)
            if I.kind == "mfma":
                for x in I.srcc:
                    if x in wv:
                        tp, k = wv[x]
                        if k in ("valu", "trans"):
                            req(tp, 2)
                        elif k == "mfma" and (I.srcc != I.w or wd.get(x) != I.w):
                            req(tp, 10 - sm.get(x, 0))
                if I.srcc == []:
                    for x in I.w:
                        if x in wv and wv[x][1] == "mfma":
                            req(wv[x][0], 10 - sm.get(x, 0))
            else:
                for x in I.w:
                    if x in wv and wv[x][1] == "mfma":
                        req(wv[x][0], 12 - sm.get(x, 0))
                    if isvalu and x in cread:
                        req(cread[x][0], cread[x][1])
                    if x in sdata:
                        req(sdata[x], 2)
            while need > 0:
                n = min(need, 16)
                out.append(f"s_nop {n - 1}")
                nops += n
                t += n
                need -= n
            tt = t + 1
            if I.kind == "mfma":
                tt = max(tt, last_mfma + mlen)
                last_mfma = tt
                mlen = 3 if "16x16" in I.op else 7
                for x in I.srcc:
                    cread[x] = (tt, mlen)
                for x in I.w:
                    sm[x] = 4 if mlen == 3 else 0
                    wd[x] = I.w
            if I.op == "s_nop":
                tt += int(I.text.split()[1])
            t = tt
            if I.kind == "vmem" and I.wide:
                for x in I.srcc:
                    sdata[x] = t
            if I.kind == "ds":
                dsq.append(set(I.w))
                for x in I.w:
                    wv.pop(x, None)
            elif I.kind == "vmem":
                for x in I.w:
                    wv.pop(x, None)
            else:
                for x in I.w:
                    wv[x] = (t, I.kind)
            out.append(I.text)
        self.nops = nops
        return out
```

```python
import sys, math, struct
sys.path.insert(0, "dev")
from asmlib import Stream

NAME = "concat_heads__mha_block_cached__gqa_block_cached__near_ridge"
MF = "v_mfma_f32_32x32x16_bf16"
NSLOT = 10
PROF_OFF = 0x4000000
PB = [0, 4, 14, 20, 30, 38, 45, 53, 59]


def f32bits(x):
    return struct.unpack("<I", struct.pack("<f", x))[0]


def merge(a, b):
    out = []
    ia = ib = 0
    while ia < len(a) or ib < len(b):
        if ib >= len(b) or (ia < len(a) and ia * len(b) <= ib * len(a)):
            out.append(a[ia]); ia += 1
        else:
            out.append(b[ib]); ib += 1
    return out


def quarters(tiles):
    return [(t, q) for t in tiles for q in range(4)]


CONS = ([("wq", i) for i in range(14)] + [("k", i) for i in range(16)] + [("v0", i) for i in range(8)] +
        [("wo0", i) for i in range(7)] + [("v1", i) for i in range(8)] + [("wo1", i) for i in range(7)])
HARD = {("wq", 0), ("v0", 0), ("wo0", 0), ("wo1", 0)}


def load_order(kp=6):
    wq = [("wq", i) for i in range(14)]
    k = [("k", i) for i in range(16)]
    v0 = [("v0", i) for i in range(8)]
    v1 = [("v1", i) for i in range(8)]
    o0 = [("wo0", i) for i in range(7)]
    o1 = [("wo1", i) for i in range(7)]
    L = quarters(wq[:4]) + merge(quarters(wq[4:]), quarters(k[:kp])) + quarters(k[kp:])
    L += quarters(v0[:4]) + merge(quarters(v0[4:]), quarters(o0[:4]))
    L += merge(quarters(o0[4:]), quarters(v1[:3])) + quarters(v1[3:5])
    L += merge(quarters(o1[:5]), quarters(v1[5:])) + quarters(o1[5:])
    return L


def plan_loader(order, cap=60, stepmax=28):
    cidx = {t: i for i, t in enumerate(CONS)}
    slot = {}
    holder = {s: None for s in range(NSLOT)}
    for s in range(4, 10):
        holder[s] = "x"
    steps = []
    pos = 0
    issued = 0
    landed = 0
    endidx = {}
    cnt = {}
    for b in range(-1, len(CONS) - 1):
        if b >= 0:
            upto = b - 1 if CONS[b] in HARD else b - 2
            for s in holder:
                h = holder[s]
                if h == "x" or (h is not None and cidx[h] <= upto):
                    holder[s] = None
        nxt = CONS[b + 1]
        lst = []
        n = 0
        while pos < len(order):
            t, q = order[pos]
            forced = cnt.get(nxt, 0) < 4
            if not forced and (issued + 4 - landed > cap or (n + 4 > stepmax and b >= 0)):
                break
            if t not in slot:
                free = [s for s in holder if holder[s] is None]
                if not free:
                    assert not forced, ("deadlock", b, t, nxt)
                    break
                slot[t] = free[0]
                holder[free[0]] = t
            lst.append((t, q))
            issued += 4; n += 4
            cnt[t] = cnt.get(t, 0) + 1
            if cnt[t] == 4:
                endidx[t] = issued
            pos += 1
        w = issued - endidx[nxt]
        wait = None
        if endidx[nxt] > landed:
            wait = min(w, 63)
            landed = endidx[nxt]
        steps.append((lst, wait))
    assert pos == len(order)
    return slot, steps


def tail_kernels(rdpol='sc1', probe=None, clk='rt', with_red=True):
    K2 = 'reduce_kernel'
    T = []
    R = Stream()
    R(f"""
    s_cmp_ge_u32 s2, 336
    s_cbranch_scc1 L_rdone
    s_load_dwordx2 s[8:9], s[0:1], 80
    s_load_dwordx2 s[10:11], s[0:1], 96
    """)
    if probe:
        R("s_memrealtime s[64:65]")
    R(f"""
    v_lshrrev_b32 v1, 6, v0
    v_and_b32 v0, 63, v0
    v_readfirstlane_b32 s30, v1
    s_mul_i32 s3, s2, 3121
    s_lshr_b32 s3, s3, 16
    s_mul_i32 s4, s3, 21
    s_sub_u32 s4, s2, s4
    s_lshl_b32 s4, s4, 2
    s_add_u32 s4, s4, s30
    v_lshlrev_b32 v2, 4, v0
    s_mul_i32 s5, s3, 1376256
    s_lshl_b32 s6, s4, 10
    s_waitcnt lgkmcnt(0)
    s_add_u32 s12, s10, s5
    s_addc_u32 s13, s11, 0
    s_mov_b32 s14, 1376256
    s_mov_b32 s15, 0x20000
    """)
    for h in range(16):
        R(f"buffer_load_dwordx4 v[{16 + 4 * h}:{19 + 4 * h}], v2, s[12:15], s6 offen {rdpol}")
        if h < 15:
            R("s_add_u32 s6, s6, 86016")
    R("""
    s_mov_b32 s16, s8
    s_mov_b32 s17, s9
    s_mov_b32 s18, 1376256
    s_mov_b32 s19, 0x20000
    s_cmp_ge_u32 s4, 28
    s_cselect_b32 s20, 1, 0
    s_cmp_ge_u32 s4, 56
    s_cselect_b32 s20, 2, s20
    s_mul_i32 s21, s20, 28
    s_sub_u32 s21, s4, s21
    s_and_b32 s22, s3, 7
    s_mul_i32 s22, s22, 3
    s_add_u32 s22, s22, s20
    s_mul_i32 s22, s22, 57344
    s_lshr_b32 s23, s3, 3
    s_mul_i32 s23, s23, 896
    s_add_u32 s22, s22, s23
    s_lshl_b32 s21, s21, 5
    s_add_u32 s22, s22, s21
    v_and_b32 v3, 31, v0
    v_mul_u32_u24 v3, 1792, v3
    v_lshrrev_b32 v4, 5, v0
    v_lshl_add_u32 v3, v4, 4, v3
    """)
    for h in range(16):
        R(f"s_waitcnt vmcnt({15 - h})")
        for j in range(4):
            x = 16 + 4 * h + j
            if h == 0:
                R(f"v_lshlrev_b32 v{8 + 2 * j}, 16, v{x}")
                R(f"v_and_b32 v{9 + 2 * j}, 0xffff0000, v{x}")
            else:
                R(f"v_lshlrev_b32 v5, 16, v{x}")
                R(f"v_and_b32 v6, 0xffff0000, v{x}")
                R(f"v_add_f32 v{8 + 2 * j}, v{8 + 2 * j}, v5")
                R(f"v_add_f32 v{9 + 2 * j}, v{9 + 2 * j}, v6")
    for j in range(4):
        R(f"v_cvt_pk_bf16_f32 v{4 + j}, v{8 + 2 * j}, v{9 + 2 * j}")
    R("buffer_store_dwordx4 v[4:7], v3, s[16:19], s22 offen")
    if probe:
        R(f"""
        s_waitcnt vmcnt(0)
        s_memrealtime s[72:73]
        s_and_b32 s29, s2, 255
        s_lshl_b32 s29, s29, 6
        s_add_u32 s29, s29, {PROF_OFF + 56}
        s_add_u32 s12, s10, s29
        s_addc_u32 s13, s11, 0
        s_mov_b32 s14, 8
        s_waitcnt lgkmcnt(0)
        v_mov_b32 v4, s64
        v_mov_b32 v5, s72
        buffer_store_dwordx2 v[4:5], v2, s[12:15], 0 offen
        """)
    R("L_rdone:")
    R("s_endpgm")

    T += [f".globl {K2}", ".p2align 8", f".type {K2},@function", f"{K2}:"]
    T += ["    " + l if not l.endswith(":") else l for l in R.finish()]
    ks = [(K2, 80, 80)]
    if not with_red:
        T, ks = [], []
    if probe:
        items, mult = probe
        if items == "all":
            items = [("span", 1, 0)] + [("avg", f, 0) for f in range(2, 11)] + [("avg", 1, 0), ("span", 0, 0), ("gap", 14, 1), ("span", 15, 14), ("span", 9, 9), ("span", 1, 1)]
            if not with_red:
                items = items[:11] + [("avg", 14, 0), ("span", 14, 0), ("avg", 15, 0), ("span", 15, 0), ("span", 1, 1)]
        Q = Stream()
        Q(f"""
        s_cmp_ge_u32 s2, 1
        s_cbranch_scc1 L_pdone
        s_load_dwordx2 s[10:11], s[0:1], 96
        s_load_dwordx2 s[16:17], s[0:1], 88
        v_lshlrev_b32 v2, 6, v0
        v_mov_b32 v3, 0
        s_waitcnt lgkmcnt(0)
        s_add_u32 s12, s10, {PROF_OFF}
        s_addc_u32 s13, s11, 0
        s_mov_b32 s14, 16384
        s_mov_b32 s15, 0x20000
        s_mov_b32 s18, 64
        s_mov_b32 s19, 0x20000
        """)
        for n, (mode, fa, fb) in enumerate(items):
            for j in range(4):
                Q(f"s_mov_b32 s20, {j * 4096}")
                Q(f"buffer_load_dword v{8 + j}, v2, s[12:15], s20 offen offset:{4 * fa}")
                Q(f"buffer_load_dword v{12 + j}, v2, s[12:15], s20 offen offset:{4 * fb}")
            Q("s_waitcnt vmcnt(0)")
            Q("v_readfirstlane_b32 s21, v12")
            Q("s_sub_u32 s21, s21, 0x100000")
            for j in range(8):
                Q(f"v_subrev_u32 v{8 + j}, s21, v{8 + j}")
            Q("s_mov_b32 s25, 0")
            if mode.startswith("avg"):
                for j in range(4):
                    Q(f"v_sub_u32 v{8 + j}, v{8 + j}, v{12 + j}")
                Q("v_add_u32 v8, v8, v9\nv_add_u32 v10, v10, v11\nv_add_u32 v8, v8, v10\ns_mov_b32 s22, 0")
                if mode != "avg":
                    Q("v_bfe_u32 v9, v0, 2, 1")
                    if mode == "avgA":
                        Q("v_xor_b32 v9, 1, v9")
                    Q("v_mul_u32_u24 v8, v8, v9\nv_lshlrev_b32 v8, 1, v8")
                Q("s_nop 4")
                Q(f"L_pl{n}:")
                Q(f"v_readlane_b32 s23, v8, s25\ns_add_u32 s22, s22, s23")
                Q(f"s_add_u32 s25, s25, 1\ns_cmp_lt_u32 s25, 64\ns_cbranch_scc1 L_pl{n}")
                Q("s_lshr_b32 s22, s22, 8")
            else:
                opa, opb = {"span": ("max", "min"), "gap": ("min", "max"), "maxmax": ("max", "max"), "minmin": ("min", "min")}[mode]
                Q(f"v_{opa}_u32 v8, v8, v9\nv_{opa}_u32 v10, v10, v11\nv_{opa}_u32 v8, v8, v10")
                Q(f"v_{opb}_u32 v12, v12, v13\nv_{opb}_u32 v14, v14, v15\nv_{opb}_u32 v12, v12, v14")
                Q("v_readlane_b32 s22, v8, 0\nv_readlane_b32 s24, v12, 0")
                Q(f"L_pl{n}:")
                Q(f"v_readlane_b32 s23, v8, s25\ns_{opa}_u32 s22, s22, s23")
                Q(f"v_readlane_b32 s23, v12, s25\ns_{opb}_u32 s24, s24, s23")
                Q(f"s_add_u32 s25, s25, 1\ns_cmp_lt_u32 s25, 64\ns_cbranch_scc1 L_pl{n}")
                Q("s_sub_u32 s22, s22, s24")
            Q(f"s_min_u32 s22, s22, {10000 if clk == 'rt' else 1000000}\nv_writelane_b32 v3, s22, {n}")
            if n == 0:
                Q(f"s_mul_i32 s40, s22, {mult}")
        Q(f"""
        v_lshlrev_b32 v2, 2, v0
        buffer_store_dword v3, v2, s[16:19], 0 offen
        s_memrealtime s[26:27]
        s_waitcnt lgkmcnt(0)
        L_spin:
        s_memrealtime s[28:29]
        s_waitcnt lgkmcnt(0)
        s_sub_u32 s30, s28, s26
        s_cmp_lt_u32 s30, s40
        s_cbranch_scc1 L_spin
        L_pdone:
        s_endpgm
        """)
        T += [".globl probe_kernel", ".p2align 8", ".type probe_kernel,@function", "probe_kernel:"]
        T += ["    " + l if not l.endswith(":") else l for l in Q.finish()]
        ks.append(("probe_kernel", 16, 16))
    return T, ks


def gen(kvpol="nt", wpol="nt", xpol="nt", stpol="sc1", rdpol="sc1", PD=4, prof=False, kp=6, cap=60, stepmax=28,
        order=None, verbose=False, noop=0, cpf=0, probe=None, clk='rt', wopf=None, wqpf=False, pfpol='', pffull=False):
    if isinstance(order, str):
        import orders
        order = orders.parse(orders.O.get(order, order))
    order = order or load_order(kp)
    slot, steps = plan_loader(order, cap, stepmax)
    if verbose:
        for b, (lst, w) in enumerate(steps):
            print(b - 1, CONS[b], "slot", slot[CONS[b]], "wait", w, " ".join(f"{t[0]}{t[1]}.{q}" for t, q in lst))
    K1 = NAME + "_kernel"
    K2 = "reduce_kernel"
    H = []
    H.append(f"; @launch kernel={K1} grid=(256,1,1) block=(256,1,1) lds=163840")
    H.append(f"; @launch kernel={K2} grid=(336,1,1) block=(256,1,1) lds=0")
    if probe:
        H.append("; @launch kernel=probe_kernel grid=(1,1,1) block=(64,1,1) lds=0")
    for _ in range(noop):
        H.append(f"; @launch kernel=noop_kernel grid=(1,1,1) block=(64,1,1) lds=0")
    H.append('.amdgcn_target "amdgcn-amd-amdhsa--gfx950"')
    H += [".text", f".globl {K1}", ".p2align 8", f".type {K1},@function", f"{K1}:"]

    P = Stream()
    P("""
    s_cmp_ge_u32 s2, 256
    s_cbranch_scc1 L_done
    s_and_b32 s3, s2, 7
    s_lshr_b32 s4, s3, 2
    s_mul_i32 s5, s4, 40
    s_add_u32 s6, s0, s5
    s_addc_u32 s7, s1, 0
    s_load_dwordx8 s[8:15], s[6:7], 0
    s_load_dwordx2 s[16:17], s[6:7], 32
    s_load_dwordx2 s[24:25], s[0:1], 96
    """)
    if probe:
        P("s_memrealtime s[64:65]")
    P("""
    s_lshr_b32 s26, s2, 3
    s_and_b32 s27, s3, 3
    s_lshl_b32 s27, s27, 2
    s_and_b32 s28, s26, 3
    s_add_u32 s27, s27, s28
    s_lshr_b32 s28, s26, 2
    v_lshrrev_b32 v1, 6, v0
    v_and_b32 v0, 63, v0
    v_readfirstlane_b32 s30, v1
    """)
    if cpf:
        P(f"""
        s_getpc_b64 s[20:21]
        v_lshlrev_b32 v2, 7, v0
        v_lshl_add_u32 v2, v1, 13, v2
        """)
        for j in range(cpf):
            P(f"global_load_dword v{44 + j}, v2, s[20:21]")
            if j + 1 < cpf:
                P("v_add_u32 v2, 0x8000, v2")
    P("""
    s_cmp_eq_u32 s30, 3
    s_cbranch_scc1 L_loader
    """)

    C = Stream()
    C("""
    v_lshrrev_b32 v1, 3, v0
    v_mul_u32_u24 v1, 896, v1
    v_and_b32 v2, 7, v0
    v_lshrrev_b32 v3, 4, v0
    v_xor_b32 v2, v2, v3
    v_lshl_add_u32 v32, v2, 4, v1
    v_xor_b32 v33, 64, v32
    v_add_u32 v33, 6144, v33
    v_add_u32 v34, 12288, v32
    v_add_u32 v35, 12288, v33
    s_lshl_b32 s31, s30, 15
    s_add_u32 s31, s31, 65536
    s_mul_i32 s57, s30, 28672
    s_waitcnt lgkmcnt(0)
    s_mul_i32 s29, s28, 86016
    s_add_u32 s32, s8, s29
    s_addc_u32 s33, s9, 0
    s_mov_b32 s34, 86016
    s_mov_b32 s35, 0x20000
    """)
    for cb in range(7):
        C(f"s_add_u32 m0, s31, {cb * 4096}")
        if cb:
            C(f"s_add_u32 s57, s57, 128")
        for rg in range(4):
            C(f"buffer_load_dwordx4 v{32 + rg}, s[32:35], s57 offen offset:{rg * 1024} {xpol} lds")
    C("""
    v_and_b32 v1, 31, v0
    v_lshrrev_b32 v2, 5, v0
    v_bfe_u32 v3, v0, 1, 3
    v_xor_b32 v3, v3, v2
    v_lshlrev_b32 v3, 4, v3
    v_lshl_add_u32 v3, v1, 7, v3
    v_add_u32 v36, s31, v3
    v_xor_b32 v37, 32, v36
    v_xor_b32 v38, 64, v36
    v_xor_b32 v39, 96, v36
    """)
    C("""
    v_and_b32 v3, 15, v0
    v_xor_b32 v3, v3, v2
    v_lshlrev_b32 v3, 4, v3
    v_lshl_add_u32 v12, v1, 9, v3
    """)
    for j in range(1, 8):
        C(f"v_xor_b32 v{12 + j}, {32 * j}, v12")
    C("""
    v_bfe_u32 v4, v0, 2, 2
    v_and_b32 v5, 3, v0
    v_bfe_u32 v6, v0, 4, 1
    v_lshlrev_b32 v6, 5, v6
    v_lshl_add_u32 v7, v5, 3, v6
    v_and_b32 v3, 1, v0
    v_lshlrev_b32 v3, 4, v3
    v_bfe_u32 v5, v0, 1, 1
    v_lshl_add_u32 v3, v5, 3, v3
    v_add_u32 v6, v6, v3
    """)
    C("""
    v_lshl_add_u32 v3, v2, 3, v4
    v_lshlrev_b32 v3, 9, v3
    v_lshl_add_u32 v3, v4, 6, v3
    v_add_u32 v8, v3, v6
    v_xor_b32 v9, 64, v8
    v_xor_b32 v10, 128, v8
    v_xor_b32 v11, 192, v8
    v_lshl_add_u32 v5, v2, 2, v4
    v_lshlrev_b32 v3, 8, v5
    v_lshl_add_u32 v3, v4, 6, v3
    v_add_u32 v20, v3, v7
    v_xor_b32 v21, 64, v20
    v_xor_b32 v22, 128, v20
    v_xor_b32 v23, 192, v20
    v_lshlrev_b32 v3, 7, v5
    v_lshrrev_b32 v4, 1, v4
    v_lshl_add_u32 v3, v4, 6, v3
    v_add_u32 v24, v3, v6
    v_xor_b32 v25, 64, v24
    v_lshlrev_b32 v30, 4, v0
    """)
    C(f"""
    s_lshl_b32 s29, s4, 3
    s_add_u32 s29, s29, s28
    s_lshl_b32 s29, s29, 4
    s_add_u32 s29, s29, s27
    s_mul_i32 s29, s29, 3
    s_add_u32 s29, s29, s30
    s_mul_i32 s29, s29, 28672
    s_add_u32 s52, s24, s29
    s_addc_u32 s53, s25, 0
    s_mov_b32 s54, 28672
    s_mov_b32 s55, 0x20000
    s_mov_b32 s56, {f32bits(math.log2(math.e) / 16.0):#x}
    """)
    XF = 112
    for cb in range(7):
        C(f"s_waitcnt vmcnt({24 - 4 * cb})")
        for i in range(4):
            s = 4 * cb + i
            C(f"ds_read_b128 a[{XF + 4 * s}:{XF + 4 * s + 3}], v{36 + i} offset:{cb * 4096}")
    C("s_waitcnt lgkmcnt(0)")

    M = []
    win = {"q": 0, "k": 0, "v": 0, "o": 0}
    aregs = {"q": range(8, 12), "k": range(12, 20), "v": range(20, 24), "o": range(24, 26)}

    def rng(p, a, n):
        return f"{p}[{a}:{a + n - 1}]"

    def add(tile, aset, rd, d, dk, b, first):
        M.append(dict(tile=tile, aset=aset, rd=rd, d=rng(dk, d, 16), b=b, first=first))

    def sreg(t):
        return ("v", 32 + 16 * t) if t < 14 else ("a", 64 + 16 * (t - 14))

    marks = {}
    for i in range(14):
        seq = [(ks, dt) for ks in range(2) for dt in range(8)] if i < 13 else [(ks, dt) for dt in range(8) for ks in range(2)]
        for ks, dt in seq:
            o = (dt >> 2) * 256 + ks * 8192
            add(("wq", i), "q", [("tr", 8 + (dt & 3), o), ("tr", 8 + (dt & 3), o + 2048)], 128 + 16 * dt, "v",
                rng("a", XF + 4 * (2 * i + ks), 4), i == 0 and ks == 0)
            marks[("q", dt)] = len(M) - 1
    for t in range(16):
        dk, d = sreg(t)
        for s in range(16):
            add(("k", t), "k", [("b128", 12 + (s & 7), (s >> 3) * 256)], d, dk, rng("a", 4 * s, 4), s == 0)
            marks[("s", t, s)] = len(M) - 1
    for h in range(2):
        for i in range(8):
            seq = [(ka, dt) for ka in range(4) for dt in range(4)] if i < 7 else [(ka, dt) for dt in range(4) for ka in range(4)]
            for ka, dt in seq:
                t = 2 * i + (ka >> 1)
                o = ka * 4096
                dk, d = ("a", 16 * dt) if h == 0 else ("v", 160 + 16 * dt)
                add((f"v{h}", i), "v", [("tr", 20 + dt, o), ("tr", 20 + dt, o + 2048)], d, dk,
                    rng("v", 32 + 8 * t + 4 * (ka & 1), 4), i == 0 and ka == 0)
                marks[("pv", h, i, ka)] = min(marks.get(("pv", h, i, ka), 1 << 30), len(M) - 1)
                marks[("o", h, dt)] = len(M) - 1
        for i in range(7):
            for nt in range(2):
                T = 2 * i + nt
                acc = 16 * ((T + 4) % 14)
                for ka in range(8):
                    o = ka * 2048
                    add((f"wo{h}", i), "o", [("tr", 24 + nt, o), ("tr", 24 + nt, o + 1024)], acc, "a",
                        rng("v", 224 + 4 * ka, 4), h == 0 and ka == 0)
                    marks[("op", h, T, ka)] = len(M) - 1
    N = len(M)
    assert N == 960

    F = []

    def fill(ready, dead, text, cost=4):
        F.append((ready, dead, cost, text))

    for dt in range(8):
        r = marks[("q", dt)] + 2
        for g in range(2):
            dl = marks[("s", 0, 2 * dt + g)]
            for j in range(4):
                a = 128 + 16 * dt + 8 * g + 2 * j
                fill(r, dl, f"v_cvt_pk_bf16_f32 v{a}, v{a}, v{a + 1}")
            for j in range(4):
                a = 128 + 16 * dt + 8 * g + 2 * j
                fill(r, dl, f"v_accvgpr_write_b32 a{4 * (2 * dt + g) + j}, v{a}")
    pv0 = marks[("pv", 0, 0, 0)]
    for t in range(16):
        r = marks[("s", t, 15)] + 2
        dk, d = sreg(t)
        for j in range(8):
            if dk == "v":
                x, y = f"v{d + 2 * j}", f"v{d + 2 * j + 1}"
            else:
                x, y = f"v{1 + (j & 1) * 2}", f"v{2 + (j & 1) * 2}"
                fill(r, pv0, f"v_accvgpr_read_b32 {x}, a{d + 2 * j}")
                fill(r, pv0, f"v_accvgpr_read_b32 {y}, a{d + 2 * j + 1}")
            if t == 0 and j == 0:
                fill(r, pv0, f"v_max_f32 v26, {x}, {y}")
            else:
                fill(r, pv0, f"v_max3_f32 v26, v26, {x}, {y}")
    r = marks[("s", 15, 15)] + 2
    for txt in ["v_mov_b32 v27, v26", "v_permlane32_swap_b32 v26, v27", "v_max_f32 v26, v26, v27",
                "v_mul_f32 v26, s56, v26"]:
        fill(r, pv0, txt)
    for t in range(16):
        dk, d = sreg(t)
        for g in range(2):
            i, ka = t >> 1, (t & 1) * 2 + g
            dl = pv0 if i == 0 else marks[("pv", 0, i - 1, 0)] + 3 * (ka + 1)
            tmp = [1, 2, 3, 4, 5, 6, 7, 31]
            src = []
            for j in range(8):
                if dk == "v":
                    src.append(d + 8 * g + j)
                else:
                    src.append(tmp[j])
                    fill(r, dl, f"v_accvgpr_read_b32 v{tmp[j]}, a{d + 8 * g + j}")
            for j in range(8):
                fill(r, dl, f"v_fma_f32 v{src[j]}, v{src[j]}, s56, -v26")
                if j:
                    fill(r, dl, f"v_exp_f32 v{src[j - 1]}, v{src[j - 1]}", 8)
            fill(r, dl, f"v_exp_f32 v{src[7]}, v{src[7]}", 8)
            for j in range(8):
                acc = 27 + (j & 1)
                if t == 0 and g == 0 and j < 2:
                    fill(r, dl, f"v_mov_b32 v{acc}, v{src[j]}")
                else:
                    fill(r, dl, f"v_add_f32 v{acc}, v{acc}, v{src[j]}")
            for j in range(4):
                fill(r, dl, f"v_cvt_pk_bf16_f32 v{32 + 8 * t + 4 * g + j}, v{src[2 * j]}, v{src[2 * j + 1]}")
    op0 = marks[("op", 0, 0, 0)]
    for txt, c in [("v_add_f32 v27, v27, v28", 4), ("v_mov_b32 v28, v27", 4), ("v_permlane32_swap_b32 v27, v28", 4),
                   ("v_add_f32 v27, v27, v28", 4), ("v_rcp_f32 v29, v27", 8)]:
        fill(r, op0, txt, c)
    for h in range(2):
        for dt in range(4):
            r = marks[("o", h, dt)] + 2
            for g in range(2):
                dl = marks[("op", h, 0, 2 * dt + g)]
                for j in range(8):
                    e = 16 * dt + 8 * g + j
                    if h == 0:
                        fill(r, dl, f"v_accvgpr_read_b32 v{160 + e}, a{e}")
                for j in range(8):
                    e = 160 + 16 * dt + 8 * g + j
                    fill(r, dl, f"v_mul_f32 v{e}, v29, v{e}")
                for j in range(4):
                    e = 160 + 16 * dt + 8 * g + 2 * j
                    fill(r, dl, f"v_cvt_pk_bf16_f32 v{224 + 4 * (2 * dt + g) + j}, v{e}, v{e + 1}")
    for T in range(14):
        r = marks[("op", 1, T, 7)] + 2
        acc = 16 * ((T + 4) % 14)
        tb = 32 + 32 * (T % 4)
        for g in range(2):
            for j in range(8):
                fill(r, N, f"v_accvgpr_read_b32 v{tb + 8 * g + j}, a{acc + 8 * g + j}")
            for j in range(4):
                fill(r, N, f"v_cvt_pk_bf16_f32 v{tb + 16 + 4 * g + j}, v{tb + 8 * g + 2 * j}, v{tb + 8 * g + 2 * j + 1}")
            tg = 2 * T + g
            if tg % 4 == 0:
                fill(r, N, f"s_mov_b32 s58, {tg * 1024}")
            fill(r, N, f"buffer_store_dwordx4 v[{tb + 16 + 4 * g}:{tb + 19 + 4 * g}], v30, s[52:55], s58 offen offset:{(tg % 4) * 1024} {stpol}", 8)

    nbar = [0]
    rd_ptr = 0
    fp = 0

    def emit_reads(j):
        m = M[j]
        cost = 0
        if j == 0 or M[j - 1]["tile"] != m["tile"]:
            assert CONS[nbar[0]] == m["tile"]
            C("s_barrier")
            nbar[0] += 1
            w = (slot[m["tile"]] // 4) * 65536
            a = m["aset"]
            if w != win[a]:
                for rg in aregs[a]:
                    if w > win[a]:
                        C(f"v_add_u32 v{rg}, {w - win[a]:#x}, v{rg}")
                    else:
                        C(f"v_subrev_u32 v{rg}, {win[a] - w:#x}, v{rg}")
                    cost += 4
                win[a] = w
        base = (slot[m["tile"]] % 4) * 16384
        ring = 224 + 4 * (j % 8)
        for n, (kind, ar, o) in enumerate(m["rd"]):
            if kind == "tr":
                C(f"ds_read_b64_tr_b16 a[{ring + 2 * n}:{ring + 2 * n + 1}], v{ar} offset:{base + o}")
            else:
                C(f"ds_read_b128 a[{ring}:{ring + 3}], v{ar} offset:{base + o}")
            cost += 4
        return cost

    def seg_start(j):
        return (j == 0 or M[j - 1]["tile"] != M[j]["tile"]) and M[j]["tile"] in HARD

    for i in range(N):
        m = M[i]
        if seg_start(i):
            while fp < len(F) and any(f[1] <= i for f in F[fp:fp + 400]):
                assert F[fp][0] - 2 < i
                C(F[fp][3]); fp += 1
            assert rd_ptr == i
            while rd_ptr < min(N, i + PD):
                emit_reads(rd_ptr); rd_ptr += 1
        while fp < len(F) and any(f[1] <= i for f in F[fp:fp + 400]):
            assert F[fp][0] - 2 < i
            C(F[fp][3]); fp += 1
        ring = 224 + 4 * (i % 8)
        c = "0" if m["first"] else m["d"]
        C(f"{MF} {m['d']}, a[{ring}:{ring + 3}], {m['b']}, {c}")
        budget = 24
        if rd_ptr < N and rd_ptr <= i + PD and not seg_start(rd_ptr):
            budget -= emit_reads(rd_ptr); rd_ptr += 1
        budget -= 4
        while fp < len(F) and F[fp][0] <= i and budget >= F[fp][2]:
            budget -= F[fp][2]
            C(F[fp][3]); fp += 1
    while fp < len(F):
        C(F[fp][3]); fp += 1
    assert nbar[0] == len(CONS)
    if prof:
        C(f"""
        s_waitcnt vmcnt(0)
        s_memtime s[60:61]
        s_waitcnt lgkmcnt(0)
        s_lshl_b32 s29, s2, 10
        s_lshl_b32 s31, s30, 2
        s_add_u32 s29, s29, s31
        s_add_u32 s29, s29, {PROF_OFF + 512}
        s_add_u32 s52, s24, s29
        s_addc_u32 s53, s25, 0
        s_mov_b32 s54, 4
        v_mov_b32 v1, s60
        v_lshlrev_b32 v2, 2, v0
        buffer_store_dword v1, v2, s[52:55], 0 offen
        """)
    if probe:
        C(f"""
        s_waitcnt vmcnt(0)
        s_memrealtime s[72:73]
        s_lshl_b32 s29, s2, 6
        s_add_u32 s29, s29, {PROF_OFF}
        s_add_u32 s52, s24, s29
        s_addc_u32 s53, s25, 0
        s_mov_b32 s54, 8
        s_waitcnt lgkmcnt(0)
        v_mov_b32 v4, s64
        v_mov_b32 v5, s72
        buffer_store_dwordx2 v[4:5], v30, s[52:55], 0 offen
        """)
    C("s_endpgm")

    Ld = Stream()
    Ld("L_loader:")
    if prof:
        Ld("s_memtime s[62:63]\ns_memrealtime s[56:57]")
    Ld("""
    v_lshrrev_b32 v1, 5, v0
    v_and_b32 v2, 31, v0
    v_lshrrev_b32 v3, 2, v2
    v_xor_b32 v3, v3, v1
    v_and_b32 v4, 3, v0
    v_lshlrev_b32 v4, 4, v4
    v_lshl_add_u32 v3, v3, 6, v4
    v_lshl_add_u32 v8, v1, 13, v3
    v_xor_b32 v9, 128, v8
    v_add_u32 v9, 15360, v9
    v_add_u32 v10, 30720, v8
    v_add_u32 v11, 30720, v9
    s_waitcnt lgkmcnt(0)
    s_lshl_b32 s29, s27, 9
    s_add_u32 s44, s14, s29
    s_addc_u32 s45, s15, 0
    s_sub_u32 s46, 3670016, s29
    s_mov_b32 s47, 0x20000
    """)
    setup2 = """
    v_xor_b32 v3, v2, v1
    v_lshlrev_b32 v3, 4, v3
    v_lshl_add_u32 v12, v1, 9, v3
    """ + "\n".join(f"v_xor_b32 v{12 + j}, {32 * j}, v12" for j in range(1, 8)) + """
    v_lshrrev_b32 v1, 4, v0
    v_bfe_u32 v3, v0, 2, 2
    v_xor_b32 v3, v3, v1
    v_lshl_add_u32 v3, v3, 6, v4
    v_lshl_add_u32 v20, v1, 9, v3
    v_add_u32 v21, 1024, v20
    v_add_u32 v22, 2048, v20
    v_add_u32 v23, 3072, v20
    v_lshrrev_b32 v2, 3, v0
    v_mul_u32_u24 v2, 896, v2
    v_bfe_u32 v3, v0, 2, 1
    v_and_b32 v1, 1, v1
    v_xor_b32 v3, v3, v1
    v_lshl_add_u32 v3, v3, 6, v4
    v_add_u32 v24, v2, v3
    v_add_u32 v25, 6144, v24
    v_add_u32 v26, 12288, v24
    v_add_u32 v27, 18432, v24
    s_lshl_b32 s29, s28, 4
    s_add_u32 s29, s29, s27
    s_lshl_b32 s29, s29, 18
    s_add_u32 s36, s10, s29
    s_addc_u32 s37, s11, 0
    s_mov_b32 s38, 262144
    s_mov_b32 s39, 0x20000
    s_add_u32 s40, s12, s29
    s_addc_u32 s41, s13, 0
    s_mov_b32 s42, 262144
    s_mov_b32 s43, 0x20000
    s_mul_i32 s29, s27, 229376
    s_add_u32 s48, s16, s29
    s_addc_u32 s49, s17, 0
    s_mov_b32 s50, 229376
    s_mov_b32 s51, 0x20000
    """

    def issue(t, q):
        kind, i = t
        Ld(f"s_mov_b32 m0, {slot[t] * 16384 + q * 4096}")
        if kind == "wq":
            so, srd, vb, pol = i * 262144 + q * 65536, 44, 8, wpol
        elif kind == "k":
            so, srd, vb, pol = i * 16384 + q * 4096, 36, 12 + 4 * (q & 1), kvpol
        elif kind[0] == "v":
            so, srd, vb, pol = int(kind[1]) * 256 + i * 32768 + q * 8192, 40, 20, kvpol
        else:
            so, srd, vb, pol = (int(kind[2]) * 128 + q * 32) * 896 + i * 128, 48, 24, wpol
        Ld(f"s_mov_b32 s31, {so}")
        for p in range(4):
            Ld(f"buffer_load_dwordx4 v{vb + p}, s[{srd}:{srd + 3}], s31 offen offset:{p * 1024} {pol} lds")

    def stamp(idx):
        if prof:
            if idx % 2:
                Ld(f"s_memrealtime s[58:59]")
            Ld(f"s_memtime s[60:61]\ns_waitcnt lgkmcnt(0)\nv_writelane_b32 v{40 + idx // 64}, s60, {idx % 64}")
            if idx % 2:
                Ld(f"v_writelane_b32 v42, s58, {idx // 2}")

    extra = 0
    for b, (lst, wait) in enumerate(steps):
        if b == 0 and wqpf:
            Ld("""
            v_lshrrev_b32 v50, 2, v0
            v_lshlrev_b32 v50, 13, v50
            v_and_b32 v51, 3, v0
            v_lshl_add_u32 v50, v51, 7, v50
            s_mul_i32 s31, s28, 458752
            """)
            for j in range(4):
                Ld(f"buffer_load_dword v{52 + j}, v50, s[44:47], s31 offen {pfpol}")
                Ld("s_add_u32 s31, s31, 131072")
        if pffull and wopf is not None and wopf <= b < wopf + 7:
            if b == wopf:
                Ld("v_lshlrev_b32 v50, 4, v0\ns_mul_i32 s60, s28, 28672")
            for j in range(4):
                Ld(f"buffer_load_dwordx4 v[56:59], v50, s[48:51], s60 offen offset:{j * 1024} {pfpol}")
            Ld("s_add_u32 s60, s60, 4096")
        elif b == wopf:
            Ld("v_lshlrev_b32 v50, 7, v0\ns_mul_i32 s31, s28, 28672")
            for j in range(4):
                Ld(f"buffer_load_dword v{56 + j}, v50, s[48:51], s31 offen {pfpol}")
                Ld("s_add_u32 s31, s31, 8192")
        for t, q in lst:
            if b == 0:
                assert t[0] == "wq"
            issue(t, q)
        if b == 0:
            Ld(setup2)
        if wait is not None:
            Ld(f"s_waitcnt vmcnt({wait})")
        stamp(2 * b)
        Ld("s_barrier")
        stamp(2 * b + 1)
        if probe and b in PB:
            Ld(f"s_memrealtime s[{66 + 2 * PB.index(b)}:{67 + 2 * PB.index(b)}]")
    if probe:
        Ld(f"""
        s_lshl_b32 s29, s2, 6
        s_add_u32 s29, s29, {PROF_OFF + 8}
        s_add_u32 s52, s24, s29
        s_addc_u32 s53, s25, 0
        s_mov_b32 s54, 48
        s_mov_b32 s55, 0x20000
        s_waitcnt lgkmcnt(0)
        """)
        for j in range(len(PB)):
            Ld(f"v_writelane_b32 v40, s{66 + 2 * j}, {j}")
        Ld("v_lshlrev_b32 v2, 2, v0\nbuffer_store_dword v40, v2, s[52:55], 0 offen")
    if prof:
        Ld(f"""
        v_writelane_b32 v41, s62, 63
        v_writelane_b32 v42, s56, 63
        s_lshl_b32 s29, s2, 10
        s_add_u32 s29, s29, {PROF_OFF}
        s_add_u32 s52, s24, s29
        s_addc_u32 s53, s25, 0
        s_mov_b32 s54, 1024
        s_mov_b32 s55, 0x20000
        v_lshlrev_b32 v2, 2, v0
        buffer_store_dword v42, v2, s[52:55], 0 offen offset:768
        buffer_store_dword v40, v2, s[52:55], 0 offen
        buffer_store_dword v41, v2, s[52:55], 0 offen offset:256
        """)
    Ld("L_done:")
    Ld("s_endpgm")

    body = P.finish() + C.finish() + Ld.finish()
    if clk == "cyc":
        body = [l.replace("s_memrealtime", "s_memtime") for l in body]
    if verbose:
        print("consumer nops", C.nops, "instructions", len(C.ins))
    T = H + ["    " + l if not l.endswith(":") else l for l in body]
    tl = tail_kernels(rdpol, probe, clk)
    T += tl[0]
    ks = [(K1, 512, 256)] + tl[1]
    if noop:
        T += [".globl noop_kernel", ".p2align 8", ".type noop_kernel,@function", "noop_kernel:", "    s_endpgm"]
        ks.append(("noop_kernel", 8, 8))
    if cpf:
        T += [".fill 3200, 4, 0xbf800000"]
    T += ['.section .rodata,"a"']
    for k, nv, ao in ks:
        T += [".p2align 6", f".amdhsa_kernel {k}", f"  .amdhsa_next_free_vgpr {nv}", "  .amdhsa_next_free_sgpr 102",
              f"  .amdhsa_accum_offset {ao}", "  .amdhsa_group_segment_fixed_size 0", "  .amdhsa_kernarg_size 104",
              "  .amdhsa_user_sgpr_count 2", "  .amdhsa_user_sgpr_kernarg_segment_ptr 1",
              "  .amdhsa_system_sgpr_workgroup_id_x 1", ".end_amdhsa_kernel"]
    return "\n".join(T) + "\n"


if __name__ == "__main__":
    out = sys.argv[1] if len(sys.argv) > 1 else f"cdna_kernels/{NAME}.s"
    kw = {}
    for a in sys.argv[2:]:
        k, v = a.split("=", 1); v = v.replace("+", " ")
        kw[k] = eval(v) if v and (v[0].isdigit() or v[0] in "([" or v in ("True", "False")) else v
    open(out, "w").write(gen(verbose=True, **kw))
```

```python
import sys, math, struct, re
sys.path.insert(0, "dev")
from asmlib import Stream

NAME = "concat_heads__mha_block_cached__gqa_block_cached__near_ridge"
MF = "v_mfma_f32_32x32x16_bf16"
MS = "v_mfma_f32_16x16x32_bf16"
NG = 39
FLAGB = NG * 4096
PROF_OFF = 0x4000000
MB = 1376256
GS = MB + 4096
DONE = FLAGB + 240


def f32bits(x):
    return struct.unpack("<I", struct.pack("<f", x))[0]


def tiles(s):
    if "/" in s:
        n, m = 1, 1
        if ":" in s:
            s, g = s.split(":"); n, m = map(int, g.split("."))
        a, b = [sum([tiles(y) for y in x.split("+")], []) for x in s.split("/")]
        out = []
        while a or b:
            out += a[:n] + b[:m]; a = a[n:]; b = b[m:]
        return out
    m = re.fullmatch(r"(x|[qkvo][0-3])(?:_?(\d+)(?:-(\d+))?)?", s)
    assert m, s
    k = m.group(1)
    if m.group(2) is None:
        a, b = 0, (7 if k[0] in "kv" else 6)
    else:
        a = int(m.group(2)); b = int(m.group(3) or a)
    return [(k, i) for i in range(a, b + 1)]


def parse(spec):
    return sum([tiles(s) for s in spec.split()], [])


CONS_SPEC = {
    "c1": "q0 q1/k0 q2/k1 q3/k2 k3 v0 v1/o0 v2/o1 v3/o2 o3",
    "c2": "q0 q1/k0 q2/k1 q3/k2 k3 v0 v1_0 v1_1-7/o0 v2_0 v2_1-7/o1 v3_0 v3_1-7/o2 o3",
}
ORD_SPEC = {
    "l0": "x/q0 q1/k0 q2/k1 q3/k2 k3 v0 v1/o0 v2/o1 v3/o2 o3",
    "l1": "x/q0 q1+q2+q3/k0+k1+k2:4.4 k3 v0 v1+v2+v3/o0+o1+o2:4.4 o3",
    "l3": "x/q0 q1+q2+q3/k0+k1+k2:2.2 k3 v0 v1+v2+v3/o0+o1+o2:2.2 o3",
    "l2": "x0-3/q0_0-3 k0_0-3 x4-6/q0_4-6 q1+q2+q3/k0_4-7+k1+k2:4.4 k3 v0 v1+v2+v3/o0+o1+o2:4.4 o3",
}


def plan_slots(order, CONS, strict=True):
    step = {t: i // 2 for i, t in enumerate(CONS)}
    rel = lambda t: step[("q0", t[1])] if t[0] == "x" else step[t]
    members = {}
    for t in order:
        members.setdefault(rel(t), set()).add(t)
    last = [-1] * NG
    base, need, flag = {}, {}, {}
    ready = set()
    for t in order:
        n = 3 if t[0] == "x" else 2
        if t[0] == "x":
            cand = sorted(range(NG - n + 1), key=lambda g: (max(last[g:g + n]), -g))
        else:
            cand = sorted(range(0, NG - n + 1, 2), key=lambda g: (max(last[g:g + n]), g))
        g = cand[0]
        need[t] = max(last[g:g + n])
        for c in range(need[t] + 1):
            assert c in ready or not strict, ("deadlock", t, c)
        base[t] = g * 4096
        for k in range(g, g + n):
            last[k] = rel(t)
        members[rel(t)].discard(t)
        if not members[rel(t)]:
            flag[t] = rel(t)
            ready.add(rel(t))
    assert len(ready) == 60
    return base, need, flag


def gen(kvpol="nt", wpol="", xpol="", stpol="sc1", rdpol="sc1", PD=6, prof=False, cons="c2", order="l3", NE=4, fpre=5,
        rot=True, budget=8, bud2=20, bud3=16, wcost=4, lag=2, verbose=False, safe=0x400000, lbar=7, clk='rt', lsleep=0, csleep=0,
        noload=False, nochk=False, pairw=True, pf='v', oa1='v',
        lim=256, t1=24, pstart=56, allornone=False, opol='', pfl=5, csnap=96, nofast=False, psleep=0, woff=0, plast=False, qrot=None, wmap=0, poison=None, ppol='sc1', vload=None):
    probe = None
    CONS = parse(CONS_SPEC.get(cons, cons))
    assert len(CONS) == 120 and len(set(CONS)) == 120
    step = {t: i // 2 for i, t in enumerate(CONS)}
    order = parse(ORD_SPEC.get(order, order))
    assert len(order) == 127 and len(set(order)) == 127
    base, need, flag = plan_slots(order, CONS)
    K1 = NAME + "_kernel"
    H = ["; @launch grid=(256,1,1) block=(256,1,1) lds=163840"]
    H.append('.amdgcn_target "amdgcn-amd-amdhsa--gfx950"')
    H += [".text", f".globl {K1}", ".p2align 8", f".type {K1},@function", f"{K1}:"]

    P = Stream()
    P("""
    s_cmp_ge_u32 s2, 256
    s_cbranch_scc1 L_done
    s_and_b32 s3, s2, 7
    s_lshr_b32 s4, s3, 2
    s_mul_i32 s5, s4, 40
    s_add_u32 s6, s0, s5
    s_addc_u32 s7, s1, 0
    s_load_dwordx8 s[8:15], s[6:7], 0
    s_load_dwordx2 s[16:17], s[6:7], 32
    s_load_dwordx4 s[20:23], s[0:1], 88
    s_load_dwordx2 s[18:19], s[0:1], 80
    """)
    if probe or prof:
        P("s_memrealtime s[64:65]")
    if wmap == 0:
        P("""
        s_lshr_b32 s26, s2, 3
        s_and_b32 s27, s3, 3
        s_lshl_b32 s27, s27, 2
        s_and_b32 s28, s26, 3
        s_lshl_b32 s29, s28, 1
        s_add_u32 s27, s27, s28
        s_lshr_b32 s28, s26, 2
        """)
    else:
        P("""
        s_and_b32 s27, s3, 3
        s_lshl_b32 s27, s27, 2
        s_lshr_b32 s28, s2, 6
        s_lshl_b32 s29, s28, 1
        s_add_u32 s27, s27, s28
        s_bfe_u32 s28, s2, 0x30003
        """)
    P("""
    v_lshrrev_b32 v1, 6, v0
    v_and_b32 v0, 63, v0
    v_readfirstlane_b32 s30, v1
    """)
    if rot:
        P("""
        s_add_u32 s29, s29, s28
        s_lshl_b32 s70, s29, 7
        s_sub_u32 s31, s70, 896
        s_cmp_ge_u32 s70, 896
        s_cselect_b32 s70, s31, s70
        """)
    else:
        P("s_mov_b32 s70, 0")
    for i in range(1, 7):
        P(f"s_add_u32 s{70 + i}, s{69 + i}, 128\ns_cmp_eq_u32 s{70 + i}, 896\ns_cselect_b32 s{70 + i}, 0, s{70 + i}")
    P("""
    s_mov_b32 s68, 0
    s_cmp_lg_u32 s30, 3
    s_cbranch_scc1 L_cons
    """)

    gsrd = f"""
    s_add_u32 s8, s22, s69
    s_addc_u32 s9, s23, 0
    s_mov_b32 s10, {GS}
    s_mov_b32 s11, 0x20000
    """
    mbadr = f"""
    s_lshl_b32 s5, s58, 8
    s_add_u32 s5, s5, {MB}
    s_lshl_b32 s6, s58, 4
    s_add_u32 s6, s6, {MB}
    v_lshlrev_b32 v48, 2, v0
    v_lshrrev_b32 v49, 2, v0
    v_and_b32 v50, 12, v48
    v_lshl_add_u32 v49, v49, 8, v50
    """
    snapld = """
    buffer_load_dword v50, v48, s[8:11], s5 offen sc1
    buffer_load_dword v51, v49, s[8:11], s6 offen sc1
    """
    hello = """
    s_mov_b32 exec_lo, 0x88888888
    s_mov_b32 exec_hi, 0x88888888
    buffer_store_dword v52, v49, s[8:11], s6 offen sc1
    s_mov_b64 exec, -1
    """
    C = Stream()
    vF, vPA, vT = "v1", "v2", "v31"
    PFC = ""
    if pf:
        PFC = f"""
        s_getpc_b64 s[96:97]
        L_pc:
        s_sub_u32 s96, s96, L_pc-{K1}
        s_subb_u32 s97, s97, 0
        """
    if pf:
        PFC += f"s_mov_b32 s98, L_end-{K1}\ns_mov_b32 s99, 0x20000\n"
    if "v" in pf:
        PFC += f"""
        s_lshr_b32 s100, s2, 3
        s_mul_i32 s100, s100, 3
        s_add_u32 s100, s100, s30
        s_mul_i32 s100, s100, {128 * pfl}
        v_lshlrev_b32 v154, 7, v0
        s_mov_b64 exec, {(1 << pfl) - 1}
        buffer_load_dword v155, v154, s[96:99], s100 offen
        s_mov_b64 exec, -1
        """
    cr = lambda txt: re.sub(r"\bv(4[89]|5[0-2])\b", lambda m: f"v{int(m.group(1)) + 100}", txt)
    AK, AQ, AX, AV = 8, 14, 96, 14
    C(f"""
    L_cons:
    {PFC}
    v_and_b32 v1, 15, v0
    v_lshrrev_b32 v2, 4, v0
    v_bfe_u32 v3, v0, 1, 3
    v_xor_b32 v3, v3, v2
    v_lshlrev_b32 v3, 4, v3
    v_lshl_add_u32 v{AK}, v1, 7, v3
    s_lshl_b32 s31, s30, 12
    v_add_u32 v{AX}, s31, v{AK}
    """)
    for A in (AX, AK):
        C(f"v_xor_b32 v{A + 1}, 64, v{A}")
        for w in (1, 2):
            for j in range(2):
                C(f"v_add_u32 v{A + 2 * w + j}, {65536 * w:#x}, v{A + j}")
    C(f"""
    v_bfe_u32 v4, v0, 2, 2
    v_lshlrev_b32 v4, 7, v4
    v_lshl_add_u32 v4, v2, 10, v4
    v_and_b32 v5, 1, v0
    v_lshl_add_u32 v4, v5, 3, v4
    v_and_b32 v5, 2, v0
    v_lshl_add_u32 v4, v5, 4, v4
    v_and_b32 v5, 8, v0
    v_lshl_add_u32 v4, v5, 1, v4
    v_and_b32 v5, 16, v0
    v_lshl_add_u32 v{AQ}, v5, 2, v4
    v_xor_b32 v{AQ + 1}, 16, v{AQ}
    v_xor_b32 v{AQ + 2}, 64, v{AQ}
    v_xor_b32 v{AQ + 3}, 0x50, v{AQ}
    """)
    for w in (1, 2):
        for j in range(4):
            C(f"v_add_u32 v{AQ + 4 * w + j}, {65536 * w:#x}, v{AQ + j}")
    C(f"""
    v_lshrrev_b32 v3, 2, v0
    v_and_b32 v5, 3, v0
    v_lshlrev_b32 v5, 3, v5
    v_lshl_add_u32 v3, v3, 7, v5
    v_and_b32 v5, 24, v0
    v_lshl_add_u32 v3, v5, 2, v3
    v_accvgpr_write_b32 a96, v3
    v_lshlrev_b32 v30, 4, v0
    v_mov_b32 v3, 0x3f803f80
    v_accvgpr_write_b32 a108, v3
    v_accvgpr_write_b32 a109, v3
    v_accvgpr_write_b32 a110, v3
    v_accvgpr_write_b32 a111, v3
    """)
    if poison:
        for j in range(4):
            C(f"v_accvgpr_write_b32 a{100 + j}, -1")
        pz = {poison[0] + poison[1] * k: k for k in range(28)}
    C(f"""
    s_lshl_b32 s31, s30, 2
    s_add_u32 s31, s31, {FLAGB + 256}
    v_mov_b32 {vPA}, s31
    v_mov_b32 {vT}, {FLAGB - 4}
    s_mov_b64 vcc, -1
    s_lshl_b32 s69, s4, 3
    s_add_u32 s69, s69, s28
    s_mul_i32 s69, s69, {GS}
    {f's_add_u32 s69, s69, {woff}' if woff else ''}
    s_mul_i32 s36, s27, 3
    s_add_u32 s36, s36, s30
    s_mul_i32 s29, s36, 28672
    s_add_u32 s29, s29, s69
    s_mov_b32 s56, {f32bits(math.log2(math.e) / 16.0):#x}
    s_mov_b32 s57, 0x800080
    """)
    for i in range(7):
        C(f"s_lshl_b32 s{70 + i}, s{70 + i}, 4")
    C("""
    s_waitcnt lgkmcnt(0)
    s_add_u32 s52, s22, s29
    s_addc_u32 s53, s23, 0
    s_mov_b32 s54, 28672
    s_mov_b32 s55, 0x20000
    """)
    C("s_barrier")
    C(cr(f"""
    {gsrd}
    s_mov_b32 s58, s27
    {mbadr}
    s_lshl_b32 s7, s30, 9
    s_cbranch_scc1 L_nosnap
    {snapld}
    L_nosnap:
    s_add_u32 s7, s7, {FLAGB}
    """))
    XF = 112

    M = []

    def rng(p, a, n):
        return f"{p}[{a}:{a + n - 1}]"

    def add(tile, rd, d, b, first):
        M.append(dict(tile=tile, rd=rd, d=[rng(d[0], d[1] + 8 * h, 4) for h in range(2)],
                      b=[rng(b[0], b[1] + 4 * h, 4) for h in range(2)], first=first))

    def L(t):
        if t % 2 == 0:
            return ("v", 32 + 8 * t)
        return ("v", 160 + 8 * (t - 1)) if t < 13 else ("a", 64 + 8 * (t - 13))

    QA = {0: [L(10), L(12)], 1: [("a", 32), ("a", 48)], 2: [("a", 0), ("a", 16)], 3: [("a", 32), ("a", 48)]}
    QB = lambda p: 32 * (p & 1)
    OA = {0: ("a", 0), 1: ("v", 192) if oa1 == "v" else ("a", 32), 2: ("v", 160), 3: ("v", 224)}
    OF = {0: 224, 1: 192, 2: 160, 3: 224}
    marks = {}
    first, lastm = {}, {}
    seen = {}
    for kind, i in CONS:
        p = int(kind[1])
        nth = seen.get(kind, 0)
        seen[kind] = nth + 1
        first.setdefault(kind, len(M))
        if kind[0] == "q":
            seq = [(ks, dt, u) for ks in range(2) for dt in range(2) for u in range(2)] if nth < 6 else \
                  [(ks, dt, u) for dt in range(2) for ks in range(2) for u in range(2)]
            for n, (ks, dt, u) in enumerate(seq):
                o = ks * 4096
                rd = [("tr", AQ, 4, 2 * dt + u, o), ("tr", AQ, 4, 2 * dt + u, o + 512)]
                if p == 0:
                    xs = {0: [(0, 0), (0, 1)], 1: [(1, 0), (1, 1)]} if nth == 6 else {0: [(0, 0), (0, 1)], 1: [(1, 0)], 2: [(1, 1)]}
                    rd = [("x", AX, 2, a, (XF + 4 * (4 * i + 2 * a + h), 2048 * h)) for a, h in xs.get(n, [])] + rd
                add((kind, i), rd, (QA[p][dt][0], QA[p][dt][1] + 4 * u), ("a", XF + 4 * (4 * i + 2 * ks)), nth == 0 and ks == 0)
                marks[("q", p, dt)] = len(M) - 1
        elif kind[0] == "k":
            for kt in range(4):
                t = 2 * i + (kt >> 1)
                for sx in range(2):
                    n0 = seen.get(("S", t, kt), 0)
                    seen[("S", t, kt)] = n0 + 1
                    add((kind, i), [("b128", AK, 2, sx, kt * 2048)], (L(t)[0], L(t)[1] + 4 * (kt & 1)), ("a", QB(p) + 8 * sx), n0 == 0)
                    marks.setdefault(("quse", p, sx), len(M) - 1)
                    marks.setdefault(("s0", L(t)), len(M) - 1)
                marks[("s", t)] = len(M) - 1
        elif kind[0] == "v":
            seq = [(ks, T) for ks in range(2) for T in range(4)] if nth < 7 else \
                  [(ks, 2 * dt + w) for dt in range(2) for ks in range(2) for w in range(2)]
            for ks, T in seq:
                t = 2 * i + ks
                o = ks * 4096
                add((kind, i), [("tr", AV, 4, T, o), ("tr", AV, 4, T, o + 2048)], (OA[p][0], OA[p][1] + 16 * (T >> 1) + 4 * (T & 1)),
                    ("v", 32 + 8 * t), nth == 0 and ks == 0)
                marks.setdefault(("pv", t), len(M) - 1)
                marks[("o", p, T >> 1)] = len(M) - 1
        else:
            seq = [(U, dp) for U in range(4) for dp in range(2)] if nth else [(U, dp) for dp in range(2) for U in range(4)]
            for U, dp in seq:
                T = 2 * i + (U >> 1)
                acc = 16 * ((T + 7) % 14)
                o = dp * 4096
                n0 = seen.get(("T", T, U), 0)
                seen[("T", T, U)] = n0 + 1
                add((kind, i), [("tr", AV, 4, U, o), ("tr", AV, 4, U, o + 2048)], ("a", acc + 4 * (U & 1)),
                    ("v", OF[p] + 8 * dp), n0 == 0)
                marks.setdefault(("ouse", p, dp), len(M) - 1)
                marks.setdefault(("t0", acc), len(M) - 1)
                marks[("T", T)] = len(M) - 1
        lastm[kind] = len(M) - 1
    for p in range(4):
        assert lastm[f"q{p}"] < first[f"k{p}"] and lastm[f"v{p}"] < first[f"o{p}"] and lastm["q0"] < first["q1"]
        assert lastm[f"k{p}"] < min(first[f"v{x}"] for x in range(4))
    assert lastm["k0"] < first["q2"] and lastm["k1"] < first["q3"]
    assert lastm["o0"] < first["v3"] and lastm["v0"] < first["v2"] and (oa1 == "a" or lastm["v0"] < first["v1"])
    assert [marks[("s", t)] for t in range(16)] == sorted(marks[("s", t)] for t in range(16))
    assert csnap < marks[("s0", L(14))] - PD
    N = len(M)
    assert N == 960

    F = []

    def fill(ready, dead, text, cost=4):
        F.append((ready, dead, cost, text))

    for p in range(4):
        for dt in range(2):
            r = marks[("q", p, dt)] + lag
            k, a0 = QA[p][dt]
            for g in range(2):
                dl = marks[("quse", p, dt)]
                if k == "a":
                    e = [3, 4, 5, 6, 7, 26, 27, 28]
                    for j in range(8):
                        fill(r, dl, f"v_accvgpr_read_b32 v{e[j]}, a{a0 + 8 * g + j}")
                else:
                    assert dl <= marks[("s0", QA[p][dt])]
                    e = [a0 + 8 * g + j for j in range(8)]
                for j in (0, 2, 1, 3):
                    fill(r, dl, f"v_cvt_pk_bf16_f32 v{e[2 * j]}, v{e[2 * j]}, v{e[2 * j + 1]}")
                fill(r, dl, f"v_permlane16_swap_b32 v{e[0]}, v{e[4]}")
                fill(r, dl, f"v_permlane16_swap_b32 v{e[2]}, v{e[6]}")
                for j in (0, 2, 1, 3):
                    fill(r, dl, f"v_accvgpr_write_b32 a{QB(p) + 4 * (2 * dt + g) + j}, v{e[2 * j]}")
    pv0 = marks[("pv", 0)]
    op0 = min(first[f"o{p}"] for p in range(4))
    lastq = max(lastm[f"q{p}"] for p in range(4))
    assert lastq < marks[("s", 0)]
    F += [(lastq, pv0 - PD, 4, x) for x in [f"v_accvgpr_read_b32 v{AV}, a96"] + [f"v_xor_b32 v{AV + j}, {32 * j}, v{AV}" for j in range(1, 4)] +
          [f"v_add_u32 v{AV + 4 * w + j}, {65536 * w:#x}, v{AV + j}" for w in (1, 2) for j in range(4)]]
    sloc = lambda t: L(t)[1] if t not in (13, 15) else L(t - 12)[1]
    nsum = [0, 0]

    def summ(t, g, r):
        d = f"a[{100 + 4 * g}:{103 + 4 * g}]"
        c = d if nsum[g] else "0"
        nsum[g] += 1
        p = 32 + 8 * t + 4 * g
        return (r, op0, -1, f"{MS} {d}, a[108:111], v[{p}:{p + 3}], {c}")

    def expo(t, r, dl, final):
        d = sloc(t)
        out = []
        for g in range(2):
            s = [d + 8 * g + j for j in range(8)]
            for j in range(8):
                out.append((r, dl, 4, f"v_fma_f32 v{s[j]}, v{s[j]}, s56, -v{28 + g}"))
                if j:
                    out.append((r, dl, 8, f"v_exp_f32 v{s[j - 1]}, v{s[j - 1]}"))
                if j == 3 and g == 1 and final:
                    out.append(("sum", t, 0))
            out.append((r, dl, 8, f"v_exp_f32 v{s[7]}, v{s[7]}"))
            for j in range(4):
                out.append((r, dl, 4, f"v_cvt_pk_bf16_f32 v{32 + 8 * t + 4 * g + j}, v{s[2 * j]}, v{s[2 * j + 1]}"))
        if final:
            out.append(("late", t, 1))
        return out

    assert 4 <= NE <= 8
    for t in range(16):
        r = marks[("s", t)] + lag
        d = sloc(t)
        dl = pv0
        for j in (0, 4, 1, 5, 2, 6, 3, 7):
            x, y, mx = f"v{d + 2 * j}", f"v{d + 2 * j + 1}", f"v{26 + (j >> 2)}"
            if t in (13, 15):
                fill(r, dl, f"v_accvgpr_read_b32 {x}, a{L(t)[1] + 2 * j}")
                fill(r, dl, f"v_accvgpr_read_b32 {y}, a{L(t)[1] + 2 * j + 1}")
            if t == 0 and j % 4 == 0:
                fill(r, dl, f"v_max_f32 {mx}, {x}, {y}")
            else:
                fill(r, dl, f"v_max3_f32 {mx}, {mx}, {x}, {y}")
        if t < NE:
            for g in range(2):
                fill(r, dl, f"v_mul_f32 v{28 + g}, s56, v{26 + g}")
            for g in range(2):
                fill(r, dl, f"v_ceil_f32 v{28 + g}, v{28 + g}")
            for g in range(2):
                fill(r, dl, f"v_accvgpr_write_b32 a{XF + 2 * t + g}, v{28 + g}")
            F += expo(t, r, dl, False)
    r = marks[("s", 15)] + lag
    for txt in ["v_add_u32 v8, 14336, v30", "v_accvgpr_read_b32 v6, a112",
                "v_permlane16_swap_b32 v26, v27", "v_max_f32 v26, v26, v27", "v_mov_b32 v27, v26", "v_accvgpr_read_b32 v7, a113",
                "v_permlane32_swap_b32 v26, v27", "v_max_f32 v26, v26, v27", "v_mul_f32 v26, s56, v26", "v_ceil_f32 v28, v26",
                "v_ceil_f32 v29, v26", "v_permlane16_swap_b32 v28, v29"]:
        fill(r, pv0, txt)
    pdl = lambda t: marks[("pv", t)]
    G = []
    for t in range(NE):
        dl = pdl(t)
        for txt in ["v_accvgpr_read_b32 {k}, a{a}", "v_sub_f32 {k}, {m}, {k}", "v_cvt_u32_f32 {k}, {k}",
                    "v_min_u32 {k}, 255, {k}", "v_mul_u32_u24 {k}, s57, {k}"][(0 if t else 1):]:
            for g in range(2):
                G.append((r, dl, 4, txt.format(k=f"v{6 + g}", a=XF + 2 * t + g, m=f"v{28 + g}")))
        for g in range(2):
            for j in range(4):
                p = 32 + 8 * t + 4 * g + j
                G.append((r, dl, 4, f"v_pk_sub_u16 v{p}, v{p}, v{6 + g} clamp"))
            G.append(("late", t, g))
    for t in range(NE, 16):
        G += expo(t, r, pdl(t), True)
    pend = []
    for e in G:
        if e[0] == "sum":
            F.append(summ(e[1], e[2], r))
        elif e[0] == "late":
            pend.append([3, e])
        else:
            F.append(e)
            for x in pend:
                x[0] -= 1
            while pend and pend[0][0] <= 0:
                x = pend.pop(0)[1]
                F.append(summ(x[1], x[2], r))
    for _, x in pend:
        F.append(summ(x[1], x[2], r))
    assert nsum == [16, 16]
    rs = marks[("o", 0, 0)]
    for g in range(2):
        fill(rs, op0, f"v_accvgpr_read_b32 v{26 + g}, a{100 + 4 * g}")
    for g in range(2):
        fill(rs, op0, f"v_rcp_f32 v{26 + g}, v{26 + g}", 8)
    for p in sorted(range(4), key=lambda p: lastm[f"v{p}"]):
        for dt in range(2):
            r = marks[("o", p, dt)] + lag
            for g in range(2):
                dl = marks[("ouse", p, dt)]
                e = [OF[p] + 16 * dt + 8 * g + j for j in range(8)]
                if OA[p][0] == "a":
                    dl = min(dl, marks[("t0", OA[p][1] + 16 * dt)])
                    for j in range(8):
                        fill(r, dl, f"v_accvgpr_read_b32 v{e[j]}, a{OA[p][1] + 16 * dt + 8 * g + j}")
                for j in range(8):
                    fill(r, dl, f"v_mul_f32 v{e[j]}, v{26 + g}, v{e[j]}")
                for j in range(4):
                    fill(r, dl, f"v_cvt_pk_bf16_f32 v{OF[p] + 4 * (2 * dt + g) + j}, v{e[2 * j]}, v{e[2 * j + 1]}")
    for T in range(14):
        r = marks[("T", T)] + lag
        assert r > max(lastm[f"v{p}"] for p in range(4))
        acc = 16 * ((T + 7) % 14)
        tb = 64 + 32 * (T % 3)
        for g in range(2):
            for j in range(8):
                fill(r, N, f"v_accvgpr_read_b32 v{tb + 8 * g + j}, a{acc + 8 * g + j}")
            for j in range(4):
                fill(r, N, f"v_cvt_pk_bf16_f32 v{tb + 16 + 4 * g + j}, v{tb + 8 * g + 2 * j}, v{tb + 8 * g + 2 * j + 1}")
            fill(r, N, f"buffer_store_dwordx4 v[{tb + 16 + 4 * g}:{tb + 19 + 4 * g}], v{8 if g else 30}, s[52:55], s{70 + T // 2} offen offset:{(T % 2) * 1024} {stpol}", 4)

    rd_ptr = 0
    fp = 0
    forced = {}

    def reads(j):
        m = M[j]
        out = []
        t = m["tile"]
        ci = j // 16
        jj = j % 16
        if j == csnap:
            out.append((cr(f"""
            s_waitcnt vmcnt(0)
            v_add_u32 v52, 1, v51
            v_add_u32 v48, s7, v48
            s_cmp_lg_u32 s30, 0
            s_cbranch_scc1 L_nohello
            {hello}
            L_nohello:
            ds_write2st64_b32 v48, v52, v50 offset0:8 offset1:9
            """), 8, 8))
        if jj == 0:
            if not nochk:
                out.append(("s_getpc_b64 s[62:63]\ns_cbranch_vccnz L_cslow", 0, 8))
            if prof:
                if j:
                    out.append((f"v_mov_b32 {vF}, s66\nds_write_b32 {vPA}, {vF} offset:{512 + 16 * (ci - 1)}", 0, 0))
                out.append(("s_memrealtime s[66:67]", 0, 0))
        if poison and j in pz:
            out.append((f"s_movk_i32 s31, {pz[j] * 1024}\nbuffer_store_dwordx4 a[100:103], v30, s[52:55], s31 offen {ppol}", 0, 8))
        b = base[t]
        ring = 224 + 4 * (j % 8)
        n = 0
        for kind, A, na, ar, o in m["rd"]:
            ad = base[("x", t[1])] + o[1] if kind == "x" else b + o
            ar = A + na * (ad // 65536) + ar
            if kind == "x":
                out.append((f"ds_read_b128 a[{o[0]}:{o[0] + 3}], v{ar} offset:{ad % 65536}", 0, 4))
            else:
                if kind == "tr":
                    out.append((f"ds_read_b64_tr_b16 a[{ring + 2 * n}:{ring + 2 * n + 1}], v{ar} offset:{ad % 65536}", 0, 4))
                else:
                    out.append((f"ds_read_b128 a[{ring}:{ring + 3}], v{ar} offset:{ad % 65536}", 0, 4))
                n += 1
        if j + 16 < N and not nochk:
            if jj == 1:
                out.append((f"v_add_u32 {vT}, 4, {vT}", 4, 0))
            if jj == 16 - fpre:
                out.append((f"ds_read_b32 {vF}, {vT} offset:4", 0, 4))
            if jj == 14:
                out.append((f"v_cmp_ne_u32 vcc, 0, {vF}", 4, 0))
            if jj == 15:
                out.append((f"ds_write_b32 {vPA}, {vT}", 0, 4))
        return out

    while rd_ptr < PD:
        for x in reads(rd_ptr):
            C(x[0])
        rd_ptr += 1
    carry = 0
    for i in range(N):
        m = M[i]
        while fp < len(F) and any(f[1] <= i for f in F[fp:fp + 900]):
            assert F[fp][0] - lag < i, (F[fp], i)
            forced[i // 16] = forced.get(i // 16, 0) + abs(F[fp][2])
            C(F[fp][3]); fp += 1
        ring = 224 + 4 * (i % 8)
        rl = reads(rd_ptr) if rd_ptr < N else []
        rd_ptr += 1
        tot = sum(x[1] + x[2] for x in rl)
        wait2 = 0 if (pairw and i % 2 == 0) else wcost
        k = 0; acc_ = 0
        while k < len(rl) and (acc_ == 0 or 2 * (acc_ + rl[k][1] + rl[k][2]) <= tot + wait2):
            acc_ += rl[k][1] + rl[k][2]; k += 1
        parts = [rl[:k], rl[k:]]
        bud0 = bud2 if marks[("s", 0)] <= i < marks[("pv", 15)] else bud3 if i >= marks[("T", 0)] else budget
        for h in range(2):
            c = "0" if m["first"] else m["d"][h]
            extra = ""
            if h == 0:
                extra = f" ;+{m['b'][1]}"
                if pairw and i % 2 == 0:
                    r2 = 224 + 4 * ((i + 1) % 8)
                    extra += f" a[{r2}:{r2 + 3}] {M[i + 1]['b'][0]} {M[i + 1]['b'][1]}"
            C(f"{MS} {m['d'][h]}, a[{ring}:{ring + 3}], {m['b'][h]}, {c}{extra}")
            oth = (wait2 if h else 0)
            bud = bud0 + carry
            for x in parts[h]:
                C(x[0]); bud -= x[1]; oth += x[2]
            bud -= max(0, oth - 4)
            while fp < len(F) and F[fp][0] <= i and (bud >= F[fp][2] or (bud >= 4 and bud0 > 8)):
                bud = bud0 if F[fp][2] < 0 else bud - F[fp][2]
                C(F[fp][3]); fp += 1
            carry = min(bud, 0)
    while fp < len(F):
        forced[59] = forced.get(59, 0) + abs(F[fp][2])
        C(F[fp][3]); fp += 1
    if verbose:
        print("forced cycles per tile:", sum(forced.values()), {f"{CONS[2 * k][0]}.{CONS[2 * k][1]}": v for k, v in forced.items()})
    def stamp(S, n):
        if prof:
            S(f"s_memrealtime s[66:67]\ns_waitcnt lgkmcnt(0)\nv_mov_b32 {vF}, s66\nds_write_b32 {vPA}, {vF} offset:{512 + 16 * n}")
    if prof:
        C(f"v_mov_b32 {vF}, s66\nds_write_b32 {vPA}, {vF} offset:{512 + 16 * 59}")
    C(f"""
    v_add_u32 v232, {vPA}, v30
    ds_read_b32 v230, v232 offset:{2048 - 256}
    v_lshlrev_b32 v236, 8, v0
    s_lshl_b32 s36, s36, 1
    s_lshl_b32 s51, s27, 2
    s_add_u32 s51, s51, s30
    s_lshl_b32 s51, s51, 2
    s_add_u32 s51, s51, {MB}
    s_mov_b32 s68, 0
    s_call_b64 s[46:47], L_setup
    s_mov_b64 exec, 0xffff
    s_waitcnt vmcnt(0) lgkmcnt(0)
    buffer_store_dword v230, v236, s[8:11], s51 offen sc1
    s_mov_b64 exec, -1
    """)
    stamp(C, 60)
    C("s_call_b64 s[46:47], L_red")
    if prof or probe:
        C("s_waitcnt vmcnt(0)")
    stamp(C, 62)
    if prof:
        C(f"""
        v_mov_b32 {vF}, s64
        ds_write_b32 {vPA}, {vF} offset:{512 + 16 * 63}
        v_add_u32 v3, {vPA}, v30
        ds_read_b32 v4, v3 offset:512
        s_lshl_b32 s29, s2, 10
        s_lshl_b32 s31, s30, 8
        s_add_u32 s29, s29, s31
        s_add_u32 s29, s29, {PROF_OFF}
        s_add_u32 s52, s22, s29
        s_addc_u32 s53, s23, 0
        s_mov_b32 s54, 256
        v_lshlrev_b32 v5, 2, v0
        buffer_store_dword v4, v5, s[52:55], 0 offen
        """)
    C("s_endpgm")

    R = Stream()
    R(f"""
    L_red:
    s_lshr_b32 s50, s36, 5
    s_lshr_b32 s31, s36, 4
    s_mul_i32 s38, s31, 14336
    s_bfe_u32 s31, s36, 0x10003
    s_lshl_b32 s31, s31, 7
    s_add_u32 s38, s38, s31
    s_bfe_u32 s31, s36, 0x20001
    s_mul_i32 s31, s31, 7
    v_add_u32 v229, s31, v240
    s_lshl_b32 s31, s31, 9
    s_add_u32 s38, s38, s31
    s_lshr_b32 s31, s36, 3
    s_mul_i32 s39, s31, 14336
    s_add_u32 s39, s39, s37
    s_mov_b64 s[44:45], 0
    v_lshrrev_b32 v239, 1, v229
    v_and_b32 v229, 1, v229
    v_lshl_add_u32 v229, v229, 4, v241
    v_lshl_add_u32 v229, v239, 6, v229
    v_or_b32 v239, v229, v242
    """)
    for h in range(16):
        R(f"""
        L_h{h}:
        s_bitcmp1_b64 s[44:45], {4 * h}
        s_cbranch_scc1 L_g{h}
        s_call_b64 s[62:63], L_more
        s_branch L_h{h}
        L_g{h}:
        """)
        for q in range(2):
            acc = 160 + 16 * q
            R(f"{MF} v[{acc}:{acc + 15}], v[224:227], a[{8 * h + 4 * q}:{8 * h + 4 * q + 3}], {'0' if h == 0 else f'v[{acc}:{acc + 15}]'}")
    stamp(R, 61)
    for q in range(2):
        acc = 160 + 16 * q
        for j in range(4):
            R(f"v_cvt_pk_bf16_f32 v{acc + 8 + j}, v{acc + 2 * j}, v{acc + 2 * j + 1}")
        R(f"buffer_store_dwordx4 v[{acc + 8}:{acc + 11}], v{239 if q else 229}, s[12:15], s39 offen offset:{128 * q} {opol}")
    R(f"""
    s_setpc_b64 s[46:47]
    L_more:
    ds_read_b64 v[232:233], v231 offset:272
    s_add_u32 s68, s68, 1
    s_cmp_gt_u32 s68, {safe}
    s_cbranch_scc1 L_done
    s_waitcnt lgkmcnt(0)
    v_readfirstlane_b32 s40, v232
    v_readfirstlane_b32 s41, v233
    s_bitcmp1_b32 s41, 31
    s_cbranch_scc1 L_done
    s_lshr_b64 s[40:41], s[40:41], s50
    s_andn2_b64 s[42:43], s[40:41], s[44:45]
    s_or_b64 s[44:45], s[44:45], s[40:41]
    s_and_b64 s[42:43], s[42:43], s[48:49]
    s_cbranch_scc0 L_m16
    """)
    for h in range(16):
        if h % 4 == 0:
            R(f"s_and_b32 s31, s{42 + h // 8}, {0xffff << (16 * ((h // 4) & 1)):#x}\ns_cbranch_scc0 L_m{h + 4}")
        R(f"""
        s_bitcmp1_b32 s{42 + h // 8}, {4 * (h % 8)}
        s_cbranch_scc0 L_m{h + 1}
        s_add_u32 s31, s38, {86016 * h}
        buffer_load_dwordx4 a[{8 * h}:{8 * h + 3}], v228, s[8:11], s31 offen {rdpol}
        buffer_load_dwordx4 a[{8 * h + 4}:{8 * h + 7}], v238, s[8:11], s31 offen offset:2048 {rdpol}
        L_m{h + 1}:
        """)
    R(f"""
    s_waitcnt vmcnt(0)
    ds_write_b32 {vPA}, v237
    s_setpc_b64 s[62:63]
    L_setup:
    s_mov_b32 s12, s18
    s_mov_b32 s13, s19
    s_mov_b32 s14, 1376256
    s_mov_b32 s15, 0x20000
    s_mul_i32 s37, s28, 172032
    s_mul_i32 s31, s4, 896
    s_add_u32 s37, s37, s31
    s_mov_b32 s48, 0x11111111
    s_mov_b32 s49, 0x11111111
    v_mov_b32 v231, {FLAGB}
    v_mov_b32 v237, {DONE}
    v_bfe_u32 v240, v0, 3, 2
    v_and_b32 v234, 7, v0
    v_and_b32 v233, 32, v0
    v_lshlrev_b32 v228, 9, v240
    v_lshl_add_u32 v228, v234, 4, v228
    v_lshl_add_u32 v228, v233, 3, v228
    v_mul_u32_u24 v241, 1792, v234
    v_add_u32 v241, v241, v233
    v_bfrev_b32 v233, 1
    v_cmp_eq_u32 vcc, 3, v240
    v_cndmask_b32 v242, 0, v233, vcc
    v_or_b32 v238, v228, v242
    v_lshrrev_b32 v233, 5, v0
    v_xor_b32 v233, v233, v240
    v_bfe_u32 v234, v0, 1, 2
    v_lshl_add_u32 v233, v233, 2, v234
    v_and_b32 v234, 1, v0
    v_lshlrev_b32 v234, 4, v234
    v_mov_b32 v235, 0x3f80
    v_lshlrev_b32 v234, v234, v235
    """)
    for q in range(4):
        R(f"v_cmp_eq_u32 vcc, {q}, v233\nv_cndmask_b32 v{224 + q}, 0, v234, vcc")
    R("s_setpc_b64 s[46:47]")
    CS = Stream()
    CS(f"""
    L_cslow:
    {f's_sleep {csleep}' if csleep else ''}
    ds_read_b32 {vF}, {vT} offset:4
    s_add_u32 s68, s68, 1
    s_cmp_gt_u32 s68, {safe}
    s_cbranch_scc1 L_done
    s_waitcnt lgkmcnt(0)
    v_cmp_ne_u32 vcc, 0, {vF}
    s_cbranch_vccnz L_cslow
    s_setpc_b64 s[62:63]
    L_lslow:
    {f's_sleep {lsleep}' if lsleep else ''}
    ds_read_b96 v[28:30], v44 offset:256
    s_add_u32 s68, s68, 1
    s_cmp_gt_u32 s68, {safe}
    s_cbranch_scc1 L_done
    s_waitcnt lgkmcnt(0)
    v_min3_u32 v28, v28, v29, v30
    v_readfirstlane_b32 s61, v28
    s_setpc_b64 s[62:63]
    """)

    Ld = Stream()
    Ld(f"""
    v_mov_b32 v44, {FLAGB}
    v_lshl_add_u32 v45, v0, 2, v44
    v_mov_b32 v46, {0 if noload else 1}
    v_mov_b32 v47, 0
    ds_write_b32 v45, v46
    ds_write_b32 v45, v47 offset:256
    v_lshrrev_b32 v6, 3, v0
    v_mul_u32_u24 v5, 896, v6
    v_and_b32 v2, 7, v0
    v_lshrrev_b32 v1, 4, v0
    v_xor_b32 v2, v2, v1
    v_lshlrev_b32 v2, 4, v2
    v_add_u32 v32, v2, v5
    v_xor_b32 v33, 64, v32
    v_add_u32 v33, 6144, v33
    v_add_u32 v34, 12288, v32
    v_add_u32 v35, 12288, v33
    v_and_b32 v4, 7, v0
    v_and_b32 v3, 1, v1
    v_xor_b32 v3, v3, v4
    v_lshlrev_b32 v3, 4, v3
    v_lshl_add_u32 v8, v6, 13, v3
    v_xor_b32 v9, 64, v8
    v_add_u32 v9, 64512, v9
    v_add_u32 v10, 129024, v8
    v_add_u32 v11, 129024, v9
    v_lshlrev_b32 v3, 1, v1
    v_xor_b32 v3, v3, v4
    v_lshlrev_b32 v3, 4, v3
    v_lshl_add_u32 v12, v6, 9, v2
    v_xor_b32 v13, 64, v12
    v_add_u32 v13, 3072, v13
    v_add_u32 v14, 6144, v12
    v_add_u32 v15, 6144, v13
    """)
    for i in range(7):
        Ld(f"s_lshl_b32 s{77 + i}, s{70 + i}, 12")
    if qrot:
        Ld({"h": "s_mov_b32 s84, s27", "b": "s_mov_b32 s84, s28", "hb": "s_add_u32 s84, s27, s28", "H": "s_lshr_b32 s84, s27, 2",
            "h2": "s_lshl_b32 s84, s27, 1", "b2": "s_lshl_b32 s84, s28, 1"}[qrot])
        Ld("s_lshl_b32 s84, s84, 7\ns_and_b32 s84, s84, 0x180")
        for p in range(1, 4):
            Ld(f"s_xor_b32 s{84 + p}, s84, {128 * p}")
        for p in range(4):
            Ld(f"s_mul_i32 s{88 + p}, s{84 + p}, 448")
    Ld("""
    s_mov_b32 s61, 0
    s_mul_i32 s29, s28, 86016
    s_lshl_b32 s31, s27, 9
    s_lshl_b32 s60, s28, 4
    s_add_u32 s60, s60, s27
    s_lshl_b32 s60, s60, 18
    s_mov_b32 s34, 86016
    s_mov_b32 s35, 0x20000
    s_sub_u32 s46, 3670016, s31
    s_mov_b32 s47, 0x20000
    s_mov_b32 s38, 262144
    s_mov_b32 s39, 0x20000
    s_mov_b32 s26, 4
    s_mul_i32 s59, s27, 229376
    s_mov_b32 s27, 0x20000
    s_waitcnt lgkmcnt(0)
    s_add_u32 s32, s8, s29
    s_addc_u32 s33, s9, 0
    s_add_u32 s44, s14, s31
    s_addc_u32 s45, s15, 0
    s_add_u32 s36, s10, s60
    s_addc_u32 s37, s11, 0
    s_mov_b32 s24, s20
    s_mov_b32 s25, s21
    """)
    setup2 = """
    v_lshl_add_u32 v20, v6, 9, v3
    v_add_u32 v21, 3072, v20
    v_add_u32 v22, 6144, v20
    v_add_u32 v23, 9216, v20
    v_add_u32 v24, v5, v3
    v_add_u32 v25, 6144, v24
    v_add_u32 v26, 12288, v24
    v_add_u32 v27, 18432, v24
    s_add_u32 s40, s12, s60
    s_addc_u32 s41, s13, 0
    s_mov_b32 s42, 262144
    s_mov_b32 s43, 0x20000
    s_add_u32 s48, s16, s59
    s_addc_u32 s49, s17, 0
    s_mov_b32 s50, 229376
    s_mov_b32 s51, 0x20000
    """
    pieces = [(t, q) for t in order for q in range(3 if t[0] == "x" else 2)]
    setup_at = min([11] + [n for n, (t, q) in enumerate(pieces) if t[0][0] in "vo"])
    st = dict(known=-1, vm=0, ds=0)
    stamped = set()
    vend, dend = {}, {}
    if vload:
        Ld("v_lshlrev_b32 v56, 4, v0\nv_add_u32 v57, 0x10000, v56\nv_add_u32 v58, 0x20000, v56")

    def space(n):
        t, q = pieces[n]
        if q == 0:
            if need[t] > st["known"] and not noload:
                assert n > lbar
                Ld(f"s_getpc_b64 s[62:63]\ns_cmp_lt_u32 s61, {FLAGB + 4 * need[t]}\ns_cbranch_scc1 L_lslow")
                st["known"] = need[t]
            if verbose:
                print(f"{t[0]}.{t[1]}@{base[t] // 4096}<{need[t]}", end=" ")
            if prof and t[0] != "x" and step[t] not in stamped and not plast:
                stamped.add(step[t])
                Ld(f"s_memrealtime s[66:67]\ns_waitcnt lgkmcnt(0)\nv_writelane_b32 v43, s66, {step[t]}")

    def issue(n):
        t, q = pieces[n]
        kind, i = t
        if n == lbar:
            Ld("s_barrier")
        if n == setup_at:
            Ld(setup2)
        if n == len(pieces) - 4:
            Ld(f"""
            s_lshl_b32 s3, s4, 3
            s_add_u32 s3, s3, s28
            s_mul_i32 s69, s3, {GS}
            {f's_add_u32 s69, s69, {woff}' if woff else ''}
            {gsrd}
            s_bfe_u32 s58, s60, 0x40012
            {mbadr}
            buffer_load_dword v53, v48, s[8:11], s5 offen sc1
            """)
            st["vm"] += 1
        if not vload:
            space(n)
        p = 0 if kind == "x" else int(kind[1])
        pr = p
        if qrot:
            p = 0
        if kind == "x":
            so, srd, vb, pol = (70 + i, q * 28672), 32, 32, xpol
        elif kind[0] == "q":
            so, srd, vb, pol = (77 + i, p * 128 + q * 262144), 44, 8, wpol
        elif kind[0] == "k":
            so, srd, vb, pol = p * 128 + i * 32768 + q * 16384, 36, 12, kvpol
        elif kind[0] == "v":
            so, srd, vb, pol = p * 128 + i * 32768 + q * 16384, 40, 20, kvpol
        else:
            so, srd, vb, pol = (70 + i, (p * 64 + q * 32) * 896), 48, 24, wpol
        assert n >= setup_at or srd in (32, 44, 36)
        if not vload:
            Ld(f"s_mov_b32 m0, {base[t] + q * 4096}")
        if isinstance(so, tuple):
            Ld(f"s_add_u32 s31, s{so[0]}, {so[1]}")
        elif qrot:
            Ld(f"s_add_u32 s31, s{84 + pr}, {so}")
        else:
            Ld(f"s_mov_b32 s31, {so}")
        if qrot and kind[0] in "qo":
            Ld(f"s_add_u32 s31, s31, s{(84 if kind[0] == 'q' else 88) + pr}")
        if vload:
            if n >= 16 and st["ds"] - dend[n - 16] < 15:
                Ld(f"s_waitcnt lgkmcnt({st['ds'] - dend[n - 16]})")
            for k in range(4):
                r = 16 * (n % 16) + 4 * k
                Ld(f"buffer_load_dwordx4 a[{r}:{r + 3}], v{vb + k}, s[{srd}:{srd + 3}], s31 offen offset:{k * 1024} {pol}")
            st["vm"] += 4
            vend[n] = st["vm"]
            return
        for k in range(0 if noload else 4):
            Ld(f"buffer_load_dwordx4 v{vb + k}, s[{srd}:{srd + 3}], s31 offen offset:{k * 1024} {pol} lds")
        if q == (2 if kind == "x" else 1) and t in flag and prof and plast:
            Ld(f"s_memrealtime s[66:67]\ns_waitcnt lgkmcnt(0)\nv_writelane_b32 v43, s66, {flag[t]}")
        if q == (2 if kind == "x" else 1) and t in flag:
            Ld(f"s_mov_b32 m0, {FLAGB + 4 * flag[t]}\ns_mov_b64 exec, 1\nbuffer_load_dword off, s[24:27], 0 lds\ns_mov_b64 exec, -1")

    def write(n):
        t, q = pieces[n]
        assert st["vm"] - vend[n] <= 63
        Ld(f"s_waitcnt vmcnt({st['vm'] - vend[n]})")
        space(n)
        ad = base[t] + q * 4096
        for k in range(4):
            r = 16 * (n % 16) + 4 * k
            Ld(f"ds_write_b128 v{56 + ad // 65536}, a[{r}:{r + 3}] offset:{ad % 65536 + k * 1024}")
        st["ds"] += 4
        dend[n] = st["ds"]
        if q == (2 if t[0] == "x" else 1) and t in flag:
            Ld(f"s_mov_b64 exec, 1\nds_write_b32 v44, v47 offset:{4 * flag[t]}\ns_mov_b64 exec, -1")
            st["ds"] += 1

    if vload:
        dep = [(0, vload)] if isinstance(vload, int) else list(vload)
        depth = lambda n: [d for f, d in dep if f <= n][-1]
        wp = 0
        for n in range(len(pieces)):
            while n - wp >= depth(wp):
                write(wp); wp += 1
            assert n - wp < 16
            issue(n)
        while wp < len(pieces):
            write(wp); wp += 1
    else:
        for n in range(len(pieces)):
            issue(n)
    def lstamp(n):
        if prof:
            Ld(f"s_memrealtime s[66:67]\ns_waitcnt lgkmcnt(0)\nv_writelane_b32 v43, s66, {n}")
    Ld(f"""
    s_lshl_b32 s3, s3, 3
    s_mov_b64 s[16:17], 0
    s_mov_b32 s59, 0
    v_mov_b32 {vPA}, {FLAGB + 268}
    """)
    Ld("ds_read2st64_b32 v[50:51], v45 offset0:9 offset1:8\nv_add_u32 v51, -1, v51")
    Ld(f"""
    s_waitcnt vmcnt(0)
    s_mov_b32 s26, 256
    v_cmp_ne_u32 vcc, v53, v50
    s_and_b32 s7, vcc_lo, vcc_hi
    s_or_b32 s7, s7, 0x77777777
    """)
    if nofast:
        Ld("s_mov_b32 s7, 0")
    lstamp(60)
    if pstart is not None:
        Ld(f"s_getpc_b64 s[62:63]\ns_cmp_lt_u32 s61, {FLAGB + 4 * pstart}\ns_cbranch_scc1 L_lslow")
    pub = """
    s_and_b32 s31, vcc_hi, 0x7fffffff
    v_mov_b32 v54, vcc_lo
    v_mov_b32 v55, s31
    ds_write_b64 v44, v[54:55] offset:272
    """
    Ld(f"""
    s_mov_b32 s68, 0
    L_poll:
    ds_read_b96 v[28:30], v44 offset:256
    s_add_u32 s68, s68, 1
    s_waitcnt lgkmcnt(0)
    buffer_load_dword v53, v48, s[8:11], s5 offen sc1
    v_min3_u32 v28, v28, v29, v30
    s_cmp_gt_u32 s68, {t1}
    v_readfirstlane_b32 s61, v28
    s_cbranch_scc1 L_pslow
    L_p2:
    s_waitcnt vmcnt(0)
    v_cmp_ne_u32 vcc, v53, v50
    s_or_b64 vcc, vcc, s[16:17]
    {'' if allornone else pub}
    s_and_b32 s31, vcc_lo, vcc_hi
    s_or_b32 s31, s31, 0x88888888
    s_cmp_eq_u32 s31, -1
    s_cbranch_scc0 L_nxt
    {pub if allornone else ''}
    s_cmp_eq_u32 s61, {DONE}
    s_cbranch_scc0 L_nxt
    s_cmp_eq_u32 s7, -1
    s_cbranch_scc0 L_careful
    v_sub_u32 v54, v53, v50
    v_and_b32 v54, 2, v54
    v_cmp_ne_u32 vcc, 0, v54
    s_or_b64 vcc, vcc, s[16:17]
    s_and_b32 s56, vcc_lo, 0x88888888
    s_and_b32 s57, vcc_hi, 0x88888888
    s_lshl_b32 s31, s58, 2
    s_add_u32 s31, s31, 3
    s_bitset0_b64 s[56:57], s31
    s_or_b32 s31, s56, s57
    s_cbranch_scc1 L_fix
    L_lend:
    """)
    lstamp(61)
    if prof:
        Ld(f"""
        v_writelane_b32 v43, s68, 62
        s_lshl_b32 s29, s2, 10
        s_add_u32 s29, s29, {PROF_OFF + 768}
        s_add_u32 s52, s22, s29
        s_addc_u32 s53, s23, 0
        s_mov_b32 s54, 256
        s_mov_b32 s55, 0x20000
        v_lshlrev_b32 v3, 2, v0
        buffer_store_dword v43, v3, s[52:55], 0 offen
        """)
    Ld(f"""
    s_waitcnt vmcnt(0) lgkmcnt(0)
    L_done:
    s_endpgm
    L_nxt:
    {f's_sleep {psleep}' if psleep else ''}
    s_cmp_lt_u32 s68, {lim}
    s_cbranch_scc1 L_poll
    s_cmp_lg_u32 s59, 0
    s_cbranch_scc1 L_abort
    s_getpc_b64 s[62:63]
    s_cmp_lt_u32 s61, {DONE}
    s_cbranch_scc1 L_lslow
    s_mov_b32 s59, 1
    s_mov_b32 s7, 0
    s_max_u32 s68, s68, {t1}
    s_lshl_b32 s31, s58, 2
    s_lshl_b64 s[56:57], 15, s31
    v_mov_b32 v54, s56
    v_mov_b32 v55, s57
    v_add_u32 v52, 3, v51
    s_mov_b64 exec, 1
    buffer_atomic_or_x2 v[54:55], off, s[24:27], s3 offset:128 sc1
    s_mov_b32 exec_lo, 0x88888888
    s_mov_b32 exec_hi, 0x88888888
    buffer_store_dword v52, v49, s[8:11], s6 offen sc1
    s_mov_b64 exec, -1
    s_waitcnt vmcnt(0)
    s_branch L_poll
    L_pslow:
    buffer_load_dwordx2 v[54:55], off, s[24:27], s3 offset:128 sc1
    s_waitcnt vmcnt(0)
    v_readfirstlane_b32 s16, v54
    v_readfirstlane_b32 s17, v55
    s_branch L_p2
    L_careful:
    v_add_u32 v52, 2, v51
    s_mov_b32 exec_lo, 0x77777777
    s_mov_b32 exec_hi, 0x77777777
    buffer_store_dword v52, v49, s[8:11], s6 offen sc1
    s_mov_b64 exec, -1
    s_mov_b32 s7, -1
    s_waitcnt vmcnt(0)
    s_branch L_poll
    L_abort:
    v_bfrev_b32 v55, 1
    ds_write_b64 v44, v[54:55] offset:272
    s_branch L_lend
    L_fix:
    s_call_b64 s[46:47], L_setup
    s_mov_b32 s68, 0
    L_fix0:
    s_ff1_i32_b64 s31, s[56:57]
    s_bitset0_b64 s[56:57], s31
    s_lshr_b32 s31, s31, 2
    s_mul_i32 s36, s31, 6
    s_add_u32 s60, s36, 6
    L_fix1:
    s_call_b64 s[46:47], L_red
    s_waitcnt vmcnt(0)
    s_add_u32 s36, s36, 2
    s_cmp_lt_u32 s36, s60
    s_cbranch_scc1 L_fix1
    s_or_b32 s31, s56, s57
    s_cbranch_scc1 L_fix0
    s_branch L_lend
    """)

    import gen_kernel as g1
    tail = g1.tail_kernels(rdpol, probe, clk, False)
    body = P.finish() + Ld.finish() + CS.finish() + C.finish() + R.finish()
    if clk == "cyc":
        body = [l.replace("s_memrealtime", "s_memtime") for l in body]
    if verbose:
        print("\nconsumer nops", C.nops, "instructions", len(C.ins))
    T = H + ["    " + l if not l.endswith(":") else l for l in body]
    T += tail[0]
    T += ["L_end:"]
    ks = [(K1, 512, 256)] + tail[1]
    T += ['.section .rodata,"a"']
    for k, nv, ao in ks:
        T += [".p2align 6", f".amdhsa_kernel {k}", f"  .amdhsa_next_free_vgpr {nv}", "  .amdhsa_next_free_sgpr 102",
              f"  .amdhsa_accum_offset {ao}", "  .amdhsa_group_segment_fixed_size 0", "  .amdhsa_kernarg_size 104",
              "  .amdhsa_user_sgpr_count 2", "  .amdhsa_user_sgpr_kernarg_segment_ptr 1",
              "  .amdhsa_system_sgpr_workgroup_id_x 1", ".end_amdhsa_kernel"]
    return "\n".join(T) + "\n"


if __name__ == "__main__":
    out = sys.argv[1] if len(sys.argv) > 1 else f"cdna_kernels/{NAME}.s"
    kw = {}
    for a in sys.argv[2:]:
        k, v = a.split("=", 1); v = v.replace("+", " ")
        kw[k] = eval(v) if v and (v[0].isdigit() or v[0] in "([" or v in ("True", "False")) else v
    open(out, "w").write(gen(verbose=True, **kw))
```

```python
import sys, math, struct, re
sys.path.insert(0, "dev")
from asmlib import Stream

NAME = "concat_heads__mha_block_cached__gqa_block_cached__near_ridge"
MF = "v_mfma_f32_32x32x16_bf16"
MS = "v_mfma_f32_16x16x32_bf16"
NG = 39
FLAGB = NG * 4096
PROF_OFF = 0x4000000
MB = 1376256
GS = MB + 4096
DONE = FLAGB + 240


def f32bits(x):
    return struct.unpack("<I", struct.pack("<f", x))[0]


def tiles(s):
    if "/" in s:
        n, m = 1, 1
        if ":" in s:
            s, g = s.split(":"); n, m = map(int, g.split("."))
        a, b = [sum([tiles(y) for y in x.split("+")], []) for x in s.split("/")]
        out = []
        while a or b:
            out += a[:n] + b[:m]; a = a[n:]; b = b[m:]
        return out
    m = re.fullmatch(r"(x|[qkvo][0-3])(?:_?(\d+)(?:-(\d+))?)?", s)
    assert m, s
    k = m.group(1)
    if m.group(2) is None:
        a, b = 0, (7 if k[0] in "kv" else 6)
    else:
        a = int(m.group(2)); b = int(m.group(3) or a)
    return [(k, i) for i in range(a, b + 1)]


def parse(spec):
    return sum([tiles(s) for s in spec.split()], [])


CONS_SPEC = {
    "c1": "q0 q1/k0 q2/k1 q3/k2 k3 v0 v1/o0 v2/o1 v3/o2 o3",
    "c2": "q0 q1/k0 q2/k1 q3/k2 k3 v0 v1_0 v1_1-7/o0 v2_0 v2_1-7/o1 v3_0 v3_1-7/o2 o3",
}
ORD_SPEC = {
    "l0": "x/q0 q1/k0 q2/k1 q3/k2 k3 v0 v1/o0 v2/o1 v3/o2 o3",
    "l1": "x/q0 q1+q2+q3/k0+k1+k2:4.4 k3 v0 v1+v2+v3/o0+o1+o2:4.4 o3",
    "l3": "x/q0 q1+q2+q3/k0+k1+k2:2.2 k3 v0 v1+v2+v3/o0+o1+o2:2.2 o3",
    "l2": "x0-3/q0_0-3 k0_0-3 x4-6/q0_4-6 q1+q2+q3/k0_4-7+k1+k2:4.4 k3 v0 v1+v2+v3/o0+o1+o2:4.4 o3",
}


def plan_slots(order, CONS, strict=True):
    step = {t: i // 2 for i, t in enumerate(CONS)}
    rel = lambda t: step[("q0", t[1])] if t[0] == "x" else step[t]
    members = {}
    for t in order:
        members.setdefault(rel(t), set()).add(t)
    last = [-1] * NG
    base, need, flag = {}, {}, {}
    ready = set()
    for t in order:
        n = 3 if t[0] == "x" else 2
        if t[0] == "x":
            cand = sorted(range(NG - n + 1), key=lambda g: (max(last[g:g + n]), -g))
        else:
            cand = sorted(range(0, NG - n + 1, 2), key=lambda g: (max(last[g:g + n]), g))
        g = cand[0]
        need[t] = max(last[g:g + n])
        for c in range(need[t] + 1):
            assert c in ready or not strict, ("deadlock", t, c)
        base[t] = g * 4096
        for k in range(g, g + n):
            last[k] = rel(t)
        members[rel(t)].discard(t)
        if not members[rel(t)]:
            flag[t] = rel(t)
            ready.add(rel(t))
    assert len(ready) == 60
    return base, need, flag


def gen(kvpol="nt", wpol="", xpol="", stpol="sc1", rdpol="sc1", PD=6, prof=False, cons="c2", order="l3", NE=4, fpre=5,
        rot=True, budget=8, bud2=20, bud3=16, wcost=4, lag=2, verbose=False, safe=0x400000, lbar=7, clk='rt', lsleep=0, csleep=0,
        noload=False, nochk=False, pairw=True, pf='v', oa1='v',
        lim=256, t1=24, pstart=56, allornone=False, opol='', pfl=5, csnap=96, nofast=False, psleep=0, woff=0, plast=False, qrot=None, wmap=0, poison=None, ppol='sc1', vload=None,
        kpf=None, kph=2, kpp='', kpb=True, qpost=False, tprof=False, tlbw=None, tlbp='sc1', bc=0, pp=None, fast=False, dry=False):
    GS = MB + (16 * bc if bc else 4096)
    assert not (bc and qpost)
    probe = None
    CONS = parse(CONS_SPEC.get(cons, cons))
    assert len(CONS) == 120 and len(set(CONS)) == 120
    step = {t: i // 2 for i, t in enumerate(CONS)}
    order = parse(ORD_SPEC.get(order, order))
    assert len(order) == 127 and len(set(order)) == 127
    base, need, flag = plan_slots(order, CONS)
    K1 = NAME + "_kernel"
    H = ["; @launch grid=(256,1,1) block=(256,1,1) lds=163840"]
    H.append('.amdgcn_target "amdgcn-amd-amdhsa--gfx950"')
    H += [".text", f".globl {K1}", ".p2align 8", f".type {K1},@function", f"{K1}:"]

    P = Stream()
    P("""
    s_cmp_ge_u32 s2, 256
    s_cbranch_scc1 L_done
    s_and_b32 s3, s2, 7
    s_lshr_b32 s4, s3, 2
    s_mul_i32 s5, s4, 40
    s_add_u32 s6, s0, s5
    s_addc_u32 s7, s1, 0
    s_load_dwordx8 s[8:15], s[6:7], 0
    s_load_dwordx2 s[16:17], s[6:7], 32
    s_load_dwordx4 s[20:23], s[0:1], 88
    s_load_dwordx2 s[18:19], s[0:1], 80
    """)
    if probe or prof:
        P("s_memrealtime s[64:65]")
    if wmap == 0:
        P("""
        s_lshr_b32 s26, s2, 3
        s_and_b32 s27, s3, 3
        s_lshl_b32 s27, s27, 2
        s_and_b32 s28, s26, 3
        s_lshl_b32 s29, s28, 1
        s_add_u32 s27, s27, s28
        s_lshr_b32 s28, s26, 2
        """)
    else:
        P("""
        s_and_b32 s27, s3, 3
        s_lshl_b32 s27, s27, 2
        s_lshr_b32 s28, s2, 6
        s_lshl_b32 s29, s28, 1
        s_add_u32 s27, s27, s28
        s_bfe_u32 s28, s2, 0x30003
        """)
    P("""
    v_lshrrev_b32 v1, 6, v0
    v_and_b32 v0, 63, v0
    v_readfirstlane_b32 s30, v1
    """)
    if rot:
        P("""
        s_add_u32 s29, s29, s28
        s_lshl_b32 s70, s29, 7
        s_sub_u32 s31, s70, 896
        s_cmp_ge_u32 s70, 896
        s_cselect_b32 s70, s31, s70
        """)
    else:
        P("s_mov_b32 s70, 0")
    for i in range(1, 7):
        P(f"s_add_u32 s{70 + i}, s{69 + i}, 128\ns_cmp_eq_u32 s{70 + i}, 896\ns_cselect_b32 s{70 + i}, 0, s{70 + i}")
    P("""
    s_mov_b32 s68, 0
    s_cmp_lg_u32 s30, 3
    s_cbranch_scc1 L_cons
    """)

    gsrd = f"""
    s_add_u32 s8, s22, s69
    s_addc_u32 s9, s23, 0
    s_mov_b32 s10, {GS}
    s_mov_b32 s11, 0x20000
    """
    mbadr = f"""
    s_lshl_b32 s5, s58, 8
    s_add_u32 s5, s5, {MB}
    s_lshl_b32 s6, s58, 4
    s_add_u32 s6, s6, {MB}
    v_lshlrev_b32 v48, 2, v0
    v_lshrrev_b32 v49, 2, v0
    v_and_b32 v50, 12, v48
    v_lshl_add_u32 v49, v49, 8, v50
    """
    snapld = """
    buffer_load_dword v50, v48, s[8:11], s5 offen sc1
    buffer_load_dword v51, v49, s[8:11], s6 offen sc1
    """
    hello = """
    s_mov_b32 exec_lo, 0x88888888
    s_mov_b32 exec_hi, 0x88888888
    buffer_store_dword v52, v49, s[8:11], s6 offen sc1
    s_mov_b64 exec, -1
    """
    own = lambda m: f"s_mov_b32 exec_lo, {m * 0x11111111:#x}\ns_mov_b32 exec_hi, {m * 0x11111111:#x}"
    pollv = "v48"
    if bc:
        mbadr = f"""
        s_mov_b32 s5, {MB}
        s_mov_b32 s6, {MB}
        v_lshlrev_b32 v48, 2, v0
        v_lshrrev_b32 v49, 2, v0
        v_and_b32 v50, 12, v48
        v_mul_u32_u24 v49, {bc}, v49
        v_add_u32 v49, v49, v50
        """
        snapld = "buffer_load_dword v50, v49, s[8:11], s5 offen sc1"
        own = lambda m: f"s_lshl_b32 s31, s58, 2\ns_lshl_b64 exec, {m}, s31"
        hello = f"""
        {own(8)}
        buffer_store_dword v52, v49, s[8:11], s6 offen sc1
        s_mov_b64 exec, -1
        """
        pollv = "v49"
    C = Stream()
    vF, vPA, vT = "v1", "v2", "v31"
    PFC = ""
    if pf:
        PFC = f"""
        s_getpc_b64 s[96:97]
        L_pc:
        s_sub_u32 s96, s96, L_pc-{K1}
        s_subb_u32 s97, s97, 0
        """
    if pf:
        PFC += f"s_mov_b32 s98, L_end-{K1}\ns_mov_b32 s99, 0x20000\n"
    if "v" in pf:
        PFC += f"""
        s_lshr_b32 s100, s2, 3
        s_mul_i32 s100, s100, 3
        s_add_u32 s100, s100, s30
        s_mul_i32 s100, s100, {128 * pfl}
        v_lshlrev_b32 v154, 7, v0
        s_mov_b64 exec, {(1 << pfl) - 1}
        buffer_load_dword v155, v154, s[96:99], s100 offen
        s_mov_b64 exec, -1
        """
    cr = lambda txt: re.sub(r"\bv(4[89]|5[0-2])\b", lambda m: f"v{int(m.group(1)) + 100}", txt)
    AK, AQ, AX, AV = 8, 14, 96, 14
    C(f"""
    L_cons:
    {PFC}
    v_and_b32 v1, 15, v0
    v_lshrrev_b32 v2, 4, v0
    v_bfe_u32 v3, v0, 1, 3
    v_xor_b32 v3, v3, v2
    v_lshlrev_b32 v3, 4, v3
    v_lshl_add_u32 v{AK}, v1, 7, v3
    s_lshl_b32 s31, s30, 12
    v_add_u32 v{AX}, s31, v{AK}
    """)
    for A in (AX, AK):
        C(f"v_xor_b32 v{A + 1}, 64, v{A}")
        for w in (1, 2):
            for j in range(2):
                C(f"v_add_u32 v{A + 2 * w + j}, {65536 * w:#x}, v{A + j}")
    C(f"""
    v_bfe_u32 v4, v0, 2, 2
    v_lshlrev_b32 v4, 7, v4
    v_lshl_add_u32 v4, v2, 10, v4
    v_and_b32 v5, 1, v0
    v_lshl_add_u32 v4, v5, 3, v4
    v_and_b32 v5, 2, v0
    v_lshl_add_u32 v4, v5, 4, v4
    v_and_b32 v5, 8, v0
    v_lshl_add_u32 v4, v5, 1, v4
    v_and_b32 v5, 16, v0
    v_lshl_add_u32 v{AQ}, v5, 2, v4
    v_xor_b32 v{AQ + 1}, 16, v{AQ}
    v_xor_b32 v{AQ + 2}, 64, v{AQ}
    v_xor_b32 v{AQ + 3}, 0x50, v{AQ}
    """)
    for w in (1, 2):
        for j in range(4):
            C(f"v_add_u32 v{AQ + 4 * w + j}, {65536 * w:#x}, v{AQ + j}")
    C(f"""
    v_lshrrev_b32 v3, 2, v0
    v_and_b32 v5, 3, v0
    v_lshlrev_b32 v5, 3, v5
    v_lshl_add_u32 v3, v3, 7, v5
    v_and_b32 v5, 24, v0
    v_lshl_add_u32 v3, v5, 2, v3
    v_accvgpr_write_b32 a96, v3
    v_lshlrev_b32 v30, 4, v0
    v_mov_b32 v3, 0x3f803f80
    v_accvgpr_write_b32 a108, v3
    v_accvgpr_write_b32 a109, v3
    v_accvgpr_write_b32 a110, v3
    v_accvgpr_write_b32 a111, v3
    """)
    if poison:
        for j in range(4):
            C(f"v_accvgpr_write_b32 a{100 + j}, -1")
        pz = {poison[0] + poison[1] * k: k for k in range(28)}
    C(f"""
    s_lshl_b32 s31, s30, 2
    s_add_u32 s31, s31, {FLAGB + 256}
    v_mov_b32 {vPA}, s31
    v_mov_b32 {vT}, {FLAGB - 4}
    s_mov_b64 vcc, -1
    s_lshl_b32 s69, s4, 3
    s_add_u32 s69, s69, s28
    s_mul_i32 s69, s69, {GS}
    {f's_add_u32 s69, s69, {woff}' if woff else ''}
    s_mul_i32 s36, s27, 3
    s_add_u32 s36, s36, s30
    s_mul_i32 s29, s36, 28672
    s_add_u32 s29, s29, s69
    s_mov_b32 s56, {f32bits(math.log2(math.e) / 16.0):#x}
    s_mov_b32 s57, 0x800080
    """)
    for i in range(7):
        C(f"s_movk_i32 s{70 + i}, {2048 * i}" if qpost else f"s_lshl_b32 s{70 + i}, s{70 + i}, 4")
    C("""
    s_waitcnt lgkmcnt(0)
    s_add_u32 s52, s22, s29
    s_addc_u32 s53, s23, 0
    s_mov_b32 s54, 28672
    s_mov_b32 s55, 0x20000
    """)

    def kpref(g):
        kv, p, i0 = g // 12, (g // 3) % 4, 3 * (g % 3)
        t = f"s_add_u32 s59, s60, {i0 * 32768}\nv_lshl_add_u32 {vF}, v0, 9, s59\n"
        for hh in range(kph):
            t += f"buffer_load_dword {vF}, s[{80 + 4 * kv}:{83 + 4 * kv}], 0 offen offset:{p * 128 + hh * 128 // kph} {kpp} lds\n"
        return t
    kat = {}
    if kpf:
        for g, j in enumerate(kpf):
            kat.setdefault(j, []).append(g)
        C(f"""
        s_lshl_b32 s60, s28, 4
        s_add_u32 s60, s60, s27
        s_lshl_b32 s60, s60, 18
        s_add_u32 s80, s10, s60
        s_addc_u32 s81, s11, 0
        s_mov_b32 s82, 262144
        s_mov_b32 s83, 0x20000
        s_add_u32 s84, s12, s60
        s_addc_u32 s85, s13, 0
        s_mov_b32 s86, 262144
        s_mov_b32 s87, 0x20000
        s_lshl_b32 s60, s30, 15
        s_mov_b32 m0, {FLAGB + 2560}
        """)
        for g in kat.get(-2, []):
            C(kpref(g))
    C("s_barrier")
    for g in kat.get(-1, []):
        C(kpref(g))
    C(cr(f"""
    {gsrd}
    s_mov_b32 s58, s27
    {mbadr}
    s_lshl_b32 s7, s30, 9
    s_cbranch_scc1 L_nosnap
    {snapld}
    L_nosnap:
    s_add_u32 s7, s7, {FLAGB}
    """))
    XF = 112

    M = []

    def rng(p, a, n):
        return f"{p}[{a}:{a + n - 1}]"

    def add(tile, rd, d, b, first):
        M.append(dict(tile=tile, rd=rd, d=[rng(d[0], d[1] + 8 * h, 4) for h in range(2)],
                      b=[rng(b[0], b[1] + 4 * h, 4) for h in range(2)], first=first))

    def L(t):
        if t % 2 == 0:
            return ("v", 32 + 8 * t)
        return ("v", 160 + 8 * (t - 1)) if t < 13 else ("a", 64 + 8 * (t - 13))

    QA = {0: [L(10), L(12)], 1: [("a", 32), ("a", 48)], 2: [("a", 0), ("a", 16)], 3: [("a", 32), ("a", 48)]}
    QB = lambda p: 32 * (p & 1)
    OA = {0: ("a", 0), 1: ("v", 192) if oa1 == "v" else ("a", 32), 2: ("v", 160), 3: ("v", 224)}
    OF = {0: 224, 1: 192, 2: 160, 3: 224}
    marks = {}
    first, lastm = {}, {}
    seen = {}
    for kind, i in CONS:
        p = int(kind[1])
        nth = seen.get(kind, 0)
        seen[kind] = nth + 1
        first.setdefault(kind, len(M))
        if kind[0] == "q":
            seq = [(ks, dt, u) for ks in range(2) for dt in range(2) for u in range(2)] if nth < 6 else \
                  [(ks, dt, u) for dt in range(2) for ks in range(2) for u in range(2)]
            for n, (ks, dt, u) in enumerate(seq):
                o = ks * 4096
                rd = [("tr", AQ, 4, 2 * dt + u, o), ("tr", AQ, 4, 2 * dt + u, o + 512)]
                if p == 0:
                    xs = {0: [(0, 0), (0, 1)], 1: [(1, 0), (1, 1)]} if nth == 6 else {0: [(0, 0), (0, 1)], 1: [(1, 0)], 2: [(1, 1)]}
                    rd = [("x", AX, 2, a, (XF + 4 * (4 * i + 2 * a + h), 2048 * h)) for a, h in xs.get(n, [])] + rd
                add((kind, i), rd, (QA[p][dt][0], QA[p][dt][1] + 4 * u), ("a", XF + 4 * (4 * i + 2 * ks)), nth == 0 and ks == 0)
                marks[("q", p, dt)] = len(M) - 1
        elif kind[0] == "k":
            for kt in range(4):
                t = 2 * i + (kt >> 1)
                for sx in range(2):
                    n0 = seen.get(("S", t, kt), 0)
                    seen[("S", t, kt)] = n0 + 1
                    add((kind, i), [("b128", AK, 2, sx, kt * 2048)], (L(t)[0], L(t)[1] + 4 * (kt & 1)), ("a", QB(p) + 8 * sx), n0 == 0)
                    marks.setdefault(("quse", p, sx), len(M) - 1)
                    marks.setdefault(("s0", L(t)), len(M) - 1)
                marks[("s", t)] = len(M) - 1
        elif kind[0] == "v":
            seq = [(ks, T) for ks in range(2) for T in range(4)] if nth < 7 else \
                  [(ks, 2 * dt + w) for dt in range(2) for ks in range(2) for w in range(2)]
            for ks, T in seq:
                t = 2 * i + ks
                o = ks * 4096
                add((kind, i), [("tr", AV, 4, T, o), ("tr", AV, 4, T, o + 2048)], (OA[p][0], OA[p][1] + 16 * (T >> 1) + 4 * (T & 1)),
                    ("v", 32 + 8 * t), nth == 0 and ks == 0)
                marks.setdefault(("pv", t), len(M) - 1)
                marks[("o", p, T >> 1)] = len(M) - 1
        else:
            seq = [(U, dp) for U in range(4) for dp in range(2)] if nth else [(U, dp) for dp in range(2) for U in range(4)]
            for U, dp in seq:
                T = 2 * i + (U >> 1)
                acc = 16 * ((T + 7) % 14)
                o = dp * 4096
                n0 = seen.get(("T", T, U), 0)
                seen[("T", T, U)] = n0 + 1
                add((kind, i), [("tr", AV, 4, U, o), ("tr", AV, 4, U, o + 2048)], ("a", acc + 4 * (U & 1)),
                    ("v", OF[p] + 8 * dp), n0 == 0)
                marks.setdefault(("ouse", p, dp), len(M) - 1)
                marks.setdefault(("t0", acc), len(M) - 1)
                marks[("T", T)] = len(M) - 1
        lastm[kind] = len(M) - 1
    for p in range(4):
        assert lastm[f"q{p}"] < first[f"k{p}"] and lastm[f"v{p}"] < first[f"o{p}"] and lastm["q0"] < first["q1"]
        assert lastm[f"k{p}"] < min(first[f"v{x}"] for x in range(4))
    assert lastm["k0"] < first["q2"] and lastm["k1"] < first["q3"]
    assert lastm["o0"] < first["v3"] and lastm["v0"] < first["v2"] and (oa1 == "a" or lastm["v0"] < first["v1"])
    assert [marks[("s", t)] for t in range(16)] == sorted(marks[("s", t)] for t in range(16))
    assert csnap < marks[("s0", L(14))] - PD
    N = len(M)
    assert N == 960

    F = []

    def fill(ready, dead, text, cost=4):
        F.append((ready, dead, cost, text))

    for p in range(4):
        for dt in range(2):
            r = marks[("q", p, dt)] + lag
            k, a0 = QA[p][dt]
            for g in range(2):
                dl = marks[("quse", p, dt)]
                if k == "a":
                    e = [3, 4, 5, 6, 7, 26, 27, 28]
                    for j in range(8):
                        fill(r, dl, f"v_accvgpr_read_b32 v{e[j]}, a{a0 + 8 * g + j}")
                else:
                    assert dl <= marks[("s0", QA[p][dt])]
                    e = [a0 + 8 * g + j for j in range(8)]
                for j in (0, 2, 1, 3):
                    fill(r, dl, f"v_cvt_pk_bf16_f32 v{e[2 * j]}, v{e[2 * j]}, v{e[2 * j + 1]}")
                fill(r, dl, f"v_permlane16_swap_b32 v{e[0]}, v{e[4]}")
                fill(r, dl, f"v_permlane16_swap_b32 v{e[2]}, v{e[6]}")
                for j in (0, 2, 1, 3):
                    fill(r, dl, f"v_accvgpr_write_b32 a{QB(p) + 4 * (2 * dt + g) + j}, v{e[2 * j]}")
    pv0 = marks[("pv", 0)]
    op0 = min(first[f"o{p}"] for p in range(4))
    lastq = max(lastm[f"q{p}"] for p in range(4))
    assert lastq < marks[("s", 0)]
    F += [(lastq, pv0 - PD, 4, x) for x in [f"v_accvgpr_read_b32 v{AV}, a96"] + [f"v_xor_b32 v{AV + j}, {32 * j}, v{AV}" for j in range(1, 4)] +
          [f"v_add_u32 v{AV + 4 * w + j}, {65536 * w:#x}, v{AV + j}" for w in (1, 2) for j in range(4)]]
    sloc = lambda t: L(t)[1] if t not in (13, 15) else L(t - 12)[1]
    nsum = [0, 0]

    def summ(t, g, r):
        d = f"a[{100 + 4 * g}:{103 + 4 * g}]"
        c = d if nsum[g] else "0"
        nsum[g] += 1
        p = 32 + 8 * t + 4 * g
        return (r, op0, -1, f"{MS} {d}, a[108:111], v[{p}:{p + 3}], {c}")

    def expo(t, r, dl, final):
        d = sloc(t)
        out = []
        for g in range(2):
            s = [d + 8 * g + j for j in range(8)]
            for j in range(8):
                out.append((r, dl, 4, f"v_fma_f32 v{s[j]}, v{s[j]}, s56, -v{28 + g}"))
                if j:
                    out.append((r, dl, 8, f"v_exp_f32 v{s[j - 1]}, v{s[j - 1]}"))
                if j == 3 and g == 1 and final:
                    out.append(("sum", t, 0))
            out.append((r, dl, 8, f"v_exp_f32 v{s[7]}, v{s[7]}"))
            for j in range(4):
                out.append((r, dl, 4, f"v_cvt_pk_bf16_f32 v{32 + 8 * t + 4 * g + j}, v{s[2 * j]}, v{s[2 * j + 1]}"))
        if final:
            out.append(("late", t, 1))
        return out

    assert 4 <= NE <= 8
    for t in range(16):
        r = marks[("s", t)] + lag
        d = sloc(t)
        dl = pv0
        for j in (0, 4, 1, 5, 2, 6, 3, 7):
            x, y, mx = f"v{d + 2 * j}", f"v{d + 2 * j + 1}", f"v{26 + (j >> 2)}"
            if t in (13, 15):
                fill(r, dl, f"v_accvgpr_read_b32 {x}, a{L(t)[1] + 2 * j}")
                fill(r, dl, f"v_accvgpr_read_b32 {y}, a{L(t)[1] + 2 * j + 1}")
            if t == 0 and j % 4 == 0:
                fill(r, dl, f"v_max_f32 {mx}, {x}, {y}")
            else:
                fill(r, dl, f"v_max3_f32 {mx}, {mx}, {x}, {y}")
        if t < NE:
            for g in range(2):
                fill(r, dl, f"v_mul_f32 v{28 + g}, s56, v{26 + g}")
            for g in range(2):
                fill(r, dl, f"v_ceil_f32 v{28 + g}, v{28 + g}")
            for g in range(2):
                fill(r, dl, f"v_accvgpr_write_b32 a{XF + 2 * t + g}, v{28 + g}")
            F += expo(t, r, dl, False)
    r = marks[("s", 15)] + lag
    for txt in ["v_add_u32 v8, 14336, v30", "v_accvgpr_read_b32 v6, a112",
                "v_permlane16_swap_b32 v26, v27", "v_max_f32 v26, v26, v27", "v_mov_b32 v27, v26", "v_accvgpr_read_b32 v7, a113",
                "v_permlane32_swap_b32 v26, v27", "v_max_f32 v26, v26, v27", "v_mul_f32 v26, s56, v26", "v_ceil_f32 v28, v26",
                "v_ceil_f32 v29, v26", "v_permlane16_swap_b32 v28, v29"]:
        fill(r, pv0, txt)
    pdl = lambda t: marks[("pv", t)]
    G = []
    for t in range(NE):
        dl = pdl(t)
        for txt in ["v_accvgpr_read_b32 {k}, a{a}", "v_sub_f32 {k}, {m}, {k}", "v_cvt_u32_f32 {k}, {k}",
                    "v_min_u32 {k}, 255, {k}", "v_mul_u32_u24 {k}, s57, {k}"][(0 if t else 1):]:
            for g in range(2):
                G.append((r, dl, 4, txt.format(k=f"v{6 + g}", a=XF + 2 * t + g, m=f"v{28 + g}")))
        for g in range(2):
            for j in range(4):
                p = 32 + 8 * t + 4 * g + j
                G.append((r, dl, 4, f"v_pk_sub_u16 v{p}, v{p}, v{6 + g} clamp"))
            G.append(("late", t, g))
    for t in range(NE, 16):
        G += expo(t, r, pdl(t), True)
    pend = []
    for e in G:
        if e[0] == "sum":
            F.append(summ(e[1], e[2], r))
        elif e[0] == "late":
            pend.append([3, e])
        else:
            F.append(e)
            for x in pend:
                x[0] -= 1
            while pend and pend[0][0] <= 0:
                x = pend.pop(0)[1]
                F.append(summ(x[1], x[2], r))
    for _, x in pend:
        F.append(summ(x[1], x[2], r))
    assert nsum == [16, 16]
    rs = marks[("o", 0, 0)]
    for g in range(2):
        fill(rs, op0, f"v_accvgpr_read_b32 v{26 + g}, a{100 + 4 * g}")
    for g in range(2):
        fill(rs, op0, f"v_rcp_f32 v{26 + g}, v{26 + g}", 8)
    for p in sorted(range(4), key=lambda p: lastm[f"v{p}"]):
        for dt in range(2):
            r = marks[("o", p, dt)] + lag
            for g in range(2):
                dl = marks[("ouse", p, dt)]
                e = [OF[p] + 16 * dt + 8 * g + j for j in range(8)]
                if OA[p][0] == "a":
                    dl = min(dl, marks[("t0", OA[p][1] + 16 * dt)])
                    for j in range(8):
                        fill(r, dl, f"v_accvgpr_read_b32 v{e[j]}, a{OA[p][1] + 16 * dt + 8 * g + j}")
                for j in range(8):
                    fill(r, dl, f"v_mul_f32 v{e[j]}, v{26 + g}, v{e[j]}")
                for j in range(4):
                    fill(r, dl, f"v_cvt_pk_bf16_f32 v{OF[p] + 4 * (2 * dt + g) + j}, v{e[2 * j]}, v{e[2 * j + 1]}")
    for T in range(14):
        r = marks[("T", T)] + lag
        assert r > max(lastm[f"v{p}"] for p in range(4))
        acc = 16 * ((T + 7) % 14)
        tb = 64 + 32 * (T % 3)
        for g in range(2):
            for j in range(8):
                fill(r, N, f"v_accvgpr_read_b32 v{tb + 8 * g + j}, a{acc + 8 * g + j}")
            for j in range(4):
                fill(r, N, f"v_cvt_pk_bf16_f32 v{tb + 16 + 4 * g + j}, v{tb + 8 * g + 2 * j}, v{tb + 8 * g + 2 * j + 1}")
            fill(r, N, f"buffer_store_dwordx4 v[{tb + 16 + 4 * g}:{tb + 19 + 4 * g}], v{8 if g else 30}, s[52:55], s{70 + T // 2} offen offset:{(T % 2) * 1024} {stpol}", 4)

    rd_ptr = 0
    fp = 0
    forced = {}

    def reads(j):
        m = M[j]
        out = []
        t = m["tile"]
        ci = j // 16
        jj = j % 16
        if j == csnap:
            out.append((cr(f"""
            s_waitcnt vmcnt({kph * sum(len(v) for k, v in kat.items() if 0 <= k < csnap)})
            v_add_u32 v52, 1, v{50 if bc else 51}
            v_add_u32 v48, s7, v48
            s_cmp_lg_u32 s30, 0
            s_cbranch_scc1 L_nohello
            {hello}
            L_nohello:
            ds_write2st64_b32 v48, v52, v50 offset0:8 offset1:9
            """), 8, 8))
        if jj == 0:
            if not nochk:
                out.append(("s_getpc_b64 s[62:63]\ns_cbranch_vccnz L_cslow", 0, 8))
            if prof:
                if j:
                    out.append((f"v_mov_b32 {vF}, s66\nds_write_b32 {vPA}, {vF} offset:{512 + 16 * (ci - 1)}", 0, 0))
                out.append(("s_memrealtime s[66:67]", 0, 0))
        if tlbw and j == tlbw[0]:
            w = f"s_mov_b32 m0, {FLAGB + 2560}\n"
            if "p" in tlbw[1]:
                w += f"v_mul_u32_u24 {vF}, 448, v0\nbuffer_load_dword {vF}, s[52:55], 0 offen {tlbp} lds\n"
            if "g" in tlbw[1]:
                w += f"v_mul_u32_u24 {vF}, 21504, v0\ns_mul_i32 s31, s30, 7168\nbuffer_load_dword {vF}, s[8:11], s31 offen {tlbp} lds\n"
            if "o" in tlbw[1]:
                w += f"""s_mov_b32 s12, s18
                s_mov_b32 s13, s19
                s_mov_b32 s14, 1376256
                s_mov_b32 s15, 0x20000
                s_mul_i32 s31, s28, 172032
                v_mul_u32_u24 {vF}, 2688, v0
                buffer_load_dword {vF}, s[12:15], s31 offen {tlbp} lds
                """
            assert 1 <= jj < 16 - fpre and j > csnap
            out.append((w, 8, 16))
        for g in kat.get(j, []):
            assert 1 <= jj < 16 - fpre
            out.append((kpref(g), 4, 4 + 4 * kph))
        if poison and j in pz:
            out.append((f"s_movk_i32 s31, {pz[j] * 1024}\nbuffer_store_dwordx4 a[100:103], v30, s[52:55], s31 offen {ppol}", 0, 8))
        b = base[t]
        ring = 224 + 4 * (j % 8)
        n = 0
        for kind, A, na, ar, o in m["rd"]:
            ad = base[("x", t[1])] + o[1] if kind == "x" else b + o
            ar = A + na * (ad // 65536) + ar
            if kind == "x":
                out.append((f"ds_read_b128 a[{o[0]}:{o[0] + 3}], v{ar} offset:{ad % 65536}", 0, 4))
            else:
                if kind == "tr":
                    out.append((f"ds_read_b64_tr_b16 a[{ring + 2 * n}:{ring + 2 * n + 1}], v{ar} offset:{ad % 65536}", 0, 4))
                else:
                    out.append((f"ds_read_b128 a[{ring}:{ring + 3}], v{ar} offset:{ad % 65536}", 0, 4))
                n += 1
        if j + 16 < N and not nochk:
            if jj == 1:
                out.append((f"v_add_u32 {vT}, 4, {vT}", 4, 0))
            if jj == 16 - fpre:
                out.append((f"ds_read_b32 {vF}, {vT} offset:4", 0, 4))
            if jj == 14:
                out.append((f"v_cmp_ne_u32 vcc, 0, {vF}", 4, 0))
            if jj == 15:
                out.append((f"ds_write_b32 {vPA}, {vT}", 0, 4))
        return out

    while rd_ptr < PD:
        for x in reads(rd_ptr):
            C(x[0])
        rd_ptr += 1
    carry = 0
    for i in range(N):
        m = M[i]
        while fp < len(F) and any(f[1] <= i for f in F[fp:fp + 900]):
            assert F[fp][0] - lag < i, (F[fp], i)
            forced[i // 16] = forced.get(i // 16, 0) + abs(F[fp][2])
            C(F[fp][3]); fp += 1
        ring = 224 + 4 * (i % 8)
        rl = reads(rd_ptr) if rd_ptr < N else []
        rd_ptr += 1
        tot = sum(x[1] + x[2] for x in rl)
        wait2 = 0 if (pairw and i % 2 == 0) else wcost
        k = 0; acc_ = 0
        while k < len(rl) and (acc_ == 0 or 2 * (acc_ + rl[k][1] + rl[k][2]) <= tot + wait2):
            acc_ += rl[k][1] + rl[k][2]; k += 1
        parts = [rl[:k], rl[k:]]
        bud0 = bud2 if marks[("s", 0)] <= i < marks[("pv", 15)] else bud3 if i >= marks[("T", 0)] else budget
        for h in range(2):
            c = "0" if m["first"] else m["d"][h]
            extra = ""
            if h == 0:
                extra = f" ;+{m['b'][1]}"
                if pairw and i % 2 == 0:
                    r2 = 224 + 4 * ((i + 1) % 8)
                    extra += f" a[{r2}:{r2 + 3}] {M[i + 1]['b'][0]} {M[i + 1]['b'][1]}"
            C(f"{MS} {m['d'][h]}, a[{ring}:{ring + 3}], {m['b'][h]}, {c}{extra}")
            oth = (wait2 if h else 0)
            bud = bud0 + carry
            for x in parts[h]:
                C(x[0]); bud -= x[1]; oth += x[2]
            bud -= max(0, oth - 4)
            while fp < len(F) and F[fp][0] <= i and (bud >= F[fp][2] or (bud >= 4 and bud0 > 8)):
                bud = bud0 if F[fp][2] < 0 else bud - F[fp][2]
                C(F[fp][3]); fp += 1
            carry = min(bud, 0)
    while fp < len(F):
        forced[59] = forced.get(59, 0) + abs(F[fp][2])
        C(F[fp][3]); fp += 1
    if verbose:
        print("forced cycles per tile:", sum(forced.values()), {f"{CONS[2 * k][0]}.{CONS[2 * k][1]}": v for k, v in forced.items()})
    def stamp(S, n):
        if prof:
            S(f"s_memrealtime s[66:67]\ns_waitcnt lgkmcnt(0)\nv_mov_b32 {vF}, s66\nds_write_b32 {vPA}, {vF} offset:{512 + 16 * n}")
    if prof:
        C(f"v_mov_b32 {vF}, s66\nds_write_b32 {vPA}, {vF} offset:{512 + 16 * 59}")
    C(f"""
    v_add_u32 v232, {vPA}, v30
    {f"v_mov_b32 {vT}, {FLAGB + 236}" if pstart == 59 else ""}
    ds_read_b32 v230, v232 offset:{2048 - 256}
    {f"v_mul_u32_u24 v236, {bc}, v0" if bc else "v_lshlrev_b32 v236, 8, v0"}
    {"s_lshl_b32 s36, s30, 4" if qpost else ""}
    {"s_add_u32 s36, s36, s27" if qpost else ""}
    s_lshl_b32 s36, s36, 1
    {"" if bc else "s_lshl_b32 s51, s27, 2"}
    {"" if bc else "s_add_u32 s51, s51, s30"}
    s_lshl_b32 s51, s{30 if bc else 51}, 2
    s_add_u32 s51, s51, {MB}
    s_mov_b32 s68, 0
    """)
    if qpost:
        for c, n in enumerate((20, 15, 8)):
            if c == 1:
                C("s_mov_b64 exec, -1\ns_call_b64 s[46:47], L_setup\nv_add_u32 v243, 4, v230")
            C(f"""
            s_mov_b64 exec, {0x1111 << c:#x}
            s_waitcnt vmcnt({n}) lgkmcnt(0)
            buffer_store_dword v230, v236, s[8:11], s51 offen sc1
            """)
            if tprof:
                stamp(C, 56 + c)
    else:
        C("s_call_b64 s[46:47], L_setup")
    C(f"""
    {"s_lshl_b64 exec, 1, s27" if bc else "s_mov_b64 exec, 0xffff"}
    s_waitcnt vmcnt({3 if qpost else 0}) lgkmcnt(0)
    buffer_store_dword v{243 if qpost else 230}, v236, s[8:11], s51 offen sc1
    {f"ds_write_b32 {vPA}, {vT}" if pstart == 59 else ""}
    s_mov_b64 exec, -1
    """)
    stamp(C, 60)
    C("s_call_b64 s[46:47], L_red")
    if prof or probe:
        C("s_waitcnt vmcnt(0)")
    stamp(C, 62)
    if prof:
        C(f"""
        v_mov_b32 {vF}, s64
        ds_write_b32 {vPA}, {vF} offset:{512 + 16 * 63}
        v_add_u32 v3, {vPA}, v30
        ds_read_b32 v4, v3 offset:512
        s_lshl_b32 s29, s2, 10
        s_lshl_b32 s31, s30, 8
        s_add_u32 s29, s29, s31
        s_add_u32 s29, s29, {PROF_OFF}
        s_add_u32 s52, s22, s29
        s_addc_u32 s53, s23, 0
        s_mov_b32 s54, 256
        v_lshlrev_b32 v5, 2, v0
        buffer_store_dword v4, v5, s[52:55], 0 offen
        """)
    C("s_endpgm")

    R = Stream()
    R(f"""
    L_red:
    s_lshr_b32 s50, s36, 5
    s_lshr_b32 s31, s36, 4
    s_mul_i32 s38, s31, 14336
    s_bfe_u32 s31, s36, 0x10003
    s_lshl_b32 s31, s31, 7
    s_add_u32 s38, s38, s31
    s_bfe_u32 s31, s36, 0x20001
    s_mul_i32 s31, s31, 7
    v_add_u32 v229, s31, v240
    s_lshl_b32 s31, s31, 9
    s_add_u32 s38, s38, s31
    s_lshr_b32 s31, s36, 3
    s_mul_i32 s39, s31, 14336
    s_add_u32 s39, s39, s37
    s_mov_b64 s[44:45], 0
    """)
    if qpost:
        R("""
        v_add_u32 v229, s77, v229
        v_subrev_u32 v239, 28, v229
        v_min_u32 v229, v229, v239
        v_add_u32 v239, 4, v229
        v_subrev_u32 v244, 24, v229
        v_min_u32 v239, v239, v244
        v_lshrrev_b32 v244, 1, v229
        v_and_b32 v229, 1, v229
        v_lshl_add_u32 v229, v229, 4, v241
        v_lshrrev_b32 v239, 1, v239
        v_lshl_add_u32 v239, v239, 6, v229
        v_lshl_add_u32 v229, v244, 6, v229
        v_or_b32 v239, v239, v242
        """)
    else:
        R("""
        v_lshrrev_b32 v239, 1, v229
        v_and_b32 v229, 1, v229
        v_lshl_add_u32 v229, v229, 4, v241
        v_lshl_add_u32 v229, v239, 6, v229
        v_or_b32 v239, v229, v242
        """)
    if fast:
        R(f"""
        L_w0:
        ds_read_b64 v[232:233], v231 offset:272
        s_add_u32 s68, s68, 1
        s_cmp_gt_u32 s68, {safe}
        s_cbranch_scc1 L_done
        s_waitcnt lgkmcnt(0)
        v_readfirstlane_b32 s40, v232
        v_readfirstlane_b32 s41, v233
        s_bitcmp1_b32 s41, 31
        s_cbranch_scc1 L_done
        s_lshr_b64 s[40:41], s[40:41], s50
        s_and_b64 s[42:43], s[40:41], s[48:49]
        s_cbranch_scc1 L_w1
        s_waitcnt vmcnt(0)
        ds_write_b32 {vPA}, v237
        s_branch L_w0
        L_w1:
        s_cmp_eq_u64 s[42:43], s[48:49]
        s_cbranch_scc1 L_all
        """)
    for h in range(16):
        R(f"""
        L_h{h}:
        s_bitcmp1_b64 s[44:45], {4 * h}
        s_cbranch_scc1 L_g{h}
        s_call_b64 s[62:63], L_more
        s_branch L_h{h}
        L_g{h}:
        """)
        for q in range(2):
            acc = 160 + 16 * q
            R(f"{MF} v[{acc}:{acc + 15}], v[224:227], a[{8 * h + 4 * q}:{8 * h + 4 * q + 3}], {'0' if h == 0 else f'v[{acc}:{acc + 15}]'}")
    if fast:
        R("L_fin:")
    stamp(R, 61)
    for q in range(2):
        acc = 160 + 16 * q
        for j in range(4):
            R(f"v_cvt_pk_bf16_f32 v{acc + 8 + j}, v{acc + 2 * j}, v{acc + 2 * j + 1}")
        R(f"buffer_store_dwordx4 v[{acc + 8}:{acc + 11}], v{239 if q else 229}, s[12:15], s39 offen offset:{0 if qpost else 128 * q} {opol}")
    R(f"""
    s_setpc_b64 s[46:47]
    L_more:
    ds_read_b64 v[232:233], v231 offset:272
    s_add_u32 s68, s68, 1
    s_cmp_gt_u32 s68, {safe}
    s_cbranch_scc1 L_done
    s_waitcnt lgkmcnt(0)
    v_readfirstlane_b32 s40, v232
    v_readfirstlane_b32 s41, v233
    s_bitcmp1_b32 s41, 31
    s_cbranch_scc1 L_done
    s_lshr_b64 s[40:41], s[40:41], s50
    s_andn2_b64 s[42:43], s[40:41], s[44:45]
    s_or_b64 s[44:45], s[44:45], s[40:41]
    s_and_b64 s[42:43], s[42:43], s[48:49]
    s_cbranch_scc0 L_m16
    L_m0:
    """)

    for h in range(16):
        if h % 4 == 0:
            R(f"s_and_b32 s31, s{42 + h // 8}, {0xffff << (16 * ((h // 4) & 1)):#x}\ns_cbranch_scc0 L_m{h + 4}")
        R(f"""
        s_bitcmp1_b32 s{42 + h // 8}, {4 * (h % 8)}
        s_cbranch_scc0 L_m{h + 1}
        s_add_u32 s31, s38, {86016 * h}
        buffer_load_dwordx4 a[{8 * h}:{8 * h + 3}], v228, s[8:11], s31 offen {rdpol}
        buffer_load_dwordx4 a[{8 * h + 4}:{8 * h + 7}], v238, s[8:11], s31 offen offset:2048 {rdpol}
        L_m{h + 1}:
        """)
    if tprof and prof:
        R("s_cmp_eq_u64 s[42:43], 0\ns_cbranch_scc1 L_tp")
        stamp(R, 55)
        R("L_tp:")
    R(f"""
    s_waitcnt vmcnt(0)
    ds_write_b32 {vPA}, v237
    s_setpc_b64 s[62:63]
    L_setup:
    s_mov_b32 s12, s18
    s_mov_b32 s13, s19
    s_mov_b32 s14, 1376256
    s_mov_b32 s15, 0x20000
    s_mul_i32 s37, s28, 172032
    s_mul_i32 s31, s4, 896
    s_add_u32 s37, s37, s31
    s_mov_b32 s48, 0x11111111
    s_mov_b32 s49, 0x11111111
    {"s_lshl_b32 s77, s28, 2" if qpost else ""}
    {"s_cmp_eq_u32 s28, 7" if qpost else ""}
    {"s_cselect_b32 s77, 0, s77" if qpost else ""}
    v_mov_b32 v231, {FLAGB}
    v_mov_b32 v237, {DONE}
    v_bfe_u32 v240, v0, 3, 2
    v_and_b32 v234, 7, v0
    v_and_b32 v233, 32, v0
    v_lshlrev_b32 v228, 9, v240
    v_lshl_add_u32 v228, v234, 4, v228
    v_lshl_add_u32 v228, v233, 3, v228
    v_mul_u32_u24 v241, 1792, v234
    v_add_u32 v241, v241, v233
    v_bfrev_b32 v233, 1
    v_cmp_eq_u32 vcc, 3, v240
    v_cndmask_b32 v242, 0, v233, vcc
    v_or_b32 v238, v228, v242
    v_lshrrev_b32 v233, 5, v0
    v_xor_b32 v233, v233, v240
    v_bfe_u32 v234, v0, 1, 2
    v_lshl_add_u32 v233, v233, 2, v234
    v_and_b32 v234, 1, v0
    v_lshlrev_b32 v234, 4, v234
    v_mov_b32 v235, 0x3f80
    v_lshlrev_b32 v234, v234, v235
    """)
    for q in range(4):
        R(f"v_cmp_eq_u32 vcc, {q}, v233\nv_cndmask_b32 v{224 + q}, 0, v234, vcc")
    R("s_setpc_b64 s[46:47]")
    RF = Stream()
    if fast:
        RF("L_all:")
        for h in range(16):
            RF(f"""
            s_add_u32 s31, s38, {86016 * h}
            buffer_load_dwordx4 a[{8 * h}:{8 * h + 3}], v228, s[8:11], s31 offen {rdpol}
            buffer_load_dwordx4 a[{8 * h + 4}:{8 * h + 7}], v238, s[8:11], s31 offen offset:2048 {rdpol}
            """)
        if tprof:
            stamp(RF, 55)
        for h in range(16):
            for q in range(2):
                acc = 160 + 16 * q
                RF(f"s_waitcnt vmcnt({31 - 2 * h - q})")
                if h == 0 and q == 0:
                    RF(f"ds_write_b32 {vPA}, v237")
                RF(f"{MF} v[{acc}:{acc + 15}], v[224:227], a[{8 * h + 4 * q}:{8 * h + 4 * q + 3}], {'0' if h == 0 else f'v[{acc}:{acc + 15}]'}")
        RF("s_branch L_fin")
    CS = Stream()
    CS(f"""
    L_cslow:
    {f's_sleep {csleep}' if csleep else ''}
    ds_read_b32 {vF}, {vT} offset:4
    s_add_u32 s68, s68, 1
    s_cmp_gt_u32 s68, {safe}
    s_cbranch_scc1 L_done
    s_waitcnt lgkmcnt(0)
    v_cmp_ne_u32 vcc, 0, {vF}
    s_cbranch_vccnz L_cslow
    s_setpc_b64 s[62:63]
    L_lslow:
    {f's_sleep {lsleep}' if lsleep else ''}
    ds_read_b96 v[28:30], v44 offset:256
    s_add_u32 s68, s68, 1
    s_cmp_gt_u32 s68, {safe}
    s_cbranch_scc1 L_done
    s_waitcnt lgkmcnt(0)
    v_min3_u32 v28, v28, v29, v30
    v_readfirstlane_b32 s61, v28
    s_setpc_b64 s[62:63]
    """)

    Ld = Stream()
    Ld(f"""
    v_mov_b32 v44, {FLAGB}
    v_lshl_add_u32 v45, v0, 2, v44
    v_mov_b32 v46, {0 if noload else 1}
    v_mov_b32 v47, 0
    ds_write_b32 v45, v46
    ds_write_b32 v45, v47 offset:256
    v_lshrrev_b32 v6, 3, v0
    v_mul_u32_u24 v5, 896, v6
    v_and_b32 v2, 7, v0
    v_lshrrev_b32 v1, 4, v0
    v_xor_b32 v2, v2, v1
    v_lshlrev_b32 v2, 4, v2
    v_add_u32 v32, v2, v5
    v_xor_b32 v33, 64, v32
    v_add_u32 v33, 6144, v33
    v_add_u32 v34, 12288, v32
    v_add_u32 v35, 12288, v33
    v_and_b32 v4, 7, v0
    v_and_b32 v3, 1, v1
    v_xor_b32 v3, v3, v4
    v_lshlrev_b32 v3, 4, v3
    v_lshl_add_u32 v8, v6, 13, v3
    v_xor_b32 v9, 64, v8
    v_add_u32 v9, 64512, v9
    v_add_u32 v10, 129024, v8
    v_add_u32 v11, 129024, v9
    v_lshlrev_b32 v3, 1, v1
    v_xor_b32 v3, v3, v4
    v_lshlrev_b32 v3, 4, v3
    v_lshl_add_u32 v12, v6, 9, v2
    v_xor_b32 v13, 64, v12
    v_add_u32 v13, 3072, v13
    v_add_u32 v14, 6144, v12
    v_add_u32 v15, 6144, v13
    """)
    for i in range(7):
        Ld(f"s_lshl_b32 s{77 + i}, s{70 + i}, 12")
    if qrot:
        Ld({"h": "s_mov_b32 s84, s27", "b": "s_mov_b32 s84, s28", "hb": "s_add_u32 s84, s27, s28", "H": "s_lshr_b32 s84, s27, 2",
            "h2": "s_lshl_b32 s84, s27, 1", "b2": "s_lshl_b32 s84, s28, 1"}[qrot])
        Ld("s_lshl_b32 s84, s84, 7\ns_and_b32 s84, s84, 0x180")
        for p in range(1, 4):
            Ld(f"s_xor_b32 s{84 + p}, s84, {128 * p}")
        for p in range(4):
            Ld(f"s_mul_i32 s{88 + p}, s{84 + p}, 448")
    Ld("""
    s_mov_b32 s61, 0
    s_mul_i32 s29, s28, 86016
    s_lshl_b32 s31, s27, 9
    s_lshl_b32 s60, s28, 4
    s_add_u32 s60, s60, s27
    s_lshl_b32 s60, s60, 18
    s_mov_b32 s34, 86016
    s_mov_b32 s35, 0x20000
    s_sub_u32 s46, 3670016, s31
    s_mov_b32 s47, 0x20000
    s_mov_b32 s38, 262144
    s_mov_b32 s39, 0x20000
    s_mov_b32 s26, 4
    s_mul_i32 s59, s27, 229376
    s_mov_b32 s27, 0x20000
    s_waitcnt lgkmcnt(0)
    s_add_u32 s32, s8, s29
    s_addc_u32 s33, s9, 0
    s_add_u32 s44, s14, s31
    s_addc_u32 s45, s15, 0
    s_add_u32 s36, s10, s60
    s_addc_u32 s37, s11, 0
    s_mov_b32 s24, s20
    s_mov_b32 s25, s21
    """)
    setup2 = """
    v_lshl_add_u32 v20, v6, 9, v3
    v_add_u32 v21, 3072, v20
    v_add_u32 v22, 6144, v20
    v_add_u32 v23, 9216, v20
    v_add_u32 v24, v5, v3
    v_add_u32 v25, 6144, v24
    v_add_u32 v26, 12288, v24
    v_add_u32 v27, 18432, v24
    s_add_u32 s40, s12, s60
    s_addc_u32 s41, s13, 0
    s_mov_b32 s42, 262144
    s_mov_b32 s43, 0x20000
    s_add_u32 s48, s16, s59
    s_addc_u32 s49, s17, 0
    s_mov_b32 s50, 229376
    s_mov_b32 s51, 0x20000
    """
    pieces = [(t, q) for t in order for q in range(3 if t[0] == "x" else 2)]
    setup_at = min([11] + [n for n, (t, q) in enumerate(pieces) if t[0][0] in "vo"])
    st = dict(known=-1, vm=0, ds=0)
    stamped = set()
    vend, dend = {}, {}
    if vload:
        Ld("v_lshlrev_b32 v56, 4, v0\nv_add_u32 v57, 0x10000, v56\nv_add_u32 v58, 0x20000, v56")

    def space(n):
        t, q = pieces[n]
        if q == 0:
            if need[t] > st["known"] and not noload:
                assert n > lbar
                Ld(f"s_getpc_b64 s[62:63]\ns_cmp_lt_u32 s61, {FLAGB + 4 * need[t]}\ns_cbranch_scc1 L_lslow")
                st["known"] = need[t]
            if verbose:
                print(f"{t[0]}.{t[1]}@{base[t] // 4096}<{need[t]}", end=" ")
            if prof and t[0] != "x" and step[t] not in stamped and not plast:
                stamped.add(step[t])
                Ld(f"s_memrealtime s[66:67]\ns_waitcnt lgkmcnt(0)\nv_writelane_b32 v43, s66, {step[t]}")

    def issue(n):
        t, q = pieces[n]
        kind, i = t
        if n == lbar:
            Ld("s_barrier")
        if n == setup_at:
            Ld(setup2)
        if qpost and n == 1 + max(k for k, (u, _) in enumerate(pieces) if u[0] == "x"):
            Ld("s_lshl_b32 s70, s28, 7\ns_cmp_eq_u32 s28, 7\ns_cselect_b32 s70, 0, s70")
            for k in range(1, 7):
                Ld(f"s_add_u32 s{70 + k}, s{69 + k}, 128\ns_cmp_eq_u32 s{70 + k}, 896\ns_cselect_b32 s{70 + k}, 0, s{70 + k}")
        if n == len(pieces) - 4:
            Ld(f"""
            s_lshl_b32 s3, s4, 3
            s_add_u32 s3, s3, s28
            s_mul_i32 s69, s3, {GS}
            {f's_add_u32 s69, s69, {woff}' if woff else ''}
            {gsrd}
            s_bfe_u32 s58, s60, 0x40012
            {mbadr}
            buffer_load_dword v53, {pollv}, s[8:11], s5 offen sc1
            """)
            st["vm"] += 1
        if not vload:
            space(n)
        p = 0 if kind == "x" else int(kind[1])
        pr = p
        if qrot:
            p = 0
        if kind == "x":
            so, srd, vb, pol = (70 + i, q * 28672), 32, 32, xpol
        elif kind[0] == "q":
            so, srd, vb, pol = (77 + i, p * 128 + q * 262144), 44, 8, wpol
        elif kind[0] == "k":
            so, srd, vb, pol = p * 128 + i * 32768 + q * 16384, 36, 12, kvpol
        elif kind[0] == "v":
            so, srd, vb, pol = p * 128 + i * 32768 + q * 16384, 40, 20, kvpol
        else:
            so, srd, vb, pol = (70 + i, (p * 64 + q * 32) * 896), 48, 24, wpol
        assert n >= setup_at or srd in (32, 44, 36)
        if not vload:
            Ld(f"s_mov_b32 m0, {base[t] + q * 4096}")
        if isinstance(so, tuple):
            Ld(f"s_add_u32 s31, s{so[0]}, {so[1]}")
        elif qrot:
            Ld(f"s_add_u32 s31, s{84 + pr}, {so}")
        else:
            Ld(f"s_mov_b32 s31, {so}")
        if qrot and kind[0] in "qo":
            Ld(f"s_add_u32 s31, s31, s{(84 if kind[0] == 'q' else 88) + pr}")
        if vload:
            if n >= 16 and st["ds"] - dend[n - 16] < 15:
                Ld(f"s_waitcnt lgkmcnt({st['ds'] - dend[n - 16]})")
            for k in range(4):
                r = 16 * (n % 16) + 4 * k
                Ld(f"buffer_load_dwordx4 a[{r}:{r + 3}], v{vb + k}, s[{srd}:{srd + 3}], s31 offen offset:{k * 1024} {pol}")
            st["vm"] += 4
            vend[n] = st["vm"]
            return
        for k in range(0 if noload else 4):
            Ld(f"buffer_load_dwordx4 v{vb + k}, s[{srd}:{srd + 3}], s31 offen offset:{k * 1024} {pol} lds")
        if q == (2 if kind == "x" else 1) and t in flag and prof and plast:
            Ld(f"s_memrealtime s[66:67]\ns_waitcnt lgkmcnt(0)\nv_writelane_b32 v43, s66, {flag[t]}")
        if q == (2 if kind == "x" else 1) and t in flag:
            Ld(f"s_mov_b32 m0, {FLAGB + 4 * flag[t]}\ns_mov_b64 exec, 1\nbuffer_load_dword off, s[24:27], 0 lds\ns_mov_b64 exec, -1")

    def write(n):
        t, q = pieces[n]
        assert st["vm"] - vend[n] <= 63
        Ld(f"s_waitcnt vmcnt({st['vm'] - vend[n]})")
        space(n)
        ad = base[t] + q * 4096
        for k in range(4):
            r = 16 * (n % 16) + 4 * k
            Ld(f"ds_write_b128 v{56 + ad // 65536}, a[{r}:{r + 3}] offset:{ad % 65536 + k * 1024}")
        st["ds"] += 4
        dend[n] = st["ds"]
        if q == (2 if t[0] == "x" else 1) and t in flag:
            Ld(f"s_mov_b64 exec, 1\nds_write_b32 v44, v47 offset:{4 * flag[t]}\ns_mov_b64 exec, -1")
            st["ds"] += 1

    if vload:
        dep = [(0, vload)] if isinstance(vload, int) else list(vload)
        depth = lambda n: [d for f, d in dep if f <= n][-1]
        wp = 0
        for n in range(len(pieces)):
            while n - wp >= depth(wp):
                write(wp); wp += 1
            assert n - wp < 16
            issue(n)
        while wp < len(pieces):
            write(wp); wp += 1
    else:
        for n in range(len(pieces)):
            issue(n)
    def lstamp(n):
        if prof:
            Ld(f"s_memrealtime s[66:67]\ns_waitcnt lgkmcnt(0)\nv_writelane_b32 v43, s66, {n}")
    Ld(f"""
    s_lshl_b32 s3, s3, 3
    s_mov_b64 s[16:17], 0
    s_mov_b32 s59, 0
    v_mov_b32 {vPA}, {FLAGB + 268}
    """)
    Ld("ds_read2st64_b32 v[50:51], v45 offset0:9 offset1:8\nv_add_u32 v51, -1, v51")
    Ld(f"""
    s_waitcnt vmcnt(0)
    s_mov_b32 s26, 256
    v_cmp_ne_u32 vcc, v53, v50
    s_and_b32 s7, vcc_lo, vcc_hi
    s_or_b32 s7, s7, 0x77777777
    """)
    if nofast:
        Ld("s_mov_b32 s7, 0")
    lstamp(60)
    if dry:
        Ld(f"""
        s_call_b64 s[46:47], L_setup
        s_mov_b32 s10, 0
        s_mov_b32 s14, 0
        s_mov_b32 s38, 0
        s_mov_b32 s39, 0
        v_mov_b32 v229, 0
        v_mov_b32 v239, 0
        """)
        if dry in (True, "f", "b"):
            Ld("s_call_b64 s[46:47], L_all")
        if dry in ("o", "b"):
            Ld("""
            s_mov_b64 s[42:43], -1
            s_mov_b64 s[44:45], -1
            s_call_b64 s[62:63], L_m0
            s_call_b64 s[46:47], L_h0
            """)
        Ld(f"s_mov_b32 s10, {GS}")
    if pstart is not None:
        Ld(f"s_getpc_b64 s[62:63]\ns_cmp_lt_u32 s61, {FLAGB + 4 * pstart}\ns_cbranch_scc1 L_lslow")
    fixchk = """
    v_sub_u32 v54, v53, v50
    v_and_b32 v54, 12, v54
    v_cmp_ne_u32 vcc, 0, v54
    s_or_b64 vcc, vcc, s[16:17]
    s_and_b32 s31, vcc_lo, vcc_hi
    s_or_b32 s31, s31, 0x88888888
    s_cmp_eq_u32 s31, -1
    s_cbranch_scc0 L_nxt
    """
    pub = """
    s_and_b32 s31, vcc_hi, 0x7fffffff
    v_mov_b32 v54, vcc_lo
    v_mov_b32 v55, s31
    ds_write_b64 v44, v[54:55] offset:272
    """
    if pp:
        D, NP = pp
        for k in range(NP + D - 1):
            if k < NP:
                if k:
                    Ld("ds_read_b96 v[28:30], v44 offset:256\ns_waitcnt lgkmcnt(0)\nv_min3_u32 v28, v28, v29, v30\nv_readfirstlane_b32 s61, v28")
                Ld(f"buffer_load_dword v{56 + k}, {pollv}, s[8:11], s5 offen sc1")
            if k >= D - 1:
                j = k - D + 1
                Ld(f"""
                s_waitcnt vmcnt({min(k, NP - 1) - j})
                v_cmp_ne_u32 vcc, v{56 + j}, v50
                s_and_b32 s31, vcc_lo, vcc_hi
                s_or_b32 s31, s31, 0x88888888
                s_cmp_eq_u32 s31, -1
                s_cbranch_scc1 L_seen
                """)
                if tprof:
                    lstamp(59)
        Ld(f"L_seen:\n{pub}")
        if tprof:
            lstamp(58)
    Ld(f"""
    s_mov_b32 s68, 0
    L_poll:
    ds_read_b96 v[28:30], v44 offset:256
    s_add_u32 s68, s68, 1
    s_waitcnt lgkmcnt(0)
    buffer_load_dword v53, {pollv}, s[8:11], s5 offen sc1
    v_min3_u32 v28, v28, v29, v30
    s_cmp_gt_u32 s68, {t1}
    v_readfirstlane_b32 s61, v28
    s_cbranch_scc1 L_pslow
    L_p2:
    s_waitcnt vmcnt(0)
    v_cmp_ne_u32 vcc, v53, v50
    s_or_b64 vcc, vcc, s[16:17]
    {'' if allornone else pub}
    s_and_b32 s31, vcc_lo, vcc_hi
    s_or_b32 s31, s31, 0x88888888
    s_cmp_eq_u32 s31, -1
    s_cbranch_scc0 {"L_nxa" if tprof and prof else "L_nxt"}
    {pub if allornone else ''}
    s_cmp_eq_u32 s61, {DONE}
    s_cbranch_scc0 L_nxt
    s_cmp_eq_u32 s7, -1
    s_cbranch_scc0 L_careful
    v_sub_u32 v54, v53, v50
    v_and_b32 v54, 2, v54
    v_cmp_ne_u32 vcc, 0, v54
    s_or_b64 vcc, vcc, s[16:17]
    s_and_b32 s56, vcc_lo, 0x88888888
    s_and_b32 s57, vcc_hi, 0x88888888
    s_lshl_b32 s31, s58, 2
    s_add_u32 s31, s31, 3
    s_bitset0_b64 s[56:57], s31
    s_or_b32 s31, s56, s57
    s_cbranch_scc1 L_fix
    L_lend:
    """)
    lstamp(61)
    if prof:
        Ld(f"""
        v_writelane_b32 v43, s68, 62
        s_lshl_b32 s29, s2, 10
        s_add_u32 s29, s29, {PROF_OFF + 768}
        s_add_u32 s52, s22, s29
        s_addc_u32 s53, s23, 0
        s_mov_b32 s54, 256
        s_mov_b32 s55, 0x20000
        v_lshlrev_b32 v3, 2, v0
        buffer_store_dword v43, v3, s[52:55], 0 offen
        """)
    Ld(f"""
    s_waitcnt vmcnt(0) lgkmcnt(0)
    L_done:
    s_endpgm
    {"L_nxa:" + chr(10) + "s_memrealtime s[66:67]" + chr(10) + "s_waitcnt lgkmcnt(0)" + chr(10) + "v_writelane_b32 v43, s66, 59" if tprof and prof else ""}
    L_nxt:
    {f's_sleep {psleep}' if psleep else ''}
    s_cmp_lt_u32 s68, {lim}
    s_cbranch_scc1 L_poll
    s_cmp_lg_u32 s59, 0
    s_cbranch_scc1 L_abort
    s_getpc_b64 s[62:63]
    s_cmp_lt_u32 s61, {DONE}
    s_cbranch_scc1 L_lslow
    s_mov_b32 s59, 1
    s_mov_b32 s7, 0
    s_max_u32 s68, s68, {t1}
    s_lshl_b32 s31, s58, 2
    s_lshl_b64 s[56:57], 15, s31
    v_mov_b32 v54, s56
    v_mov_b32 v55, s57
    v_add_u32 v52, 3, v51
    s_mov_b64 exec, 1
    buffer_atomic_or_x2 v[54:55], off, s[24:27], s3 offset:128 sc1
    {own(8)}
    buffer_store_dword v52, v49, s[8:11], s6 offen sc1
    s_mov_b64 exec, -1
    s_waitcnt vmcnt(0)
    s_branch L_poll
    L_pslow:
    buffer_load_dwordx2 v[54:55], off, s[24:27], s3 offset:128 sc1
    s_waitcnt vmcnt(0)
    v_readfirstlane_b32 s16, v54
    v_readfirstlane_b32 s17, v55
    s_branch L_p2
    L_careful:
    v_add_u32 v52, {13 if qpost else 2}, v51
    {own(7)}
    buffer_store_dword v52, v49, s[8:11], s6 offen sc1
    s_mov_b64 exec, -1
    s_mov_b32 s7, -1
    s_waitcnt vmcnt(0)
    s_branch L_poll
    L_abort:
    v_bfrev_b32 v55, 1
    ds_write_b64 v44, v[54:55] offset:272
    s_branch L_lend
    L_fix:
    {fixchk if qpost else ""}
    s_call_b64 s[46:47], L_setup
    s_mov_b32 s68, 0
    L_fix0:
    s_ff1_i32_b64 s31, s[56:57]
    s_bitset0_b64 s[56:57], s31
    s_lshr_b32 s31, s31, 2
    s_mul_i32 s36, s31, {2 if qpost else 6}
    s_add_u32 s60, s36, {96 if qpost else 6}
    L_fix1:
    s_call_b64 s[46:47], L_red
    s_waitcnt vmcnt(0)
    s_add_u32 s36, s36, {32 if qpost else 2}
    s_cmp_lt_u32 s36, s60
    s_cbranch_scc1 L_fix1
    s_or_b32 s31, s56, s57
    s_cbranch_scc1 L_fix0
    s_branch L_lend
    """)

    import gen_kernel as g1
    tail = g1.tail_kernels(rdpol, probe, clk, False)
    body = P.finish() + Ld.finish() + CS.finish() + C.finish() + R.finish() + RF.finish()
    if clk == "cyc":
        body = [l.replace("s_memrealtime", "s_memtime") for l in body]
    if verbose:
        print("\nconsumer nops", C.nops, "instructions", len(C.ins))
    T = H + ["    " + l if not l.endswith(":") else l for l in body]
    T += tail[0]
    T += ["L_end:"]
    ks = [(K1, 512, 256)] + tail[1]
    T += ['.section .rodata,"a"']
    for k, nv, ao in ks:
        T += [".p2align 6", f".amdhsa_kernel {k}", f"  .amdhsa_next_free_vgpr {nv}", "  .amdhsa_next_free_sgpr 102",
              f"  .amdhsa_accum_offset {ao}", "  .amdhsa_group_segment_fixed_size 0", "  .amdhsa_kernarg_size 104",
              "  .amdhsa_user_sgpr_count 2", "  .amdhsa_user_sgpr_kernarg_segment_ptr 1",
              "  .amdhsa_system_sgpr_workgroup_id_x 1", ".end_amdhsa_kernel"]
    return "\n".join(T) + "\n"


if __name__ == "__main__":
    out = sys.argv[1] if len(sys.argv) > 1 else f"cdna_kernels/{NAME}.s"
    kw = {}
    for a in sys.argv[2:]:
        k, v = a.split("=", 1); v = v.replace("+", " ")
        kw[k] = eval(v) if v and (v[0].isdigit() or v[0] in "([" or v in ("True", "False")) else v
    open(out, "w").write(gen(verbose=True, **kw))
```

```python
import sys, math, struct, re
sys.path.insert(0, "dev")
from asmlib import Stream

NAME = "concat_heads__mha_block_cached__gqa_block_cached__near_ridge"
MF = "v_mfma_f32_32x32x16_bf16"
MS = "v_mfma_f32_16x16x32_bf16"
NG = 39
FLAGB = NG * 4096
PROF_OFF = 0x4000000
MB = 1376256
GS = MB + 4096
DONE = FLAGB + 240


def f32bits(x):
    return struct.unpack("<I", struct.pack("<f", x))[0]


def tiles(s):
    if "/" in s:
        n, m = 1, 1
        if ":" in s:
            s, g = s.split(":"); n, m = map(int, g.split("."))
        a, b = [sum([tiles(y) for y in x.split("+")], []) for x in s.split("/")]
        out = []
        while a or b:
            out += a[:n] + b[:m]; a = a[n:]; b = b[m:]
        return out
    m = re.fullmatch(r"(x|[qkvo][0-3])(?:_?(\d+)(?:-(\d+))?)?", s)
    assert m, s
    k = m.group(1)
    if m.group(2) is None:
        a, b = 0, (7 if k[0] in "kv" else 6)
    else:
        a = int(m.group(2)); b = int(m.group(3) or a)
    return [(k, i) for i in range(a, b + 1)]


def parse(spec):
    return sum([tiles(s) for s in spec.split()], [])


CONS_SPEC = {
    "c1": "q0 q1/k0 q2/k1 q3/k2 k3 v0 v1/o0 v2/o1 v3/o2 o3",
    "c2": "q0 q1/k0 q2/k1 q3/k2 k3 v0 v1_0 v1_1-7/o0 v2_0 v2_1-7/o1 v3_0 v3_1-7/o2 o3",
}
ORD_SPEC = {
    "l0": "x/q0 q1/k0 q2/k1 q3/k2 k3 v0 v1/o0 v2/o1 v3/o2 o3",
    "l1": "x/q0 q1+q2+q3/k0+k1+k2:4.4 k3 v0 v1+v2+v3/o0+o1+o2:4.4 o3",
    "l3": "x/q0 q1+q2+q3/k0+k1+k2:2.2 k3 v0 v1+v2+v3/o0+o1+o2:2.2 o3",
    "l2": "x0-3/q0_0-3 k0_0-3 x4-6/q0_4-6 q1+q2+q3/k0_4-7+k1+k2:4.4 k3 v0 v1+v2+v3/o0+o1+o2:4.4 o3",
}


def plan_slots(order, CONS, strict=True):
    step = {t: i // 2 for i, t in enumerate(CONS)}
    rel = lambda t: step[("q0", t[1])] if t[0] == "x" else step[t]
    members = {}
    for t in order:
        members.setdefault(rel(t), set()).add(t)
    last = [-1] * NG
    base, need, flag = {}, {}, {}
    ready = set()
    for t in order:
        n = 3 if t[0] == "x" else 2
        if t[0] == "x":
            cand = sorted(range(NG - n + 1), key=lambda g: (max(last[g:g + n]), -g))
        else:
            cand = sorted(range(0, NG - n + 1, 2), key=lambda g: (max(last[g:g + n]), g))
        g = cand[0]
        need[t] = max(last[g:g + n])
        for c in range(need[t] + 1):
            assert c in ready or not strict, ("deadlock", t, c)
        base[t] = g * 4096
        for k in range(g, g + n):
            last[k] = rel(t)
        members[rel(t)].discard(t)
        if not members[rel(t)]:
            flag[t] = rel(t)
            ready.add(rel(t))
    assert len(ready) == 60
    return base, need, flag


def gen(kvpol="nt", wpol="", xpol="", stpol="sc1", rdpol="sc1", PD=6, prof=False, cons="c2", order="l3", NE=4, fpre=5,
        rot=True, budget=8, bud2=20, bud3=16, wcost=4, lag=2, verbose=False, safe=0x400000, lbar=7, clk='rt', lsleep=0, csleep=0,
        noload=False, nochk=False, pairw=True, pf='v', oa1='v',
        lim=256, t1=24, pstart=56, allornone=False, opol='', pfl=5, csnap=96, nofast=False, psleep=0, woff=0, plast=False, qrot=None, wmap=0, poison=None, ppol='sc1', vload=None,
        kpf=None, kph=2, kpp='', kpb=True, qpost=False, tprof=False, tlbw=None, tlbp='sc1', bc=0, pp=None, fast=False, dry=False, pwarm=False):
    GS = MB + (16 * bc if bc else 4096)
    assert not (bc and qpost)
    probe = None
    CONS = parse(CONS_SPEC.get(cons, cons))
    assert len(CONS) == 120 and len(set(CONS)) == 120
    step = {t: i // 2 for i, t in enumerate(CONS)}
    order = parse(ORD_SPEC.get(order, order))
    assert len(order) == 127 and len(set(order)) == 127
    base, need, flag = plan_slots(order, CONS)
    K1 = NAME + "_kernel"
    H = ["; @launch grid=(256,1,1) block=(256,1,1) lds=163840"]
    H.append('.amdgcn_target "amdgcn-amd-amdhsa--gfx950"')
    H += [".text", f".globl {K1}", ".p2align 8", f".type {K1},@function", f"{K1}:"]

    P = Stream()
    P("""
    s_cmp_ge_u32 s2, 256
    s_cbranch_scc1 L_done
    s_and_b32 s3, s2, 7
    s_lshr_b32 s4, s3, 2
    s_mul_i32 s5, s4, 40
    s_add_u32 s6, s0, s5
    s_addc_u32 s7, s1, 0
    s_load_dwordx8 s[8:15], s[6:7], 0
    s_load_dwordx2 s[16:17], s[6:7], 32
    s_load_dwordx4 s[20:23], s[0:1], 88
    s_load_dwordx2 s[18:19], s[0:1], 80
    """)
    if probe or prof:
        P("s_memrealtime s[64:65]")
    if wmap == 0:
        P("""
        s_lshr_b32 s26, s2, 3
        s_and_b32 s27, s3, 3
        s_lshl_b32 s27, s27, 2
        s_and_b32 s28, s26, 3
        s_lshl_b32 s29, s28, 1
        s_add_u32 s27, s27, s28
        s_lshr_b32 s28, s26, 2
        """)
    else:
        P("""
        s_and_b32 s27, s3, 3
        s_lshl_b32 s27, s27, 2
        s_lshr_b32 s28, s2, 6
        s_lshl_b32 s29, s28, 1
        s_add_u32 s27, s27, s28
        s_bfe_u32 s28, s2, 0x30003
        """)
    P("""
    v_lshrrev_b32 v1, 6, v0
    v_and_b32 v0, 63, v0
    v_readfirstlane_b32 s30, v1
    """)
    if rot:
        P("""
        s_add_u32 s29, s29, s28
        s_lshl_b32 s70, s29, 7
        s_sub_u32 s31, s70, 896
        s_cmp_ge_u32 s70, 896
        s_cselect_b32 s70, s31, s70
        """)
    else:
        P("s_mov_b32 s70, 0")
    for i in range(1, 7):
        P(f"s_add_u32 s{70 + i}, s{69 + i}, 128\ns_cmp_eq_u32 s{70 + i}, 896\ns_cselect_b32 s{70 + i}, 0, s{70 + i}")
    P("""
    s_mov_b32 s68, 0
    s_cmp_lg_u32 s30, 3
    s_cbranch_scc1 L_cons
    """)

    gsrd = f"""
    s_add_u32 s8, s22, s69
    s_addc_u32 s9, s23, 0
    s_mov_b32 s10, {GS}
    s_mov_b32 s11, 0x20000
    """
    mbadr = f"""
    s_lshl_b32 s5, s58, 8
    s_add_u32 s5, s5, {MB}
    s_lshl_b32 s6, s58, 4
    s_add_u32 s6, s6, {MB}
    v_lshlrev_b32 v48, 2, v0
    v_lshrrev_b32 v49, 2, v0
    v_and_b32 v50, 12, v48
    v_lshl_add_u32 v49, v49, 8, v50
    """
    snapld = """
    buffer_load_dword v50, v48, s[8:11], s5 offen sc1
    buffer_load_dword v51, v49, s[8:11], s6 offen sc1
    """
    hello = """
    s_mov_b32 exec_lo, 0x88888888
    s_mov_b32 exec_hi, 0x88888888
    buffer_store_dword v52, v49, s[8:11], s6 offen sc1
    s_mov_b64 exec, -1
    """
    own = lambda m: f"s_mov_b32 exec_lo, {m * 0x11111111:#x}\ns_mov_b32 exec_hi, {m * 0x11111111:#x}"
    pollv = "v48"
    if bc:
        mbadr = f"""
        s_mov_b32 s5, {MB}
        s_mov_b32 s6, {MB}
        v_lshlrev_b32 v48, 2, v0
        v_lshrrev_b32 v49, 2, v0
        v_and_b32 v50, 12, v48
        v_mul_u32_u24 v49, {bc}, v49
        v_add_u32 v49, v49, v50
        """
        snapld = "buffer_load_dword v50, v49, s[8:11], s5 offen sc1"
        own = lambda m: f"s_lshl_b32 s31, s58, 2\ns_lshl_b64 exec, {m}, s31"
        hello = f"""
        {own(8)}
        buffer_store_dword v52, v49, s[8:11], s6 offen sc1
        s_mov_b64 exec, -1
        """
        pollv = "v49"
    C = Stream()
    vF, vPA, vT = "v1", "v2", "v31"
    PFC = ""
    if pf:
        PFC = f"""
        s_getpc_b64 s[96:97]
        L_pc:
        s_sub_u32 s96, s96, L_pc-{K1}
        s_subb_u32 s97, s97, 0
        """
    if pf:
        PFC += f"s_mov_b32 s98, L_end-{K1}\ns_mov_b32 s99, 0x20000\n"
    if "v" in pf:
        PFC += f"""
        s_lshr_b32 s100, s2, 3
        s_mul_i32 s100, s100, 3
        s_add_u32 s100, s100, s30
        s_mul_i32 s100, s100, {128 * pfl}
        v_lshlrev_b32 v154, 7, v0
        s_mov_b64 exec, {(1 << pfl) - 1}
        buffer_load_dword v155, v154, s[96:99], s100 offen
        s_mov_b64 exec, -1
        """
    cr = lambda txt: re.sub(r"\bv(4[89]|5[0-2])\b", lambda m: f"v{int(m.group(1)) + 100}", txt)
    AK, AQ, AX, AV = 8, 14, 96, 14
    C(f"""
    L_cons:
    {PFC}
    v_and_b32 v1, 15, v0
    v_lshrrev_b32 v2, 4, v0
    v_bfe_u32 v3, v0, 1, 3
    v_xor_b32 v3, v3, v2
    v_lshlrev_b32 v3, 4, v3
    v_lshl_add_u32 v{AK}, v1, 7, v3
    s_lshl_b32 s31, s30, 12
    v_add_u32 v{AX}, s31, v{AK}
    """)
    for A in (AX, AK):
        C(f"v_xor_b32 v{A + 1}, 64, v{A}")
        for w in (1, 2):
            for j in range(2):
                C(f"v_add_u32 v{A + 2 * w + j}, {65536 * w:#x}, v{A + j}")
    C(f"""
    v_bfe_u32 v4, v0, 2, 2
    v_lshlrev_b32 v4, 7, v4
    v_lshl_add_u32 v4, v2, 10, v4
    v_and_b32 v5, 1, v0
    v_lshl_add_u32 v4, v5, 3, v4
    v_and_b32 v5, 2, v0
    v_lshl_add_u32 v4, v5, 4, v4
    v_and_b32 v5, 8, v0
    v_lshl_add_u32 v4, v5, 1, v4
    v_and_b32 v5, 16, v0
    v_lshl_add_u32 v{AQ}, v5, 2, v4
    v_xor_b32 v{AQ + 1}, 16, v{AQ}
    v_xor_b32 v{AQ + 2}, 64, v{AQ}
    v_xor_b32 v{AQ + 3}, 0x50, v{AQ}
    """)
    for w in (1, 2):
        for j in range(4):
            C(f"v_add_u32 v{AQ + 4 * w + j}, {65536 * w:#x}, v{AQ + j}")
    C(f"""
    v_lshrrev_b32 v3, 2, v0
    v_and_b32 v5, 3, v0
    v_lshlrev_b32 v5, 3, v5
    v_lshl_add_u32 v3, v3, 7, v5
    v_and_b32 v5, 24, v0
    v_lshl_add_u32 v3, v5, 2, v3
    v_accvgpr_write_b32 a96, v3
    v_lshlrev_b32 v30, 4, v0
    v_mov_b32 v3, 0x3f803f80
    v_accvgpr_write_b32 a108, v3
    v_accvgpr_write_b32 a109, v3
    v_accvgpr_write_b32 a110, v3
    v_accvgpr_write_b32 a111, v3
    """)
    if poison:
        for j in range(4):
            C(f"v_accvgpr_write_b32 a{100 + j}, -1")
        pz = {poison[0] + poison[1] * k: k for k in range(28)}
    C(f"""
    s_lshl_b32 s31, s30, 2
    s_add_u32 s31, s31, {FLAGB + 256}
    v_mov_b32 {vPA}, s31
    v_mov_b32 {vT}, {FLAGB - 4}
    s_mov_b64 vcc, -1
    s_lshl_b32 s69, s4, 3
    s_add_u32 s69, s69, s28
    s_mul_i32 s69, s69, {GS}
    {f's_add_u32 s69, s69, {woff}' if woff else ''}
    s_mul_i32 s36, s27, 3
    s_add_u32 s36, s36, s30
    s_mul_i32 s29, s36, 28672
    s_add_u32 s29, s29, s69
    s_mov_b32 s56, {f32bits(math.log2(math.e) / 16.0):#x}
    s_mov_b32 s57, 0x800080
    """)
    for i in range(7):
        C(f"s_movk_i32 s{70 + i}, {2048 * i}" if qpost else f"s_lshl_b32 s{70 + i}, s{70 + i}, 4")
    C("""
    s_waitcnt lgkmcnt(0)
    s_add_u32 s52, s22, s29
    s_addc_u32 s53, s23, 0
    s_mov_b32 s54, 28672
    s_mov_b32 s55, 0x20000
    """)

    def kpref(g):
        kv, p, i0 = g // 12, (g // 3) % 4, 3 * (g % 3)
        t = f"s_add_u32 s59, s60, {i0 * 32768}\nv_lshl_add_u32 {vF}, v0, 9, s59\n"
        for hh in range(kph):
            t += f"buffer_load_dword {vF}, s[{80 + 4 * kv}:{83 + 4 * kv}], 0 offen offset:{p * 128 + hh * 128 // kph} {kpp} lds\n"
        return t
    kat = {}
    if kpf:
        for g, j in enumerate(kpf):
            kat.setdefault(j, []).append(g)
        C(f"""
        s_lshl_b32 s60, s28, 4
        s_add_u32 s60, s60, s27
        s_lshl_b32 s60, s60, 18
        s_add_u32 s80, s10, s60
        s_addc_u32 s81, s11, 0
        s_mov_b32 s82, 262144
        s_mov_b32 s83, 0x20000
        s_add_u32 s84, s12, s60
        s_addc_u32 s85, s13, 0
        s_mov_b32 s86, 262144
        s_mov_b32 s87, 0x20000
        s_lshl_b32 s60, s30, 15
        s_mov_b32 m0, {FLAGB + 2560}
        """)
        for g in kat.get(-2, []):
            C(kpref(g))
    C("s_barrier")
    for g in kat.get(-1, []):
        C(kpref(g))
    C(cr(f"""
    {gsrd}
    s_mov_b32 s58, s27
    {mbadr}
    s_lshl_b32 s7, s30, 9
    s_cbranch_scc1 L_nosnap
    {snapld}
    L_nosnap:
    s_add_u32 s7, s7, {FLAGB}
    """))
    XF = 112

    M = []

    def rng(p, a, n):
        return f"{p}[{a}:{a + n - 1}]"

    def add(tile, rd, d, b, first):
        M.append(dict(tile=tile, rd=rd, d=[rng(d[0], d[1] + 8 * h, 4) for h in range(2)],
                      b=[rng(b[0], b[1] + 4 * h, 4) for h in range(2)], first=first))

    def L(t):
        if t % 2 == 0:
            return ("v", 32 + 8 * t)
        return ("v", 160 + 8 * (t - 1)) if t < 13 else ("a", 64 + 8 * (t - 13))

    QA = {0: [L(10), L(12)], 1: [("a", 32), ("a", 48)], 2: [("a", 0), ("a", 16)], 3: [("a", 32), ("a", 48)]}
    QB = lambda p: 32 * (p & 1)
    OA = {0: ("a", 0), 1: ("v", 192) if oa1 == "v" else ("a", 32), 2: ("v", 160), 3: ("v", 224)}
    OF = {0: 224, 1: 192, 2: 160, 3: 224}
    marks = {}
    first, lastm = {}, {}
    seen = {}
    for kind, i in CONS:
        p = int(kind[1])
        nth = seen.get(kind, 0)
        seen[kind] = nth + 1
        first.setdefault(kind, len(M))
        if kind[0] == "q":
            seq = [(ks, dt, u) for ks in range(2) for dt in range(2) for u in range(2)] if nth < 6 else \
                  [(ks, dt, u) for dt in range(2) for ks in range(2) for u in range(2)]
            for n, (ks, dt, u) in enumerate(seq):
                o = ks * 4096
                rd = [("tr", AQ, 4, 2 * dt + u, o), ("tr", AQ, 4, 2 * dt + u, o + 512)]
                if p == 0:
                    xs = {0: [(0, 0), (0, 1)], 1: [(1, 0), (1, 1)]} if nth == 6 else {0: [(0, 0), (0, 1)], 1: [(1, 0)], 2: [(1, 1)]}
                    rd = [("x", AX, 2, a, (XF + 4 * (4 * i + 2 * a + h), 2048 * h)) for a, h in xs.get(n, [])] + rd
                add((kind, i), rd, (QA[p][dt][0], QA[p][dt][1] + 4 * u), ("a", XF + 4 * (4 * i + 2 * ks)), nth == 0 and ks == 0)
                marks[("q", p, dt)] = len(M) - 1
        elif kind[0] == "k":
            for kt in range(4):
                t = 2 * i + (kt >> 1)
                for sx in range(2):
                    n0 = seen.get(("S", t, kt), 0)
                    seen[("S", t, kt)] = n0 + 1
                    add((kind, i), [("b128", AK, 2, sx, kt * 2048)], (L(t)[0], L(t)[1] + 4 * (kt & 1)), ("a", QB(p) + 8 * sx), n0 == 0)
                    marks.setdefault(("quse", p, sx), len(M) - 1)
                    marks.setdefault(("s0", L(t)), len(M) - 1)
                marks[("s", t)] = len(M) - 1
        elif kind[0] == "v":
            seq = [(ks, T) for ks in range(2) for T in range(4)] if nth < 7 else \
                  [(ks, 2 * dt + w) for dt in range(2) for ks in range(2) for w in range(2)]
            for ks, T in seq:
                t = 2 * i + ks
                o = ks * 4096
                add((kind, i), [("tr", AV, 4, T, o), ("tr", AV, 4, T, o + 2048)], (OA[p][0], OA[p][1] + 16 * (T >> 1) + 4 * (T & 1)),
                    ("v", 32 + 8 * t), nth == 0 and ks == 0)
                marks.setdefault(("pv", t), len(M) - 1)
                marks[("o", p, T >> 1)] = len(M) - 1
        else:
            seq = [(U, dp) for U in range(4) for dp in range(2)] if nth else [(U, dp) for dp in range(2) for U in range(4)]
            for U, dp in seq:
                T = 2 * i + (U >> 1)
                acc = 16 * ((T + 7) % 14)
                o = dp * 4096
                n0 = seen.get(("T", T, U), 0)
                seen[("T", T, U)] = n0 + 1
                add((kind, i), [("tr", AV, 4, U, o), ("tr", AV, 4, U, o + 2048)], ("a", acc + 4 * (U & 1)),
                    ("v", OF[p] + 8 * dp), n0 == 0)
                marks.setdefault(("ouse", p, dp), len(M) - 1)
                marks.setdefault(("t0", acc), len(M) - 1)
                marks[("T", T)] = len(M) - 1
        lastm[kind] = len(M) - 1
    for p in range(4):
        assert lastm[f"q{p}"] < first[f"k{p}"] and lastm[f"v{p}"] < first[f"o{p}"] and lastm["q0"] < first["q1"]
        assert lastm[f"k{p}"] < min(first[f"v{x}"] for x in range(4))
    assert lastm["k0"] < first["q2"] and lastm["k1"] < first["q3"]
    assert lastm["o0"] < first["v3"] and lastm["v0"] < first["v2"] and (oa1 == "a" or lastm["v0"] < first["v1"])
    assert [marks[("s", t)] for t in range(16)] == sorted(marks[("s", t)] for t in range(16))
    assert csnap < marks[("s0", L(14))] - PD
    N = len(M)
    assert N == 960

    F = []

    def fill(ready, dead, text, cost=4):
        F.append((ready, dead, cost, text))

    for p in range(4):
        for dt in range(2):
            r = marks[("q", p, dt)] + lag
            k, a0 = QA[p][dt]
            for g in range(2):
                dl = marks[("quse", p, dt)]
                if k == "a":
                    e = [3, 4, 5, 6, 7, 26, 27, 28]
                    for j in range(8):
                        fill(r, dl, f"v_accvgpr_read_b32 v{e[j]}, a{a0 + 8 * g + j}")
                else:
                    assert dl <= marks[("s0", QA[p][dt])]
                    e = [a0 + 8 * g + j for j in range(8)]
                for j in (0, 2, 1, 3):
                    fill(r, dl, f"v_cvt_pk_bf16_f32 v{e[2 * j]}, v{e[2 * j]}, v{e[2 * j + 1]}")
                fill(r, dl, f"v_permlane16_swap_b32 v{e[0]}, v{e[4]}")
                fill(r, dl, f"v_permlane16_swap_b32 v{e[2]}, v{e[6]}")
                for j in (0, 2, 1, 3):
                    fill(r, dl, f"v_accvgpr_write_b32 a{QB(p) + 4 * (2 * dt + g) + j}, v{e[2 * j]}")
    pv0 = marks[("pv", 0)]
    op0 = min(first[f"o{p}"] for p in range(4))
    lastq = max(lastm[f"q{p}"] for p in range(4))
    assert lastq < marks[("s", 0)]
    F += [(lastq, pv0 - PD, 4, x) for x in [f"v_accvgpr_read_b32 v{AV}, a96"] + [f"v_xor_b32 v{AV + j}, {32 * j}, v{AV}" for j in range(1, 4)] +
          [f"v_add_u32 v{AV + 4 * w + j}, {65536 * w:#x}, v{AV + j}" for w in (1, 2) for j in range(4)]]
    sloc = lambda t: L(t)[1] if t not in (13, 15) else L(t - 12)[1]
    nsum = [0, 0]

    def summ(t, g, r):
        d = f"a[{100 + 4 * g}:{103 + 4 * g}]"
        c = d if nsum[g] else "0"
        nsum[g] += 1
        p = 32 + 8 * t + 4 * g
        return (r, op0, -1, f"{MS} {d}, a[108:111], v[{p}:{p + 3}], {c}")

    def expo(t, r, dl, final):
        d = sloc(t)
        out = []
        for g in range(2):
            s = [d + 8 * g + j for j in range(8)]
            for j in range(8):
                out.append((r, dl, 4, f"v_fma_f32 v{s[j]}, v{s[j]}, s56, -v{28 + g}"))
                if j:
                    out.append((r, dl, 8, f"v_exp_f32 v{s[j - 1]}, v{s[j - 1]}"))
                if j == 3 and g == 1 and final:
                    out.append(("sum", t, 0))
            out.append((r, dl, 8, f"v_exp_f32 v{s[7]}, v{s[7]}"))
            for j in range(4):
                out.append((r, dl, 4, f"v_cvt_pk_bf16_f32 v{32 + 8 * t + 4 * g + j}, v{s[2 * j]}, v{s[2 * j + 1]}"))
        if final:
            out.append(("late", t, 1))
        return out

    assert 4 <= NE <= 8
    for t in range(16):
        r = marks[("s", t)] + lag
        d = sloc(t)
        dl = pv0
        for j in (0, 4, 1, 5, 2, 6, 3, 7):
            x, y, mx = f"v{d + 2 * j}", f"v{d + 2 * j + 1}", f"v{26 + (j >> 2)}"
            if t in (13, 15):
                fill(r, dl, f"v_accvgpr_read_b32 {x}, a{L(t)[1] + 2 * j}")
                fill(r, dl, f"v_accvgpr_read_b32 {y}, a{L(t)[1] + 2 * j + 1}")
            if t == 0 and j % 4 == 0:
                fill(r, dl, f"v_max_f32 {mx}, {x}, {y}")
            else:
                fill(r, dl, f"v_max3_f32 {mx}, {mx}, {x}, {y}")
        if t < NE:
            for g in range(2):
                fill(r, dl, f"v_mul_f32 v{28 + g}, s56, v{26 + g}")
            for g in range(2):
                fill(r, dl, f"v_ceil_f32 v{28 + g}, v{28 + g}")
            for g in range(2):
                fill(r, dl, f"v_accvgpr_write_b32 a{XF + 2 * t + g}, v{28 + g}")
            F += expo(t, r, dl, False)
    r = marks[("s", 15)] + lag
    for txt in ["v_add_u32 v8, 14336, v30", "v_accvgpr_read_b32 v6, a112",
                "v_permlane16_swap_b32 v26, v27", "v_max_f32 v26, v26, v27", "v_mov_b32 v27, v26", "v_accvgpr_read_b32 v7, a113",
                "v_permlane32_swap_b32 v26, v27", "v_max_f32 v26, v26, v27", "v_mul_f32 v26, s56, v26", "v_ceil_f32 v28, v26",
                "v_ceil_f32 v29, v26", "v_permlane16_swap_b32 v28, v29"]:
        fill(r, pv0, txt)
    pdl = lambda t: marks[("pv", t)]
    G = []
    for t in range(NE):
        dl = pdl(t)
        for txt in ["v_accvgpr_read_b32 {k}, a{a}", "v_sub_f32 {k}, {m}, {k}", "v_cvt_u32_f32 {k}, {k}",
                    "v_min_u32 {k}, 255, {k}", "v_mul_u32_u24 {k}, s57, {k}"][(0 if t else 1):]:
            for g in range(2):
                G.append((r, dl, 4, txt.format(k=f"v{6 + g}", a=XF + 2 * t + g, m=f"v{28 + g}")))
        for g in range(2):
            for j in range(4):
                p = 32 + 8 * t + 4 * g + j
                G.append((r, dl, 4, f"v_pk_sub_u16 v{p}, v{p}, v{6 + g} clamp"))
            G.append(("late", t, g))
    for t in range(NE, 16):
        G += expo(t, r, pdl(t), True)
    pend = []
    for e in G:
        if e[0] == "sum":
            F.append(summ(e[1], e[2], r))
        elif e[0] == "late":
            pend.append([3, e])
        else:
            F.append(e)
            for x in pend:
                x[0] -= 1
            while pend and pend[0][0] <= 0:
                x = pend.pop(0)[1]
                F.append(summ(x[1], x[2], r))
    for _, x in pend:
        F.append(summ(x[1], x[2], r))
    assert nsum == [16, 16]
    rs = marks[("o", 0, 0)]
    for g in range(2):
        fill(rs, op0, f"v_accvgpr_read_b32 v{26 + g}, a{100 + 4 * g}")
    for g in range(2):
        fill(rs, op0, f"v_rcp_f32 v{26 + g}, v{26 + g}", 8)
    for p in sorted(range(4), key=lambda p: lastm[f"v{p}"]):
        for dt in range(2):
            r = marks[("o", p, dt)] + lag
            for g in range(2):
                dl = marks[("ouse", p, dt)]
                e = [OF[p] + 16 * dt + 8 * g + j for j in range(8)]
                if OA[p][0] == "a":
                    dl = min(dl, marks[("t0", OA[p][1] + 16 * dt)])
                    for j in range(8):
                        fill(r, dl, f"v_accvgpr_read_b32 v{e[j]}, a{OA[p][1] + 16 * dt + 8 * g + j}")
                for j in range(8):
                    fill(r, dl, f"v_mul_f32 v{e[j]}, v{26 + g}, v{e[j]}")
                for j in range(4):
                    fill(r, dl, f"v_cvt_pk_bf16_f32 v{OF[p] + 4 * (2 * dt + g) + j}, v{e[2 * j]}, v{e[2 * j + 1]}")
    for T in range(14):
        r = marks[("T", T)] + lag
        assert r > max(lastm[f"v{p}"] for p in range(4))
        acc = 16 * ((T + 7) % 14)
        tb = 64 + 32 * (T % 3)
        for g in range(2):
            for j in range(8):
                fill(r, N, f"v_accvgpr_read_b32 v{tb + 8 * g + j}, a{acc + 8 * g + j}")
            for j in range(4):
                fill(r, N, f"v_cvt_pk_bf16_f32 v{tb + 16 + 4 * g + j}, v{tb + 8 * g + 2 * j}, v{tb + 8 * g + 2 * j + 1}")
            fill(r, N, f"buffer_store_dwordx4 v[{tb + 16 + 4 * g}:{tb + 19 + 4 * g}], v{8 if g else 30}, s[52:55], s{70 + T // 2} offen offset:{(T % 2) * 1024} {stpol}", 4)

    rd_ptr = 0
    fp = 0
    forced = {}

    def reads(j):
        m = M[j]
        out = []
        t = m["tile"]
        ci = j // 16
        jj = j % 16
        if j == csnap:
            out.append((cr(f"""
            s_waitcnt vmcnt({kph * sum(len(v) for k, v in kat.items() if 0 <= k < csnap)})
            v_add_u32 v52, 1, v{50 if bc else 51}
            v_add_u32 v48, s7, v48
            s_cmp_lg_u32 s30, 0
            s_cbranch_scc1 L_nohello
            {hello}
            L_nohello:
            ds_write2st64_b32 v48, v52, v50 offset0:8 offset1:9
            """), 8, 8))
        if jj == 0:
            if not nochk:
                out.append(("s_getpc_b64 s[62:63]\ns_cbranch_vccnz L_cslow", 0, 8))
            if prof:
                if j:
                    out.append((f"v_mov_b32 {vF}, s66\nds_write_b32 {vPA}, {vF} offset:{512 + 16 * (ci - 1)}", 0, 0))
                out.append(("s_memrealtime s[66:67]", 0, 0))
        if tlbw and j == tlbw[0]:
            w = f"s_mov_b32 m0, {FLAGB + 2560}\n"
            if "p" in tlbw[1]:
                w += f"v_mul_u32_u24 {vF}, 448, v0\nbuffer_load_dword {vF}, s[52:55], 0 offen {tlbp} lds\n"
            if "g" in tlbw[1]:
                w += f"v_mul_u32_u24 {vF}, 21504, v0\ns_mul_i32 s31, s30, 7168\nbuffer_load_dword {vF}, s[8:11], s31 offen {tlbp} lds\n"
            if "o" in tlbw[1]:
                w += f"""s_mov_b32 s12, s18
                s_mov_b32 s13, s19
                s_mov_b32 s14, 1376256
                s_mov_b32 s15, 0x20000
                s_mul_i32 s31, s28, 172032
                v_mul_u32_u24 {vF}, 2688, v0
                buffer_load_dword {vF}, s[12:15], s31 offen {tlbp} lds
                """
            assert 1 <= jj < 16 - fpre and j > csnap
            out.append((w, 8, 16))
        for g in kat.get(j, []):
            assert 1 <= jj < 16 - fpre
            out.append((kpref(g), 4, 4 + 4 * kph))
        if poison and j in pz:
            out.append((f"s_movk_i32 s31, {pz[j] * 1024}\nbuffer_store_dwordx4 a[100:103], v30, s[52:55], s31 offen {ppol}", 0, 8))
        b = base[t]
        ring = 224 + 4 * (j % 8)
        n = 0
        for kind, A, na, ar, o in m["rd"]:
            ad = base[("x", t[1])] + o[1] if kind == "x" else b + o
            ar = A + na * (ad // 65536) + ar
            if kind == "x":
                out.append((f"ds_read_b128 a[{o[0]}:{o[0] + 3}], v{ar} offset:{ad % 65536}", 0, 4))
            else:
                if kind == "tr":
                    out.append((f"ds_read_b64_tr_b16 a[{ring + 2 * n}:{ring + 2 * n + 1}], v{ar} offset:{ad % 65536}", 0, 4))
                else:
                    out.append((f"ds_read_b128 a[{ring}:{ring + 3}], v{ar} offset:{ad % 65536}", 0, 4))
                n += 1
        if j + 16 < N and not nochk:
            if jj == 1:
                out.append((f"v_add_u32 {vT}, 4, {vT}", 4, 0))
            if jj == 16 - fpre:
                out.append((f"ds_read_b32 {vF}, {vT} offset:4", 0, 4))
            if jj == 14:
                out.append((f"v_cmp_ne_u32 vcc, 0, {vF}", 4, 0))
            if jj == 15:
                out.append((f"ds_write_b32 {vPA}, {vT}", 0, 4))
        return out

    while rd_ptr < PD:
        for x in reads(rd_ptr):
            C(x[0])
        rd_ptr += 1
    carry = 0
    for i in range(N):
        m = M[i]
        while fp < len(F) and any(f[1] <= i for f in F[fp:fp + 900]):
            assert F[fp][0] - lag < i, (F[fp], i)
            forced[i // 16] = forced.get(i // 16, 0) + abs(F[fp][2])
            C(F[fp][3]); fp += 1
        ring = 224 + 4 * (i % 8)
        rl = reads(rd_ptr) if rd_ptr < N else []
        rd_ptr += 1
        tot = sum(x[1] + x[2] for x in rl)
        wait2 = 0 if (pairw and i % 2 == 0) else wcost
        k = 0; acc_ = 0
        while k < len(rl) and (acc_ == 0 or 2 * (acc_ + rl[k][1] + rl[k][2]) <= tot + wait2):
            acc_ += rl[k][1] + rl[k][2]; k += 1
        parts = [rl[:k], rl[k:]]
        bud0 = bud2 if marks[("s", 0)] <= i < marks[("pv", 15)] else bud3 if i >= marks[("T", 0)] else budget
        for h in range(2):
            c = "0" if m["first"] else m["d"][h]
            extra = ""
            if h == 0:
                extra = f" ;+{m['b'][1]}"
                if pairw and i % 2 == 0:
                    r2 = 224 + 4 * ((i + 1) % 8)
                    extra += f" a[{r2}:{r2 + 3}] {M[i + 1]['b'][0]} {M[i + 1]['b'][1]}"
            C(f"{MS} {m['d'][h]}, a[{ring}:{ring + 3}], {m['b'][h]}, {c}{extra}")
            oth = (wait2 if h else 0)
            bud = bud0 + carry
            for x in parts[h]:
                C(x[0]); bud -= x[1]; oth += x[2]
            bud -= max(0, oth - 4)
            while fp < len(F) and F[fp][0] <= i and (bud >= F[fp][2] or (bud >= 4 and bud0 > 8)):
                bud = bud0 if F[fp][2] < 0 else bud - F[fp][2]
                C(F[fp][3]); fp += 1
            carry = min(bud, 0)
    while fp < len(F):
        forced[59] = forced.get(59, 0) + abs(F[fp][2])
        C(F[fp][3]); fp += 1
    if verbose:
        print("forced cycles per tile:", sum(forced.values()), {f"{CONS[2 * k][0]}.{CONS[2 * k][1]}": v for k, v in forced.items()})
    def stamp(S, n):
        if prof:
            S(f"s_memrealtime s[66:67]\ns_waitcnt lgkmcnt(0)\nv_mov_b32 {vF}, s66\nds_write_b32 {vPA}, {vF} offset:{512 + 16 * n}")
    if prof:
        C(f"v_mov_b32 {vF}, s66\nds_write_b32 {vPA}, {vF} offset:{512 + 16 * 59}")
    C(f"""
    v_add_u32 v232, {vPA}, v30
    {f"v_mov_b32 {vT}, {FLAGB + 236}" if pstart == 59 else ""}
    ds_read_b32 v230, v232 offset:{2048 - 256}
    {f"v_mul_u32_u24 v236, {bc}, v0" if bc else "v_lshlrev_b32 v236, 8, v0"}
    {"s_lshl_b32 s36, s30, 4" if qpost else ""}
    {"s_add_u32 s36, s36, s27" if qpost else ""}
    s_lshl_b32 s36, s36, 1
    {"" if bc else "s_lshl_b32 s51, s27, 2"}
    {"" if bc else "s_add_u32 s51, s51, s30"}
    s_lshl_b32 s51, s{30 if bc else 51}, 2
    s_add_u32 s51, s51, {MB}
    s_mov_b32 s68, 0
    """)
    if qpost:
        for c, n in enumerate((20, 15, 8)):
            if c == 1:
                C("s_mov_b64 exec, -1\ns_call_b64 s[46:47], L_setup\nv_add_u32 v243, 4, v230")
            C(f"""
            s_mov_b64 exec, {0x1111 << c:#x}
            s_waitcnt vmcnt({n}) lgkmcnt(0)
            buffer_store_dword v230, v236, s[8:11], s51 offen sc1
            """)
            if tprof:
                stamp(C, 56 + c)
    else:
        C("s_call_b64 s[46:47], L_setup")
    C(f"""
    {"s_lshl_b64 exec, 1, s27" if bc else "s_mov_b64 exec, 0xffff"}
    s_waitcnt vmcnt({3 if qpost else 0}) lgkmcnt(0)
    buffer_store_dword v{243 if qpost else 230}, v236, s[8:11], s51 offen sc1
    {f"ds_write_b32 {vPA}, {vT}" if pstart == 59 else ""}
    s_mov_b64 exec, -1
    """)
    stamp(C, 60)
    C("s_call_b64 s[46:47], L_red")
    if prof or probe:
        C("s_waitcnt vmcnt(0)")
    stamp(C, 62)
    if prof:
        C(f"""
        v_mov_b32 {vF}, s64
        ds_write_b32 {vPA}, {vF} offset:{512 + 16 * 63}
        v_add_u32 v3, {vPA}, v30
        ds_read_b32 v4, v3 offset:512
        s_lshl_b32 s29, s2, 10
        s_lshl_b32 s31, s30, 8
        s_add_u32 s29, s29, s31
        s_add_u32 s29, s29, {PROF_OFF}
        s_add_u32 s52, s22, s29
        s_addc_u32 s53, s23, 0
        s_mov_b32 s54, 256
        v_lshlrev_b32 v5, 2, v0
        buffer_store_dword v4, v5, s[52:55], 0 offen
        """)
    C("s_endpgm")

    R = Stream()
    R(f"""
    L_red:
    s_lshr_b32 s50, s36, 5
    s_lshr_b32 s31, s36, 4
    s_mul_i32 s38, s31, 14336
    s_bfe_u32 s31, s36, 0x10003
    s_lshl_b32 s31, s31, 7
    s_add_u32 s38, s38, s31
    s_bfe_u32 s31, s36, 0x20001
    s_mul_i32 s31, s31, 7
    v_add_u32 v229, s31, v240
    s_lshl_b32 s31, s31, 9
    s_add_u32 s38, s38, s31
    s_lshr_b32 s31, s36, 3
    s_mul_i32 s39, s31, 14336
    s_add_u32 s39, s39, s37
    s_mov_b64 s[44:45], 0
    """)
    if qpost:
        R("""
        v_add_u32 v229, s77, v229
        v_subrev_u32 v239, 28, v229
        v_min_u32 v229, v229, v239
        v_add_u32 v239, 4, v229
        v_subrev_u32 v244, 24, v229
        v_min_u32 v239, v239, v244
        v_lshrrev_b32 v244, 1, v229
        v_and_b32 v229, 1, v229
        v_lshl_add_u32 v229, v229, 4, v241
        v_lshrrev_b32 v239, 1, v239
        v_lshl_add_u32 v239, v239, 6, v229
        v_lshl_add_u32 v229, v244, 6, v229
        v_or_b32 v239, v239, v242
        """)
    else:
        R("""
        v_lshrrev_b32 v239, 1, v229
        v_and_b32 v229, 1, v229
        v_lshl_add_u32 v229, v229, 4, v241
        v_lshl_add_u32 v229, v239, 6, v229
        v_or_b32 v239, v229, v242
        """)
    if fast:
        R(f"""
        L_w0:
        ds_read_b64 v[232:233], v231 offset:272
        s_add_u32 s68, s68, 1
        s_cmp_gt_u32 s68, {safe}
        s_cbranch_scc1 L_done
        s_waitcnt lgkmcnt(0)
        v_readfirstlane_b32 s40, v232
        v_readfirstlane_b32 s41, v233
        s_bitcmp1_b32 s41, 31
        s_cbranch_scc1 L_done
        s_lshr_b64 s[40:41], s[40:41], s50
        s_and_b64 s[42:43], s[40:41], s[48:49]
        s_cbranch_scc1 L_w1
        s_waitcnt vmcnt(0)
        ds_write_b32 {vPA}, v237
        s_branch L_w0
        L_w1:
        s_cmp_eq_u64 s[42:43], s[48:49]
        s_cbranch_scc1 L_all
        """)
    for h in range(16):
        R(f"""
        L_h{h}:
        s_bitcmp1_b64 s[44:45], {4 * h}
        s_cbranch_scc1 L_g{h}
        s_call_b64 s[62:63], L_more
        s_branch L_h{h}
        L_g{h}:
        """)
        for q in range(2):
            acc = 160 + 16 * q
            R(f"{MF} v[{acc}:{acc + 15}], v[224:227], a[{8 * h + 4 * q}:{8 * h + 4 * q + 3}], {'0' if h == 0 else f'v[{acc}:{acc + 15}]'}")
    if fast:
        R("L_fin:")
    stamp(R, 61)
    for q in range(2):
        acc = 160 + 16 * q
        for j in range(4):
            R(f"v_cvt_pk_bf16_f32 v{acc + 8 + j}, v{acc + 2 * j}, v{acc + 2 * j + 1}")
        R(f"buffer_store_dwordx4 v[{acc + 8}:{acc + 11}], v{239 if q else 229}, s[12:15], s39 offen offset:{0 if qpost else 128 * q} {opol}")
    R(f"""
    s_setpc_b64 s[46:47]
    L_more:
    ds_read_b64 v[232:233], v231 offset:272
    s_add_u32 s68, s68, 1
    s_cmp_gt_u32 s68, {safe}
    s_cbranch_scc1 L_done
    s_waitcnt lgkmcnt(0)
    v_readfirstlane_b32 s40, v232
    v_readfirstlane_b32 s41, v233
    s_bitcmp1_b32 s41, 31
    s_cbranch_scc1 L_done
    s_lshr_b64 s[40:41], s[40:41], s50
    s_andn2_b64 s[42:43], s[40:41], s[44:45]
    s_or_b64 s[44:45], s[44:45], s[40:41]
    s_and_b64 s[42:43], s[42:43], s[48:49]
    s_cbranch_scc0 L_m16
    L_m0:
    """)

    for h in range(16):
        if h % 4 == 0:
            R(f"s_and_b32 s31, s{42 + h // 8}, {0xffff << (16 * ((h // 4) & 1)):#x}\ns_cbranch_scc0 L_m{h + 4}")
        R(f"""
        s_bitcmp1_b32 s{42 + h // 8}, {4 * (h % 8)}
        s_cbranch_scc0 L_m{h + 1}
        s_add_u32 s31, s38, {86016 * h}
        buffer_load_dwordx4 a[{8 * h}:{8 * h + 3}], v228, s[8:11], s31 offen {rdpol}
        buffer_load_dwordx4 a[{8 * h + 4}:{8 * h + 7}], v238, s[8:11], s31 offen offset:2048 {rdpol}
        L_m{h + 1}:
        """)
    if tprof and prof:
        R("s_cmp_eq_u64 s[42:43], 0\ns_cbranch_scc1 L_tp")
        stamp(R, 55)
        R("L_tp:")
    R(f"""
    s_waitcnt vmcnt(0)
    ds_write_b32 {vPA}, v237
    s_setpc_b64 s[62:63]
    L_setup:
    s_mov_b32 s12, s18
    s_mov_b32 s13, s19
    s_mov_b32 s14, 1376256
    s_mov_b32 s15, 0x20000
    s_mul_i32 s37, s28, 172032
    s_mul_i32 s31, s4, 896
    s_add_u32 s37, s37, s31
    s_mov_b32 s48, 0x11111111
    s_mov_b32 s49, 0x11111111
    {"s_lshl_b32 s77, s28, 2" if qpost else ""}
    {"s_cmp_eq_u32 s28, 7" if qpost else ""}
    {"s_cselect_b32 s77, 0, s77" if qpost else ""}
    v_mov_b32 v231, {FLAGB}
    v_mov_b32 v237, {DONE}
    v_bfe_u32 v240, v0, 3, 2
    v_and_b32 v234, 7, v0
    v_and_b32 v233, 32, v0
    v_lshlrev_b32 v228, 9, v240
    v_lshl_add_u32 v228, v234, 4, v228
    v_lshl_add_u32 v228, v233, 3, v228
    v_mul_u32_u24 v241, 1792, v234
    v_add_u32 v241, v241, v233
    v_bfrev_b32 v233, 1
    v_cmp_eq_u32 vcc, 3, v240
    v_cndmask_b32 v242, 0, v233, vcc
    v_or_b32 v238, v228, v242
    v_lshrrev_b32 v233, 5, v0
    v_xor_b32 v233, v233, v240
    v_bfe_u32 v234, v0, 1, 2
    v_lshl_add_u32 v233, v233, 2, v234
    v_and_b32 v234, 1, v0
    v_lshlrev_b32 v234, 4, v234
    v_mov_b32 v235, 0x3f80
    v_lshlrev_b32 v234, v234, v235
    """)
    for q in range(4):
        R(f"v_cmp_eq_u32 vcc, {q}, v233\nv_cndmask_b32 v{224 + q}, 0, v234, vcc")
    R("s_setpc_b64 s[46:47]")
    RF = Stream()
    if fast:
        RF("L_all:")
        for h in range(16):
            RF(f"""
            s_add_u32 s31, s38, {86016 * h}
            buffer_load_dwordx4 a[{8 * h}:{8 * h + 3}], v228, s[8:11], s31 offen {rdpol}
            buffer_load_dwordx4 a[{8 * h + 4}:{8 * h + 7}], v238, s[8:11], s31 offen offset:2048 {rdpol}
            """)
        if tprof:
            stamp(RF, 55)
        for h in range(16):
            for q in range(2):
                acc = 160 + 16 * q
                RF(f"s_waitcnt vmcnt({31 - 2 * h - q})")
                if h == 0 and q == 0:
                    RF(f"ds_write_b32 {vPA}, v237")
                RF(f"{MF} v[{acc}:{acc + 15}], v[224:227], a[{8 * h + 4 * q}:{8 * h + 4 * q + 3}], {'0' if h == 0 else f'v[{acc}:{acc + 15}]'}")
        RF("s_branch L_fin")
    CS = Stream()
    CS(f"""
    L_cslow:
    {f's_sleep {csleep}' if csleep else ''}
    ds_read_b32 {vF}, {vT} offset:4
    s_add_u32 s68, s68, 1
    s_cmp_gt_u32 s68, {safe}
    s_cbranch_scc1 L_done
    s_waitcnt lgkmcnt(0)
    v_cmp_ne_u32 vcc, 0, {vF}
    s_cbranch_vccnz L_cslow
    s_setpc_b64 s[62:63]
    L_lslow:
    {f's_sleep {lsleep}' if lsleep else ''}
    ds_read_b96 v[28:30], v44 offset:256
    s_add_u32 s68, s68, 1
    s_cmp_gt_u32 s68, {safe}
    s_cbranch_scc1 L_done
    s_waitcnt lgkmcnt(0)
    v_min3_u32 v28, v28, v29, v30
    v_readfirstlane_b32 s61, v28
    s_setpc_b64 s[62:63]
    """)

    if pwarm:
        CS(f"""
        L_lslo2:
        ds_read_b96 v[28:30], v44 offset:256
        s_add_u32 s78, s78, 1
        s_cmp_gt_u32 s78, {safe}
        s_cbranch_scc1 L_done
        s_waitcnt lgkmcnt(0)
        v_min3_u32 v28, v28, v29, v30
        v_readfirstlane_b32 s61, v28
        s_setpc_b64 s[62:63]
        """)
    Ld = Stream()
    Ld(f"""
    v_mov_b32 v44, {FLAGB}
    v_lshl_add_u32 v45, v0, 2, v44
    v_mov_b32 v46, {0 if noload else 1}
    v_mov_b32 v47, 0
    ds_write_b32 v45, v46
    ds_write_b32 v45, v47 offset:256
    v_lshrrev_b32 v6, 3, v0
    v_mul_u32_u24 v5, 896, v6
    v_and_b32 v2, 7, v0
    v_lshrrev_b32 v1, 4, v0
    v_xor_b32 v2, v2, v1
    v_lshlrev_b32 v2, 4, v2
    v_add_u32 v32, v2, v5
    v_xor_b32 v33, 64, v32
    v_add_u32 v33, 6144, v33
    v_add_u32 v34, 12288, v32
    v_add_u32 v35, 12288, v33
    v_and_b32 v4, 7, v0
    v_and_b32 v3, 1, v1
    v_xor_b32 v3, v3, v4
    v_lshlrev_b32 v3, 4, v3
    v_lshl_add_u32 v8, v6, 13, v3
    v_xor_b32 v9, 64, v8
    v_add_u32 v9, 64512, v9
    v_add_u32 v10, 129024, v8
    v_add_u32 v11, 129024, v9
    v_lshlrev_b32 v3, 1, v1
    v_xor_b32 v3, v3, v4
    v_lshlrev_b32 v3, 4, v3
    v_lshl_add_u32 v12, v6, 9, v2
    v_xor_b32 v13, 64, v12
    v_add_u32 v13, 3072, v13
    v_add_u32 v14, 6144, v12
    v_add_u32 v15, 6144, v13
    """)
    for i in range(7):
        Ld(f"s_lshl_b32 s{77 + i}, s{70 + i}, 12")
    if qrot:
        Ld({"h": "s_mov_b32 s84, s27", "b": "s_mov_b32 s84, s28", "hb": "s_add_u32 s84, s27, s28", "H": "s_lshr_b32 s84, s27, 2",
            "h2": "s_lshl_b32 s84, s27, 1", "b2": "s_lshl_b32 s84, s28, 1"}[qrot])
        Ld("s_lshl_b32 s84, s84, 7\ns_and_b32 s84, s84, 0x180")
        for p in range(1, 4):
            Ld(f"s_xor_b32 s{84 + p}, s84, {128 * p}")
        for p in range(4):
            Ld(f"s_mul_i32 s{88 + p}, s{84 + p}, 448")
    Ld("""
    s_mov_b32 s61, 0
    s_mul_i32 s29, s28, 86016
    s_lshl_b32 s31, s27, 9
    s_lshl_b32 s60, s28, 4
    s_add_u32 s60, s60, s27
    s_lshl_b32 s60, s60, 18
    s_mov_b32 s34, 86016
    s_mov_b32 s35, 0x20000
    s_sub_u32 s46, 3670016, s31
    s_mov_b32 s47, 0x20000
    s_mov_b32 s38, 262144
    s_mov_b32 s39, 0x20000
    s_mov_b32 s26, 4
    s_mul_i32 s59, s27, 229376
    s_mov_b32 s27, 0x20000
    s_waitcnt lgkmcnt(0)
    s_add_u32 s32, s8, s29
    s_addc_u32 s33, s9, 0
    s_add_u32 s44, s14, s31
    s_addc_u32 s45, s15, 0
    s_add_u32 s36, s10, s60
    s_addc_u32 s37, s11, 0
    s_mov_b32 s24, s20
    s_mov_b32 s25, s21
    """)
    setup2 = """
    v_lshl_add_u32 v20, v6, 9, v3
    v_add_u32 v21, 3072, v20
    v_add_u32 v22, 6144, v20
    v_add_u32 v23, 9216, v20
    v_add_u32 v24, v5, v3
    v_add_u32 v25, 6144, v24
    v_add_u32 v26, 12288, v24
    v_add_u32 v27, 18432, v24
    s_add_u32 s40, s12, s60
    s_addc_u32 s41, s13, 0
    s_mov_b32 s42, 262144
    s_mov_b32 s43, 0x20000
    s_add_u32 s48, s16, s59
    s_addc_u32 s49, s17, 0
    s_mov_b32 s50, 229376
    s_mov_b32 s51, 0x20000
    """
    pieces = [(t, q) for t in order for q in range(3 if t[0] == "x" else 2)]
    setup_at = min([11] + [n for n, (t, q) in enumerate(pieces) if t[0][0] in "vo"])
    st = dict(known=-1, vm=0, ds=0)
    stamped = set()
    vend, dend = {}, {}
    if vload:
        Ld("v_lshlrev_b32 v56, 4, v0\nv_add_u32 v57, 0x10000, v56\nv_add_u32 v58, 0x20000, v56")

    def space(n):
        t, q = pieces[n]
        if q == 0:
            if need[t] > st["known"] and not noload:
                assert n > lbar
                Ld(f"s_getpc_b64 s[62:63]\ns_cmp_lt_u32 s61, {FLAGB + 4 * need[t]}\ns_cbranch_scc1 L_lslow")
                st["known"] = need[t]
            if verbose:
                print(f"{t[0]}.{t[1]}@{base[t] // 4096}<{need[t]}", end=" ")
            if prof and t[0] != "x" and step[t] not in stamped and not plast:
                stamped.add(step[t])
                Ld(f"s_memrealtime s[66:67]\ns_waitcnt lgkmcnt(0)\nv_writelane_b32 v43, s66, {step[t]}")

    def issue(n):
        t, q = pieces[n]
        kind, i = t
        if n == lbar:
            Ld("s_barrier")
        if n == setup_at:
            Ld(setup2)
        if qpost and n == 1 + max(k for k, (u, _) in enumerate(pieces) if u[0] == "x"):
            Ld("s_lshl_b32 s70, s28, 7\ns_cmp_eq_u32 s28, 7\ns_cselect_b32 s70, 0, s70")
            for k in range(1, 7):
                Ld(f"s_add_u32 s{70 + k}, s{69 + k}, 128\ns_cmp_eq_u32 s{70 + k}, 896\ns_cselect_b32 s{70 + k}, 0, s{70 + k}")
        if n == len(pieces) - 4:
            Ld(f"""
            s_lshl_b32 s3, s4, 3
            s_add_u32 s3, s3, s28
            s_mul_i32 s69, s3, {GS}
            {f's_add_u32 s69, s69, {woff}' if woff else ''}
            {gsrd}
            s_bfe_u32 s58, s60, 0x40012
            {mbadr}
            buffer_load_dword v53, {pollv}, s[8:11], s5 offen sc1
            """)
            st["vm"] += 1
        if not vload:
            space(n)
        p = 0 if kind == "x" else int(kind[1])
        pr = p
        if qrot:
            p = 0
        if kind == "x":
            so, srd, vb, pol = (70 + i, q * 28672), 32, 32, xpol
        elif kind[0] == "q":
            so, srd, vb, pol = (77 + i, p * 128 + q * 262144), 44, 8, wpol
        elif kind[0] == "k":
            so, srd, vb, pol = p * 128 + i * 32768 + q * 16384, 36, 12, kvpol
        elif kind[0] == "v":
            so, srd, vb, pol = p * 128 + i * 32768 + q * 16384, 40, 20, kvpol
        else:
            so, srd, vb, pol = (70 + i, (p * 64 + q * 32) * 896), 48, 24, wpol
        assert n >= setup_at or srd in (32, 44, 36)
        if not vload:
            Ld(f"s_mov_b32 m0, {base[t] + q * 4096}")
        if isinstance(so, tuple):
            Ld(f"s_add_u32 s31, s{so[0]}, {so[1]}")
        elif qrot:
            Ld(f"s_add_u32 s31, s{84 + pr}, {so}")
        else:
            Ld(f"s_mov_b32 s31, {so}")
        if qrot and kind[0] in "qo":
            Ld(f"s_add_u32 s31, s31, s{(84 if kind[0] == 'q' else 88) + pr}")
        if vload:
            if n >= 16 and st["ds"] - dend[n - 16] < 15:
                Ld(f"s_waitcnt lgkmcnt({st['ds'] - dend[n - 16]})")
            for k in range(4):
                r = 16 * (n % 16) + 4 * k
                Ld(f"buffer_load_dwordx4 a[{r}:{r + 3}], v{vb + k}, s[{srd}:{srd + 3}], s31 offen offset:{k * 1024} {pol}")
            st["vm"] += 4
            vend[n] = st["vm"]
            return
        for k in range(0 if noload else 4):
            Ld(f"buffer_load_dwordx4 v{vb + k}, s[{srd}:{srd + 3}], s31 offen offset:{k * 1024} {pol} lds")
        if q == (2 if kind == "x" else 1) and t in flag and prof and plast:
            Ld(f"s_memrealtime s[66:67]\ns_waitcnt lgkmcnt(0)\nv_writelane_b32 v43, s66, {flag[t]}")
        if q == (2 if kind == "x" else 1) and t in flag:
            Ld(f"s_mov_b32 m0, {FLAGB + 4 * flag[t]}\ns_mov_b64 exec, 1\nbuffer_load_dword off, s[24:27], 0 lds\ns_mov_b64 exec, -1")

    def write(n):
        t, q = pieces[n]
        assert st["vm"] - vend[n] <= 63
        Ld(f"s_waitcnt vmcnt({st['vm'] - vend[n]})")
        space(n)
        ad = base[t] + q * 4096
        for k in range(4):
            r = 16 * (n % 16) + 4 * k
            Ld(f"ds_write_b128 v{56 + ad // 65536}, a[{r}:{r + 3}] offset:{ad % 65536 + k * 1024}")
        st["ds"] += 4
        dend[n] = st["ds"]
        if q == (2 if t[0] == "x" else 1) and t in flag:
            Ld(f"s_mov_b64 exec, 1\nds_write_b32 v44, v47 offset:{4 * flag[t]}\ns_mov_b64 exec, -1")
            st["ds"] += 1

    if vload:
        dep = [(0, vload)] if isinstance(vload, int) else list(vload)
        depth = lambda n: [d for f, d in dep if f <= n][-1]
        wp = 0
        for n in range(len(pieces)):
            while n - wp >= depth(wp):
                write(wp); wp += 1
            assert n - wp < 16
            issue(n)
        while wp < len(pieces):
            write(wp); wp += 1
    else:
        for n in range(len(pieces)):
            issue(n)
    def lstamp(n):
        if prof:
            Ld(f"s_memrealtime s[66:67]\ns_waitcnt lgkmcnt(0)\nv_writelane_b32 v43, s66, {n}")
    Ld(f"""
    s_lshl_b32 s3, s3, 3
    s_mov_b64 s[16:17], 0
    s_mov_b32 s59, 0
    v_mov_b32 {vPA}, {FLAGB + 268}
    """)
    Ld("ds_read2st64_b32 v[50:51], v45 offset0:9 offset1:8\nv_add_u32 v51, -1, v51")
    Ld(f"""
    s_waitcnt vmcnt(0)
    s_mov_b32 s26, 256
    v_cmp_ne_u32 vcc, v53, v50
    s_and_b32 s7, vcc_lo, vcc_hi
    s_or_b32 s7, s7, 0x77777777
    """)
    if nofast:
        Ld("s_mov_b32 s7, 0")
    lstamp(60)
    if dry:
        Ld(f"""
        s_call_b64 s[46:47], L_setup
        s_mov_b32 s10, 0
        s_mov_b32 s14, 0
        s_mov_b32 s38, 0
        s_mov_b32 s39, 0
        v_mov_b32 v229, 0
        v_mov_b32 v239, 0
        """)
        if dry in (True, "f", "b"):
            Ld("s_call_b64 s[46:47], L_all")
        if dry in ("o", "b"):
            Ld("""
            s_mov_b64 s[42:43], -1
            s_mov_b64 s[44:45], -1
            s_call_b64 s[62:63], L_m0
            s_call_b64 s[46:47], L_h0
            """)
        if dry == "r":
            Ld(f"""
            v_mov_b32 v54, -1
            v_bfrev_b32 v55, -2
            v_mov_b32 v231, {FLAGB + 8}
            ds_write_b64 v44, v[54:55] offset:280
            s_mov_b32 s36, 0
            s_call_b64 s[46:47], L_red
            """)
        Ld(f"s_mov_b32 s10, {GS}")
    if pstart is not None and not pwarm:
        Ld(f"s_getpc_b64 s[62:63]\ns_cmp_lt_u32 s61, {FLAGB + 4 * pstart}\ns_cbranch_scc1 L_lslow")
    fixchk = """
    v_sub_u32 v54, v53, v50
    v_and_b32 v54, 12, v54
    v_cmp_ne_u32 vcc, 0, v54
    s_or_b64 vcc, vcc, s[16:17]
    s_and_b32 s31, vcc_lo, vcc_hi
    s_or_b32 s31, s31, 0x88888888
    s_cmp_eq_u32 s31, -1
    s_cbranch_scc0 L_nxt
    """
    pub = """
    s_and_b32 s31, vcc_hi, 0x7fffffff
    v_mov_b32 v54, vcc_lo
    v_mov_b32 v55, s31
    ds_write_b64 v44, v[54:55] offset:272
    """
    if pp:
        D, NP = pp
        for k in range(NP + D - 1):
            if k < NP:
                if k:
                    Ld("ds_read_b96 v[28:30], v44 offset:256\ns_waitcnt lgkmcnt(0)\nv_min3_u32 v28, v28, v29, v30\nv_readfirstlane_b32 s61, v28")
                Ld(f"buffer_load_dword v{56 + k}, {pollv}, s[8:11], s5 offen sc1")
            if k >= D - 1:
                j = k - D + 1
                Ld(f"""
                s_waitcnt vmcnt({min(k, NP - 1) - j})
                v_cmp_ne_u32 vcc, v{56 + j}, v50
                s_and_b32 s31, vcc_lo, vcc_hi
                s_or_b32 s31, s31, 0x88888888
                s_cmp_eq_u32 s31, -1
                s_cbranch_scc1 L_seen
                """)
                if tprof:
                    lstamp(59)
        Ld(f"L_seen:\n{pub}")
        if tprof:
            lstamp(58)
    Ld(f"""
    s_mov_b32 s68, 0
    {"s_mov_b32 s78, 0" if pwarm else ""}
    L_poll:
    ds_read_b96 v[28:30], v44 offset:256
    s_add_u32 s68, s68, 1
    s_waitcnt lgkmcnt(0)
    buffer_load_dword v53, {pollv}, s[8:11], s5 offen sc1
    v_min3_u32 v28, v28, v29, v30
    s_cmp_gt_u32 s68, {t1}
    v_readfirstlane_b32 s61, v28
    s_cbranch_scc1 L_pslow
    L_p2:
    s_waitcnt vmcnt(0)
    v_cmp_ne_u32 vcc, v53, v50
    s_or_b64 vcc, vcc, s[16:17]
    {'' if allornone else pub}
    s_and_b32 s31, vcc_lo, vcc_hi
    s_or_b32 s31, s31, 0x88888888
    s_cmp_eq_u32 s31, -1
    s_cbranch_scc0 {"L_nxa" if tprof and prof else "L_nxt"}
    {pub if allornone else ''}
    s_cmp_eq_u32 s61, {DONE}
    s_cbranch_scc0 L_nxt
    s_cmp_eq_u32 s7, -1
    s_cbranch_scc0 L_careful
    v_sub_u32 v54, v53, v50
    v_and_b32 v54, 2, v54
    v_cmp_ne_u32 vcc, 0, v54
    s_or_b64 vcc, vcc, s[16:17]
    s_and_b32 s56, vcc_lo, 0x88888888
    s_and_b32 s57, vcc_hi, 0x88888888
    s_lshl_b32 s31, s58, 2
    s_add_u32 s31, s31, 3
    s_bitset0_b64 s[56:57], s31
    s_or_b32 s31, s56, s57
    s_cbranch_scc1 L_fix
    L_lend:
    """)
    lstamp(61)
    if prof:
        Ld(f"""
        v_writelane_b32 v43, s68, 62
        s_lshl_b32 s29, s2, 10
        s_add_u32 s29, s29, {PROF_OFF + 768}
        s_add_u32 s52, s22, s29
        s_addc_u32 s53, s23, 0
        s_mov_b32 s54, 256
        s_mov_b32 s55, 0x20000
        v_lshlrev_b32 v3, 2, v0
        buffer_store_dword v43, v3, s[52:55], 0 offen
        """)
    Ld(f"""
    s_waitcnt vmcnt(0) lgkmcnt(0)
    L_done:
    s_endpgm
    {"L_nxa:" + chr(10) + "s_memrealtime s[66:67]" + chr(10) + "s_waitcnt lgkmcnt(0)" + chr(10) + "v_writelane_b32 v43, s66, 59" if tprof and prof else ""}
    L_nxt:
    {f's_sleep {psleep}' if psleep else ''}
    {f"s_getpc_b64 s[62:63]{chr(10)}s_cmp_lt_u32 s61, {FLAGB + 4 * pstart}{chr(10)}s_cbranch_scc1 L_lslo2" if pwarm else ""}
    s_cmp_lt_u32 s68, {lim}
    s_cbranch_scc1 L_poll
    s_cmp_lg_u32 s59, 0
    s_cbranch_scc1 L_abort
    s_getpc_b64 s[62:63]
    s_cmp_lt_u32 s61, {DONE}
    s_cbranch_scc1 L_lslow
    s_mov_b32 s59, 1
    s_mov_b32 s7, 0
    s_max_u32 s68, s68, {t1}
    s_lshl_b32 s31, s58, 2
    s_lshl_b64 s[56:57], 15, s31
    v_mov_b32 v54, s56
    v_mov_b32 v55, s57
    v_add_u32 v52, 3, v51
    s_mov_b64 exec, 1
    buffer_atomic_or_x2 v[54:55], off, s[24:27], s3 offset:128 sc1
    {own(8)}
    buffer_store_dword v52, v49, s[8:11], s6 offen sc1
    s_mov_b64 exec, -1
    s_waitcnt vmcnt(0)
    s_branch L_poll
    L_pslow:
    buffer_load_dwordx2 v[54:55], off, s[24:27], s3 offset:128 sc1
    s_waitcnt vmcnt(0)
    v_readfirstlane_b32 s16, v54
    v_readfirstlane_b32 s17, v55
    s_branch L_p2
    L_careful:
    v_add_u32 v52, {13 if qpost else 2}, v51
    {own(7)}
    buffer_store_dword v52, v49, s[8:11], s6 offen sc1
    s_mov_b64 exec, -1
    s_mov_b32 s7, -1
    s_waitcnt vmcnt(0)
    s_branch L_poll
    L_abort:
    v_bfrev_b32 v55, 1
    ds_write_b64 v44, v[54:55] offset:272
    s_branch L_lend
    L_fix:
    {fixchk if qpost else ""}
    s_call_b64 s[46:47], L_setup
    s_mov_b32 s68, 0
    L_fix0:
    s_ff1_i32_b64 s31, s[56:57]
    s_bitset0_b64 s[56:57], s31
    s_lshr_b32 s31, s31, 2
    s_mul_i32 s36, s31, {2 if qpost else 6}
    s_add_u32 s60, s36, {96 if qpost else 6}
    L_fix1:
    s_call_b64 s[46:47], L_red
    s_waitcnt vmcnt(0)
    s_add_u32 s36, s36, {32 if qpost else 2}
    s_cmp_lt_u32 s36, s60
    s_cbranch_scc1 L_fix1
    s_or_b32 s31, s56, s57
    s_cbranch_scc1 L_fix0
    s_branch L_lend
    """)

    import gen_kernel as g1
    tail = g1.tail_kernels(rdpol, probe, clk, False)
    body = P.finish() + Ld.finish() + CS.finish() + C.finish() + R.finish() + RF.finish()
    if clk == "cyc":
        body = [l.replace("s_memrealtime", "s_memtime") for l in body]
    if verbose:
        print("\nconsumer nops", C.nops, "instructions", len(C.ins))
    T = H + ["    " + l if not l.endswith(":") else l for l in body]
    T += tail[0]
    T += ["L_end:"]
    ks = [(K1, 512, 256)] + tail[1]
    T += ['.section .rodata,"a"']
    for k, nv, ao in ks:
        T += [".p2align 6", f".amdhsa_kernel {k}", f"  .amdhsa_next_free_vgpr {nv}", "  .amdhsa_next_free_sgpr 102",
              f"  .amdhsa_accum_offset {ao}", "  .amdhsa_group_segment_fixed_size 0", "  .amdhsa_kernarg_size 104",
              "  .amdhsa_user_sgpr_count 2", "  .amdhsa_user_sgpr_kernarg_segment_ptr 1",
              "  .amdhsa_system_sgpr_workgroup_id_x 1", ".end_amdhsa_kernel"]
    return "\n".join(T) + "\n"


if __name__ == "__main__":
    out = sys.argv[1] if len(sys.argv) > 1 else f"cdna_kernels/{NAME}.s"
    kw = {}
    for a in sys.argv[2:]:
        k, v = a.split("=", 1); v = v.replace("+", " ")
        kw[k] = eval(v) if v and (v[0].isdigit() or v[0] in "([" or v in ("True", "False")) else v
    open(out, "w").write(gen(verbose=True, **kw))
```
